```python
import torch

def _softmax(x, axis=-1):
    return torch.softmax(x, dim=axis)
def _gelu(x):
    return torch.nn.functional.gelu(x, approximate="tanh")
def _silu(x):
    return torch.nn.functional.silu(x)
def _sigmoid(x):
    return torch.sigmoid(x)
def _layernorm(x, axis=-1, eps=1e-5):
    m = x.mean(dim=axis, keepdim=True)
    v = x.var(dim=axis, keepdim=True, unbiased=False)
    return (x - m) / torch.sqrt(v + eps)
def _scatter_add(tgt, idx, src, axis=0):
    return tgt.clone().index_add_(axis, idx, src)
def _segment_sum(src, seg, n):
    out = torch.zeros((n,) + src.shape[1:], dtype=src.dtype)
    return out.index_add_(0, seg, src)
def _pad(x, pw):
    flat = tuple(v for pair in reversed(pw) for v in pair)
    return torch.nn.functional.pad(x, flat)

kernel_name = 'recurrent_scan__sliding_block_cached__mixer_token_mlp__decode'

def setup_inputs():

    _w = (lambda a: (lambda t: t.to(torch.bfloat16) if t.is_floating_point() else t)(torch.as_tensor(a)))
    def _A_setup():
        B, Sq, D = 4, 1, 512
        Hq, Hkv, Sk, Dh = 32, 8, 4096, 128
        assert Hq % Hkv == 0, (Hq, Hkv)
        return {
            "x": _w((lambda *s: torch.randn(*s, dtype=torch.bfloat16) * 0.05)(B, Sq, D)),
            "k_cache": _w((lambda *s: torch.randn(*s, dtype=torch.bfloat16) * 3.2)(B, Hkv, Sk, Dh)),
            "v_cache": _w((lambda *s: torch.randn(*s, dtype=torch.bfloat16) * 3.2)(B, Hkv, Sk, Dh)),
            "wq": _w((lambda *s: torch.randn(*s, dtype=torch.bfloat16) * 3.2)(D, Hq * Dh) * (D ** -0.5)),
            "wo": _w((lambda *s: torch.randn(*s, dtype=torch.bfloat16) * 3.2)(Hq * Dh, D) * ((Hq * Dh) ** -0.5)),
        }
    _A_in = _A_setup()

    def _B_setup():
        B, S, D, F = 4, 1, 512, 1792
        return {
            "x": _w((lambda *s: torch.randn(*s, dtype=torch.bfloat16) * 0.05)(B, S, D)),
            "w1": _w((lambda *s: torch.randn(*s, dtype=torch.bfloat16) * 3.2)(S, F) * (S ** -0.5)),
            "b1": _w((lambda *s: torch.randn(*s, dtype=torch.bfloat16) * 3.2)(F) * 0.02),
            "w2": _w((lambda *s: torch.randn(*s, dtype=torch.bfloat16) * 0.4)(F, S) * (F ** -0.5)),
            "b2": _w((lambda *s: torch.randn(*s, dtype=torch.bfloat16) * 0.4)(S) * 0.02),
        }
    _B_in = _B_setup()

    return {
        "A_x": _A_in["x"],
        "A_k_cache": _A_in["k_cache"],
        "A_v_cache": _A_in["v_cache"],
        "A_wq": _A_in["wq"],
        "A_wo": _A_in["wo"],
        "B_x": _B_in["x"],
        "B_w1": _B_in["w1"],
        "B_b1": _B_in["b1"],
        "B_w2": _B_in["w2"],
        "B_b2": _B_in["b2"],
    }

def reference(A_x, A_k_cache, A_v_cache, A_wq, A_wo, B_x, B_w1, B_b1, B_w2, B_b2):
    def _A_ref(x, k_cache, v_cache, wq, wo):
        B, Sq, D = x.shape
        Hq, Dh = 32, 128
        Hkv, Sk = k_cache.shape[1], k_cache.shape[2]
        W = min(4096, max(256, Sk // 4))
        rep = Hq // Hkv
        q = (lambda x, *d: x.permute(*d))((x @ wq).reshape(B, Sq, Hq, Dh), 0, 2, 1, 3)
        k = (lambda x, n, axis: torch.repeat_interleave(x, n, dim=axis))(k_cache[:, :, Sk - W:, :], rep, axis=1)
        v = (lambda x, n, axis: torch.repeat_interleave(x, n, dim=axis))(v_cache[:, :, Sk - W:, :], rep, axis=1)
        scores = torch.einsum("bhqd,bhkd->bhqk", q, k) * (Dh ** -0.5)
        p = _softmax(scores, axis=-1)
        o = torch.einsum("bhqk,bhkd->bhqd", p, v)
        return (lambda x, *d: x.permute(*d))(o, 0, 2, 1, 3).reshape(B, Sq, Hq * Dh) @ wo

    def _B_ref(x, w1, b1, w2, b2):
        B, S, D = x.shape
        h = _layernorm(x, axis=-1)
        u = torch.einsum("bsd,sf->bdf", h, w1) + b1
        u = _gelu(u)
        y = torch.einsum("bdf,fs->bds", u, w2) + b2
        return (lambda x, *d: x.permute(*d))(y, 0, 2, 1)

    x = A_x
    xn = _layernorm(x, axis=-1)
    s = _A_ref(xn, A_k_cache, A_v_cache, A_wq, A_wo)
    g = _silu(_B_ref(xn, B_w1, B_b1, B_w2, B_b2))
    return x + s * g
```

```python
import re
TRANS = ('v_exp_f32','v_log_f32','v_rcp_f32','v_rsq_f32','v_sqrt_f32','v_sin_f32','v_cos_f32')
def regs_of(tok, kind):
    tok = tok.strip()
    tok = re.sub(r'^-|^abs\(|\)$|^\|', '', tok).rstrip('|')
    m = re.fullmatch(kind + r'(\d+)', tok)
    if m: return {int(m.group(1))}
    m = re.fullmatch(kind + r'\[(\d+):(\d+)\]', tok)
    if m: return set(range(int(m.group(1)), int(m.group(2)) + 1))
    return set()
def sregs_of(tok):
    tok = tok.strip()
    if tok == 'vcc': return {'vcc'}
    if tok == 'exec': return {'exec'}
    if tok == 'm0': return {'m0'}
    return regs_of(tok, 's')
class Ins:
    def __init__(s, text):
        s.text = text
        t = text.split(';')[0].strip()
        p = t.split(None, 1)
        s.mn = p[0]
        rest = p[1] if len(p) > 1 else ''
        ops = [o.strip() for o in re.split(r',(?![^\[]*\])', rest)] if rest else []
        if ops:
            last = ops[-1].split()
            s.mods = ' '.join(last[1:]); ops[-1] = last[0] if last else ''
        else: s.mods = ''
        s.ops = ops
        mn = s.mn
        s.mfma = mn.startswith('v_mfma')
        s.valu = mn.startswith('v_') and not s.mfma
        s.trans = any(mn.startswith(x) for x in TRANS)
        s.dpp = any(k in s.mods for k in ('row_', 'quad_perm', 'wave_'))
        s.perm = mn.startswith('v_permlane')
        s.vmem = mn.startswith(('global_', 'buffer_'))
        s.ds = mn.startswith('ds_')
        s.salu = mn.startswith('s_')
        s.vw = set(); s.vr = set(); s.sw = set(); s.sr = set()
        if s.valu or s.mfma:
            if mn.startswith(('v_cmp', 'v_readfirstlane', 'v_readlane')):
                s.sw = sregs_of(ops[0]); srcs = ops[1:]
            elif s.perm:
                s.vw = regs_of(ops[0], 'v') | regs_of(ops[1], 'v'); srcs = ops
            else:
                s.vw = regs_of(ops[0], 'v'); srcs = ops[1:]
                if mn.startswith(('v_fmac', 'v_writelane', 'v_dot2c')) or s.dpp: srcs = ops
                if '_co_' in mn: s.sw = sregs_of(ops[1]); srcs = ops[2:]
            for o in srcs:
                s.vr |= regs_of(o, 'v'); s.sr |= sregs_of(o)
        elif s.vmem or s.ds:
            isload = ('load' in mn or 'read' in mn or 'bpermute' in mn or 'swizzle' in mn) and 'lds' not in mn and ' lds' not in (' ' + s.mods)
            s.ldw = regs_of(ops[0], 'v') if isload else set()
            for o in (ops[1:] if isload else ops):
                s.vr |= regs_of(o, 'v'); s.sr |= sregs_of(o)
            s.wide_store = ('store' in mn and ('x4' in mn or 'x3' in mn))
            s.ldsdma = ('load_lds' in mn) or (' lds' in (' ' + s.mods))
        elif s.salu and ops:
            if not mn.startswith(('s_cmp', 's_cbranch', 's_branch', 's_waitcnt', 's_nop', 's_barrier', 's_setprio', 's_sleep', 's_endpgm')):
                s.sw = sregs_of(ops[0])
    def states(s):
        if s.mn == 's_nop': return int(s.ops[0], 0) + 1
        return 1
def passes(mn):
    if '32x32' in mn: return 8
    if '4x4x4' in mn: return 2
    return 4
def need(p, c):
    n = 0
    if p.valu:
        ov = p.vw & c.vr
        if ov:
            if c.dpp or c.perm or c.mfma: n = max(n, 2)
            if p.trans and (c.valu and not c.trans or c.mfma): n = max(n, 1)
            if c.mn.startswith(('v_readfirstlane', 'v_readlane')): n = max(n, 1)
            if ('op_sel' in p.mods and not p.mn.startswith('v_pk_')) or 'sdwa' in p.mn or 'dst_sel' in p.mods: n = max(n, 1)
        so = p.sw & c.sr
        if so:
            if c.vmem: n = max(n, 5)
            if c.valu: n = max(n, 4 if c.mn.startswith(('v_readlane', 'v_writelane')) else 2)
    if p.mfma:
        ps = passes(p.mn)
        d = p.vw
        if c.mfma:
            cC = regs_of(c.ops[3], 'v'); cAB = regs_of(c.ops[1], 'v') | regs_of(c.ops[2], 'v')
            if d & cAB: n = max(n, {2: 5, 4: 8, 8: 12}[ps])
            if d & cC:
                if cC == d and passes(c.mn) == ps: n = max(n, 2 if ps == 2 else 0)
                else: n = max(n, {2: 4, 4: 6, 8: 10}[ps])
            elif d & c.vw: n = max(n, {2: 5, 4: 8, 8: 12}[ps])
        else:
            if d & (c.vr | c.vw | getattr(c, 'ldw', set())): n = max(n, {2: 5, 4: 8, 8: 12}[ps])
            pC = regs_of(p.ops[3], 'v')
            if c.valu and (pC & c.vw): n = max(n, {2: 1, 4: 3, 8: 7}[ps])
    if p.vmem and getattr(p, 'wide_store', False):
        if p.vr & (c.vw | getattr(c, 'ldw', set())): n = max(n, 2)
    if p.salu and 'm0' in p.sw and c.vmem and c.ldsdma: n = max(n, 1)
    return n
class Asm:
    def __init__(s): s.lines = []; s.hist = []
    def raw(s, t): s.lines.append(t)
    def label(s, l): s.lines.append(l + ':')
    def __call__(s, text):
        for t in text.strip().split('\n'):
            t = t.strip()
            if not t or t.startswith(';'):
                if t: s.lines.append('    ' + t)
                continue
            if t.endswith(':'): s.label(t[:-1]); continue
            if t.startswith('.'): s.lines.append(t); continue
            c = Ins(t); dist = 0; pad = 0
            for p in reversed(s.hist[-24:]):
                pad = max(pad, need(p, c) - dist)
                dist += p.states()
                if dist > 20: break
            if pad > 0:
                nop = Ins('s_nop %d' % (pad - 1)); s.hist.append(nop); s.lines.append('    s_nop %d' % (pad - 1))
            s.hist.append(c); s.lines.append('    ' + t)
    def text(s): return '\n'.join(s.lines) + '\n'
```

```python
import sys, struct
from asmlib import Asm
NAME = 'recurrent_scan__sliding_block_cached__mixer_token_mlp__decode'
def f2h(x): return '0x%08x' % struct.unpack('<I', struct.pack('<f', x))[0]
import math
LOG2E = 1.4426950408889634
def gen(stamps=False, opt=None):
    opt = opt or {}
    NT = ' nt' if opt.get('nt') else ''
    A = Asm()
    WQ, KS, VS, WO = 0, 16384, 49152, 81920
    XN = 98304; QL = XN + 4352; SC = QL + 1280; RED = SC + 2048; HB = RED + 8192; GY = HB + 32
    LDS = GY + 256
    QR, OR_, SR, TS = 0x1000, 0x20000, 0x100000, 0x200000
    SPIN = 20000
    nst = [0]
    def STAMP(n):
        if stamps:
            A('s_memrealtime s[%d:%d]' % (64 + 2 * n, 65 + 2 * n))
    def DUMP():
        if stamps:
            A('s_waitcnt lgkmcnt(0)')
            A('s_getreg_b32 s62, hwreg(HW_REG_XCC_ID)')
            A('s_getreg_b32 s63, hwreg(HW_REG_HW_ID)')
            A('s_mov_b64 exec, -1')
            A('v_mov_b32 v100, 0')
            for n in range(14): A('v_writelane_b32 v100, s%d, %d' % (64 + 2 * n, n))
            A('v_writelane_b32 v100, s62, 14')
            A('v_writelane_b32 v100, s63, 15')
            A('s_lshl_b32 s60, s2, 4\ns_add_u32 s60, s60, s30\ns_lshl_b32 s60, s60, 6\ns_add_u32 s60, s60, %d' % TS)
            A('v_lshl_add_u32 v101, v0, 2, s60')
            A('s_mov_b64 exec, 0xffff')
            A('global_store_dword v101, v100, s[28:29]')
    def wave_sum(v, t):
        A(f'v_add_f32 {v}, {v}, {v} quad_perm:[1,0,3,2]')
        A(f'v_add_f32 {v}, {v}, {v} quad_perm:[2,3,0,1]')
        A(f'v_add_f32 {v}, {v}, {v} row_ror:4')
        A(f'v_add_f32 {v}, {v}, {v} row_ror:8')
        xrow(v, t, 'v_add_f32')
    def xrow(v, t, op):
        A(f'v_mov_b32 {t}, {v}')
        A(f'v_permlane16_swap_b32 {v}, {t}')
        A(f'{op} {v}, {v}, {t}')
        A(f'v_mov_b32 {t}, {v}')
        A(f'v_permlane32_swap_b32 {v}, {t}')
        A(f'{op} {v}, {v}, {t}')
    def rnd(d, s):
        A(f'v_cvt_pk_bf16_f32 {d}, {s}, {s}')
        A(f'v_lshlrev_b32 {d}, 16, {d}')
    A.raw(f'; @launch grid=(256,1,1) block=(576,1,1) lds={LDS}')
    A.raw('.amdgcn_target "amdgcn-amd-amdhsa--gfx950"\n.text')
    A.raw(f'.globl {NAME}_kernel\n.p2align 8\n.type {NAME}_kernel,@function\n{NAME}_kernel:')
    STAMP(0)
    A('''
    s_cmp_ge_u32 s2, 256
    s_cbranch_scc1 L_end
    s_load_dwordx16 s[4:19], s[0:1], 0
    s_load_dwordx8 s[20:27], s[0:1], 64
    s_load_dwordx2 s[28:29], s[0:1], 96
    v_lshrrev_b32 v1, 6, v0
    v_and_b32 v0, 63, v0
    v_readfirstlane_b32 s30, v1
    s_and_b32 s31, s2, 7
    s_lshr_b32 s32, s2, 3
    s_lshr_b32 s34, s2, 6
    s_and_b32 s35, s32, 7
    v_lshrrev_b32 v2, 4, v0        ; g
    v_and_b32 v3, 15, v0           ; n
    s_cmp_eq_u32 s30, 8
    s_cbranch_scc1 L_w8
    ''')
    A('''
    v_lshlrev_b32 v4, 4, v0        ; l*16
    s_lshl_b32 s36, s30, 10
    v_add_u32 v5, s36, v4          ; x offset: w*1024 + l*16
    v_lshrrev_b32 v6, 1, v5        ; w*512 + l*8
    s_lshl_b32 s37, s34, 3
    s_add_u32 s37, s37, s31
    s_lshl_b32 s37, s37, 20
    s_lshl_b32 s38, s35, 15
    s_add_u32 s37, s37, s38
    s_lshl_b32 s38, s30, 12        ; w*4096
    s_add_u32 s37, s37, s38
    s_add_u32 s37, s37, 0xc0000
    v_xor_b32 v7, v3, v2
    v_lshlrev_b32 v7, 4, v7
    v_lshl_add_u32 v7, v2, 8, v7
    v_add_u32 v7, s37, v7
    v_lshlrev_b32 v8, 1, v2
    v_xor_b32 v8, v3, v8
    v_lshlrev_b32 v8, 4, v8
    v_lshl_add_u32 v8, v2, 8, v8
    v_add_u32 v8, s37, v8
    v_xor_b32 v9, 128, v8
    s_lshl_b32 s39, s31, 2
    s_add_u32 s39, s39, s34
    s_lshl_b32 s40, s39, 17
    s_lshl_b32 s41, s30, 14
    s_add_u32 s40, s40, s41
    s_lshl_b32 s41, s35, 7
    s_add_u32 s40, s40, s41
    v_lshrrev_b32 v10, 3, v0
    v_lshlrev_b32 v10, 10, v10
    v_and_b32 v11, 7, v0
    v_lshl_add_u32 v10, v11, 4, v10
    v_add_u32 v10, s40, v10
    v_add_u32 v11, 8192, v10
    s_waitcnt lgkmcnt(0)
    ''')
    STAMP(1)
    A('''
    s_load_dword s33, s[28:29], 0
    s_cmp_ge_u32 s30, 4
    s_cbranch_scc1 L_nox
    global_load_dwordx4 v[12:15], v5, s[4:5]
    L_nox:
    s_cmp_eq_u32 s30, 7
    s_cbranch_scc1 L_now
    global_load_dwordx2 v[16:17], v6, s[16:17]
    global_load_dwordx2 v[18:19], v6, s[18:19]
    global_load_dwordx2 v[20:21], v6, s[20:21]
    L_now:
    s_barrier                      ; B0
    ''')
    A(f's_add_u32 m0, s38, {KS}')
    A(f's_nop 0')
    A(f'global_load_lds_dwordx4 v7, s[6:7]{NT}')
    A(f'v_xor_b32 v7, 64, v7')
    A(f'global_load_lds_dwordx4 v7, s[6:7] offset:1024{NT}')
    A(f'v_xor_b32 v7, 192, v7')
    A(f'global_load_lds_dwordx4 v7, s[6:7] offset:2048{NT}')
    A(f'v_xor_b32 v7, 64, v7')
    A(f'global_load_lds_dwordx4 v7, s[6:7] offset:3072{NT}')
    A(f's_add_u32 m0, s38, {VS}')
    A(f'global_load_lds_dwordx4 v8, s[8:9]{NT}')
    A(f'global_load_lds_dwordx4 v9, s[8:9] offset:1024{NT}')
    A(f'global_load_lds_dwordx4 v8, s[8:9] offset:2048{NT}')
    A(f'global_load_lds_dwordx4 v9, s[8:9] offset:3072{NT}')
    A(f's_lshl_b32 s41, s30, 11')
    A(f's_add_u32 m0, s41, {WO}')
    A(f'global_load_lds_dwordx4 v10, s[12:13]{NT}')
    A(f's_add_u32 m0, s41, {WO + 1024}')
    A(f'global_load_lds_dwordx4 v11, s[12:13]{NT}')
    STAMP(2)
    A('''
    s_cmp_ge_u32 s30, 4
    s_cbranch_scc1 L_noln
    s_waitcnt vmcnt(13)
    ''')
    STAMP(3)
    def ln_stats(a):
        A(f'v_add_f32 v40, {a[0]}, {a[1]}\nv_add_f32 v41, {a[2]}, {a[3]}\nv_add_f32 v42, {a[4]}, {a[5]}\nv_add_f32 v43, {a[6]}, {a[7]}')
        A('v_add_f32 v40, v40, v41\nv_add_f32 v42, v42, v43\nv_add_f32 v40, v40, v42')
        wave_sum('v40', 'v41')
        A(f'v_mul_f32 v40, {f2h(1/512)}, v40')
        A(f'v_sub_f32 v42, {a[0]}, v40\nv_sub_f32 v43, {a[1]}, v40\nv_mul_f32 v41, v42, v42\nv_mul_f32 v44, v43, v43')
        for j in range(2, 8, 2):
            A(f'v_sub_f32 v42, {a[j]}, v40\nv_sub_f32 v43, {a[j+1]}, v40\nv_fmac_f32 v41, v42, v42\nv_fmac_f32 v44, v43, v43')
        A('v_add_f32 v41, v41, v44')
        wave_sum('v41', 'v42')
        A(f'v_mul_f32 v41, {f2h(1/512)}, v41')
        rnd('v41', 'v41'); rnd('v40', 'v40')
        A(f'v_add_f32 v41, {f2h(1e-5)}, v41')
        rnd('v41', 'v41')
        A('v_sqrt_f32 v41, v41')
        rnd('v41', 'v41')
        A('v_rcp_f32 v41, v41')
    a = ['v%d' % (24 + j) for j in range(8)]
    def unpack(dst, src):
        for j, s_ in enumerate(src):
            A(f'v_lshlrev_b32 {dst[2*j]}, 16, {s_}\nv_and_b32 {dst[2*j+1]}, 0xffff0000, {s_}')
    unpack(a, ['v12', 'v13', 'v14', 'v15'])
    ln_stats(a)
    for j in range(8): A(f'v_sub_f32 {a[j]}, {a[j]}, v40')
    for j in range(4): A(f'v_cvt_pk_bf16_f32 v{12+j}, {a[2*j]}, {a[2*j+1]}')
    unpack(a, ['v12', 'v13', 'v14', 'v15'])
    for j in range(8): A(f'v_mul_f32 {a[j]}, {a[j]}, v41')
    for j in range(4): A(f'v_cvt_pk_bf16_f32 v{12+j}, {a[2*j]}, {a[2*j+1]}')
    A(f's_mul_i32 s42, s30, 1088\ns_add_u32 s42, s42, {XN}')
    A('v_add_u32 v45, s42, v4')
    A('ds_write_b128 v45, v[12:15]')
    A('s_lshl_b32 s43, s2, 2\ns_add_u32 s43, s43, s42\nv_mov_b32 v46, s43')
    A('ds_read_b32 v47, v46')
    unpack(a, ['v12', 'v13', 'v14', 'v15'])
    ln_stats(a)
    A('s_waitcnt lgkmcnt(0)')
    unpack(['v48', 'v49'], ['v47'])
    A('v_sub_f32 v48, v48, v40\nv_sub_f32 v49, v49, v40\nv_cvt_pk_bf16_f32 v47, v48, v49')
    unpack(['v48', 'v49'], ['v47'])
    A('v_mul_f32 v48, v48, v41\nv_mul_f32 v49, v49, v41\nv_cvt_pk_bf16_f32 v47, v48, v49')
    unpack(['v48', 'v49'], ['v47'])
    A(f's_lshl_b32 s43, s30, 2\ns_add_u32 s43, s43, {HB}\nv_mov_b32 v46, s43')
    A('s_mov_b64 exec, 1')
    A('ds_write2_b32 v46, v48, v49 offset0:0 offset1:4')
    A('s_mov_b64 exec, -1')
    A('s_waitcnt lgkmcnt(0)')
    A('L_noln:')
    STAMP(4)
    A('s_barrier                    ; B1')
    A('s_cmp_eq_u32 s30, 7\ns_cbranch_scc1 L_nogelu')
    A(f'v_mov_b32 v46, {HB}')
    A('ds_read_b128 v[24:27], v46\nds_read_b128 v[28:31], v46 offset:16')
    A('s_waitcnt vmcnt(10)')
    unpack(['v32', 'v33', 'v34', 'v35'], ['v16', 'v17'])
    unpack(['v36', 'v37', 'v38', 'v39'], ['v18', 'v19'])
    unpack(['v40', 'v41', 'v42', 'v43'], ['v20', 'v21'])
    c0 = math.sqrt(2 / math.pi)
    A(f's_mov_b32 s44, {f2h(-2 * c0 * 0.044715 * LOG2E)}\ns_mov_b32 s45, {f2h(-2 * c0 * LOG2E)}')
    A(f'v_mov_b32 v44, s45')
    A('s_waitcnt lgkmcnt(0)')
    for o in range(8):
        h = f'v{24+o}'; acc = f'v{64+o}'
        u = ['v%d' % (48 + j) for j in range(4)]; t = ['v%d' % (52 + j) for j in range(4)]
        for j in range(4): A(f'v_fma_f32 {u[j]}, {h}, v{32+j}, v{36+j}')
        for j in range(4): A(f'v_mul_f32 {t[j]}, {u[j]}, {u[j]}')
        for j in range(4): A(f'v_fma_f32 {t[j]}, {t[j]}, s44, v44')
        for j in range(4): A(f'v_mul_f32 {t[j]}, {t[j]}, {u[j]}')
        for j in range(4): A(f'v_exp_f32 {t[j]}, {t[j]}')
        for j in range(4): A(f'v_mul_f32 {u[j]}, {u[j]}, v{40+j}')
        for j in range(4): A(f'v_add_f32 {t[j]}, 1.0, {t[j]}')
        for j in range(4): A(f'v_rcp_f32 {t[j]}, {t[j]}')
        A(f'v_mul_f32 {acc}, {u[0]}, {t[0]}')
        for j in range(1, 4): A(f'v_fmac_f32 {acc}, {u[j]}, {t[j]}')
    for o in range(4): A(f'v_permlane32_swap_b32 v{64+o}, v{68+o}')
    for o in range(4): A(f'v_add_f32 v{64+o}, v{64+o}, v{68+o}')
    for o in range(2): A(f'v_permlane16_swap_b32 v{64+o}, v{66+o}')
    for o in range(2): A(f'v_add_f32 v{64+o}, v{64+o}, v{66+o}')
    for m in ('quad_perm:[1,0,3,2]', 'quad_perm:[2,3,0,1]', 'row_ror:4', 'row_ror:8'):
        for o in range(2): A(f'v_add_f32 v{64+o}, v{64+o}, v{64+o} {m}')
    A(f's_lshl_b32 s43, s30, 5\ns_add_u32 s43, s43, {GY}')
    A('v_lshl_add_u32 v46, v2, 3, s43')
    A('s_mov_b32 exec_lo, 0x00010001\ns_mov_b32 exec_hi, 0x00010001')
    A('ds_write_b64 v46, v[64:65]')
    A('s_mov_b64 exec, -1')
    A('L_nogelu:')
    STAMP(5)
    A(f's_add_u32 s43, s38, {KS}')
    A('v_xor_b32 v46, v2, v3\nv_lshlrev_b32 v46, 4, v46\nv_lshl_add_u32 v46, v3, 8, v46\nv_add_u32 v46, s43, v46')
    A('v_xor_b32 v47, 64, v46\nv_xor_b32 v48, 128, v46\nv_xor_b32 v49, 192, v46')
    A('v_and_b32 v50, 3, v0          ; h = n&3')
    A(f'v_mul_u32_u24 v51, 320, v50\nv_lshl_add_u32 v51, v2, 4, v51\nv_add_u32 v51, {QL}, v51')
    A('s_waitcnt vmcnt(6)')
    STAMP(6)
    for i in range(4): A(f'ds_read_b128 v[{16+4*i}:{19+4*i}], v{46+i}')
    A('s_waitcnt lgkmcnt(0)')
    A('s_barrier                    ; B2')
    STAMP(7)
    for i in range(4): A(f'ds_read_b128 v[{32+4*i}:{35+4*i}], v51 offset:{64*i}')
    A(f's_lshl_b32 s43, s30, 8\ns_add_u32 s43, s43, {SC}')
    A('v_lshl_add_u32 v52, v2, 2, v50\nv_lshlrev_b32 v52, 4, v52       ; (g*4+h)*16')
    A('v_add_u32 v53, s43, v52')
    A(f'v_lshrrev_b32 v54, 2, v3\nv_lshl_add_u32 v54, v54, 9, v52\nv_add_u32 v54, {SC}, v54')
    A('s_waitcnt lgkmcnt(0)')
    A('s_mul_i32 s33, s33, 1664525\ns_add_u32 s33, s33, 1013904223')
    A('v_mfma_f32_16x16x32_bf16 v[56:59], v[16:19], v[32:35], 0')
    for i in range(1, 4): A(f'v_mfma_f32_16x16x32_bf16 v[56:59], v[{16+4*i}:{19+4*i}], v[{32+4*i}:{35+4*i}], v[56:59]')
    A(f's_mov_b32 s44, {f2h(128 ** -0.5)}')
    A('v_cvt_pk_bf16_f32 v60, v56, v57\nv_cvt_pk_bf16_f32 v61, v58, v59')
    unpack(['v56', 'v57', 'v58', 'v59'], ['v60', 'v61'])
    for j in range(4): A(f'v_mul_f32 v{56+j}, s44, v{56+j}')
    A('v_cvt_pk_bf16_f32 v60, v56, v57\nv_cvt_pk_bf16_f32 v61, v58, v59')
    unpack(['v56', 'v57', 'v58', 'v59'], ['v60', 'v61'])
    A('s_mov_b32 s46, 0x000f000f\ns_mov_b32 s47, 0x000f000f')
    A('s_mov_b64 exec, s[46:47]')
    A('ds_write_b128 v53, v[56:59]')
    A('s_mov_b64 exec, -1')
    A('s_waitcnt lgkmcnt(0)')
    A('s_barrier                    ; B3')
    A('ds_read_b128 v[16:19], v54\nds_read_b128 v[20:23], v54 offset:256')
    A('v_lshrrev_b32 v60, 2, v0      ; 4g+r')
    A('v_and_b32 v61, 7, v60\nv_xor_b32 v61, s30, v61\nv_lshlrev_b32 v61, 5, v61')
    A('v_lshl_add_u32 v61, v60, 8, v61\nv_lshl_add_u32 v61, v50, 3, v61')
    A(f'v_add_u32 v61, {VS}, v61')
    A(f's_mov_b32 s44, {f2h(LOG2E)}')
    A('s_waitcnt lgkmcnt(0)')
    A('v_max3_f32 v24, v16, v17, v18\nv_max3_f32 v25, v19, v20, v21\nv_max3_f32 v24, v24, v22, v23\nv_max_f32 v24, v24, v25')
    A('v_max_f32 v24, v24, v24 row_ror:4\nv_max_f32 v24, v24, v24 row_ror:8')
    xrow('v24', 'v25', 'v_max_f32')
    for j in range(8): A(f'v_sub_f32 v{16+j}, v{16+j}, v24')
    for j in range(8): A(f'v_mul_f32 v{16+j}, s44, v{16+j}')
    for j in range(8): A(f'v_exp_f32 v{16+j}, v{16+j}')
    A('v_add_f32 v26, v16, v17\nv_add_f32 v27, v18, v19\nv_add_f32 v28, v20, v21\nv_add_f32 v29, v22, v23')
    A('v_add_f32 v26, v26, v27\nv_add_f32 v28, v28, v29\nv_add_f32 v26, v26, v28')
    A('v_add_f32 v26, v26, v26 row_ror:4\nv_add_f32 v26, v26, v26 row_ror:8')
    xrow('v26', 'v25', 'v_add_f32')
    A('v_rcp_f32 v27, v26\nv_log_f32 v26, v26')
    for j in range(8): A(f'v_mul_f32 v{16+j}, v{16+j}, v27')
    A('v_fma_f32 v70, v24, s44, v26')
    A('v_mov_b32 v71, s33')
    for j in range(4): A(f'v_cvt_pk_bf16_f32 v{32+j}, v{16+2*j}, v{17+2*j}')
    for k in range(1, 4):
        for j in range(4): A(f'v_mov_b32 v{32+4*k+j}, v{32+j} row_ror:{16-4*k}')
    A(f's_lshl_b32 s43, s31, 16\ns_lshl_b32 s45, s32, 9\ns_add_u32 s43, s43, s45\ns_lshl_b32 s45, s30, 6\ns_add_u32 s43, s43, s45\ns_add_u32 s43, s43, {OR_}')
    A('v_lshlrev_b32 v62, 14, v50\nv_lshl_add_u32 v62, v2, 4, v62\nv_add_u32 v62, s43, v62')
    A(f's_lshl_b32 s43, s39, 14\ns_add_u32 s43, s43, s45\ns_add_u32 s43, s43, {OR_}')
    A('v_lshlrev_b32 v63, 12, v50\nv_lshrrev_b32 v64, 2, v3\nv_lshl_add_u32 v63, v64, 10, v63\nv_lshl_add_u32 v63, v2, 4, v63\nv_add_u32 v63, s43, v63')
    A(f's_add_u32 s43, s41, {WO}')
    A('v_lshlrev_b32 v65, 7, v60\nv_lshl_add_u32 v65, v50, 3, v65\nv_add_u32 v65, s43, v65')
    STAMP(8)
    A('s_waitcnt vmcnt(2)')
    STAMP(9)
    A('s_barrier                    ; B4')
    for e in range(8): A(f'ds_read_b64_tr_b16 v[{72+2*e}:{73+2*e}], v61 offset:{4096*e}')
    for k in range(4):
        A(f's_waitcnt lgkmcnt({0 if stamps else 6-2*k})')
        A(f'v_mfma_f32_16x16x32_bf16 v[56:59], v[{72+4*k}:{75+4*k}], v[{32+4*k}:{35+4*k}], ' + ('0' if k == 0 else 'v[56:59]'))
    A('s_mov_b64 exec, s[46:47]')
    A('v_cvt_pk_bf16_f32 v68, v56, v57\nv_cvt_pk_bf16_f32 v69, v58, v59')
    A('global_store_dwordx4 v62, v[68:71], s[28:29] sc1')
    A('s_mov_b64 exec, -1')
    STAMP(10)
    A('s_waitcnt vmcnt(1)')
    for t in range(4): A(f'ds_read_b64_tr_b16 v[{72+2*t}:{73+2*t}], v65 offset:{32*t}')
    A(f's_movk_i32 s43, {SPIN}')
    A('s_lshl_b64 s[48:49], s[46:47], 4\ns_lshl_b64 s[50:51], s[46:47], 8\ns_lshl_b64 s[52:53], s[46:47], 12')
    A('L_pollo:')
    A('global_load_dwordx4 v[16:19], v63, s[28:29] sc1')
    A('global_load_dwordx4 v[20:23], v63, s[28:29] offset:512 sc1')
    A('s_sub_u32 s43, s43, 1\ns_cbranch_scc1 L_pollo_done')
    A('s_waitcnt vmcnt(0)')
    A('v_cmp_ne_u32 vcc, s33, v19\nv_cmp_ne_u32 s[54:55], s33, v23\ns_or_b64 vcc, vcc, s[54:55]\ns_cbranch_vccnz L_pollo')
    A('L_pollo_done:')
    A('s_waitcnt vmcnt(0)')
    STAMP(11)
    A('v_max_f32 v24, v18, v22')
    unpack(['v32', 'v33', 'v34', 'v35'], ['v16', 'v17'])
    A('v_max_f32 v24, v24, v24 row_ror:4')
    unpack(['v36', 'v37', 'v38', 'v39'], ['v20', 'v21'])
    A('v_max_f32 v24, v24, v24 row_ror:8')
    A('v_sub_f32 v18, v18, v24\nv_sub_f32 v22, v22, v24\nv_exp_f32 v18, v18\nv_exp_f32 v22, v22')
    for j in range(4): A(f'v_mul_f32 v{32+j}, v{32+j}, v18')
    A('v_add_f32 v40, v18, v22')
    for j in range(4): A(f'v_fmac_f32 v{32+j}, v{36+j}, v22')
    for m in ('row_ror:4', 'row_ror:8'):
        for r in (40, 32, 33, 34, 35): A(f'v_add_f32 v{r}, v{r}, v{r} {m}')
    A('v_rcp_f32 v40, v40')
    for j in range(4): A(f'v_mul_f32 v{32+j}, v{32+j}, v40')
    A('v_cvt_pk_bf16_f32 v36, v32, v33\nv_cvt_pk_bf16_f32 v37, v34, v35')
    for t in range(4):
        A(f'v_cndmask_b32 v{40+2*t}, 0, v36, s[{46+2*t}:{47+2*t}]\nv_cndmask_b32 v{41+2*t}, 0, v37, s[{46+2*t}:{47+2*t}]')
    A(f's_add_u32 s43, s36, {RED}')
    A('v_add_u32 v66, s43, v4')
    A('s_waitcnt lgkmcnt(0)')
    for t in range(4):
        A(f'v_mfma_f32_16x16x16_bf16 v[56:59], v[{40+2*t}:{41+2*t}], v[{72+2*t}:{73+2*t}], ' + ('0' if t == 0 else 'v[56:59]'))
    A('ds_write_b128 v66, v[56:59]')
    A(f'v_add_u32 v66, {RED}, v6')
    A(f's_lshl_b32 s43, s35, 16\ns_lshl_b32 s45, s30, 15\ns_add_u32 s43, s43, s45\ns_lshl_b32 s45, s39, 6\ns_add_u32 s43, s43, s45\ns_add_u32 s43, s43, {SR}')
    A('v_lshlrev_b32 v67, 11, v60\nv_lshl_add_u32 v67, v50, 4, v67\nv_add_u32 v67, s43, v67')
    A('s_waitcnt lgkmcnt(0)')
    A('s_barrier                    ; B5')
    A('s_cmp_ge_u32 s30, 2\ns_cbranch_scc1 L_fin')
    for w in range(8): A(f'ds_read_b64 v[{16+2*w}:{17+2*w}], v66 offset:{1024*w}')
    A('v_mov_b32 v70, s33')
    A('s_waitcnt lgkmcnt(0)')
    for st in (2, 4, 8):
        for b in range(0, 16, 2 * st):
            A(f'v_add_f32 v{16+b}, v{16+b}, v{16+b+st}\nv_add_f32 v{17+b}, v{17+b}, v{17+b+st}')
    A('v_mov_b32 v68, v16\nv_mov_b32 v69, v17')
    A('global_store_dwordx4 v67, v[68:71], s[28:29] sc1')
    A('L_fin:')
    STAMP(12)
    DUMP()
    A('s_endpgm')
    A('L_w8:')
    A('''
    v_lshrrev_b32 v4, 1, v0        ; pos
    v_bfe_u32 v5, v4, 2, 2
    v_lshlrev_b32 v5, 3, v5
    v_lshrrev_b32 v6, 4, v4
    v_lshl_add_u32 v5, v6, 2, v5
    v_and_b32 v6, 3, v4
    v_add_u32 v5, v5, v6           ; k
    v_lshlrev_b32 v5, 13, v5
    v_and_b32 v6, 1, v0
    v_lshl_add_u32 v5, v6, 4, v5
    s_lshl_b32 s36, s31, 10
    s_lshl_b32 s37, s32, 5
    s_add_u32 s36, s36, s37
    v_add_u32 v5, s36, v5          ; wq dma offset
    ; x/out element offset: (2bp)*1024 + (2f+c1)*2
    v_lshlrev_b32 v7, 11, v6
    v_and_b32 v8, 2, v0
    s_lshl_b32 s37, s2, 2
    v_add3_u32 v7, v7, v8, s37
    s_mov_b32 m0, %d
    s_waitcnt lgkmcnt(0)
    ''' % WQ)
    STAMP(1)
    A('s_load_dword s33, s[28:29], 0')
    A('s_load_dword s38, s[22:23], 0')
    for c in range(16):
        A('global_load_lds_dwordx4 v5, s[10:11]')
        if c < 15: A('s_add_u32 m0, m0, 1024\nv_add_u32 v5, 0x40000, v5')
    A('global_load_ushort v9, v7, s[4:5]\nglobal_load_ushort v10, v7, s[4:5] offset:1024')
    STAMP(2)
    A('s_barrier                    ; B0')
    A('v_and_b32 v50, 3, v0')
    A(f'v_mul_u32_u24 v11, 1088, v50\nv_lshl_add_u32 v11, v2, 4, v11\nv_add_u32 v11, {XN}, v11')
    A(f'v_lshlrev_b32 v12, 3, v0')
    A(f's_lshl_b32 s36, s31, 13\ns_lshl_b32 s37, s32, 6\ns_add_u32 s37, s36, s37\ns_add_u32 s37, s37, {QR}')
    A('v_lshlrev_b32 v13, 11, v50\nv_lshl_add_u32 v13, v2, 4, v13\nv_add_u32 v13, s37, v13')
    A(f's_lshl_b32 s37, s34, 11\ns_add_u32 s37, s36, s37\ns_add_u32 s37, s37, {QR}')
    A('v_lshl_add_u32 v14, v0, 4, s37')
    A(f'v_lshrrev_b32 v15, 5, v0\nv_lshlrev_b32 v15, 6, v15\nv_add3_u32 v15, v15, v12, v12\nv_sub_u32 v15, v15, v12\nv_add_u32 v15, {QL}, v15')
    A('s_barrier                    ; B1')
    STAMP(4)
    for c in range(16): A(f'ds_read_b128 v[{64+4*c}:{67+4*c}], v11 offset:{64*c}')
    A('s_waitcnt lgkmcnt(0)')
    A('s_mul_i32 s33, s33, 1664525\ns_add_u32 s33, s33, 1013904223')
    A('v_mov_b32 v26, s33\nv_mov_b32 v27, s33')
    for grp in range(4):
        A(f's_waitcnt vmcnt({14 - 4*grp})')
        if grp == 0: STAMP(5)
        if grp == 3: STAMP(6)
        for c in range(4):
            for e in range(2):
                A(f'ds_read_b64_tr_b16 v[{32+4*c+2*e}:{33+4*c+2*e}], v12 offset:{WQ + 1024*(4*grp+c) + 512*e}')
        for c in range(4):
            A(f's_waitcnt lgkmcnt({0 if stamps else 6-2*c})')
            cc = 4 * grp + c
            A(f'v_mfma_f32_16x16x32_bf16 v[16:19], v[{32+4*c}:{35+4*c}], v[{64+4*cc}:{67+4*cc}], ' + ('0' if cc == 0 else 'v[16:19]'))
        if grp < 3: A('s_nop 7')
    A('s_mov_b32 s46, 0x000f000f\ns_mov_b32 s47, 0x000f000f')
    A('s_mov_b64 exec, s[46:47]')
    A('v_cvt_pk_bf16_f32 v24, v16, v17\nv_cvt_pk_bf16_f32 v25, v18, v19')
    A('global_store_dwordx4 v13, v[24:27], s[28:29] sc1')
    A('s_mov_b64 exec, -1')
    STAMP(7)
    A(f's_movk_i32 s43, {SPIN}')
    A('L_pollq:')
    A('global_load_dwordx4 v[16:19], v14, s[28:29] sc1')
    A('global_load_dwordx4 v[20:23], v14, s[28:29] offset:1024 sc1')
    A('s_sub_u32 s43, s43, 1\ns_cbranch_scc1 L_pollq_done')
    A('s_waitcnt vmcnt(0)')
    A('v_cmp_ne_u32 vcc, s33, v19\nv_cmp_ne_u32 s[54:55], s33, v23\ns_or_b64 vcc, vcc, s[54:55]\ns_cbranch_vccnz L_pollq')
    A('L_pollq_done:')
    A('s_waitcnt vmcnt(0)')
    if stamps: A('s_mov_b32 s90, s43')
    A('ds_write_b64 v15, v[16:17]\nds_write_b64 v15, v[20:21] offset:640')
    STAMP(8)
    A('s_waitcnt lgkmcnt(0)')
    A('s_barrier                    ; B2')
    A(f'v_lshlrev_b32 v11, 3, v50\nv_add_u32 v11, {GY}, v11')
    for w in range(7): A(f'ds_read_b64 v[{16+2*w}:{17+2*w}], v11 offset:{32*w}')
    A(f's_lshl_b32 s37, s2, 11\ns_add_u32 s37, s37, {SR}')
    A('v_lshl_add_u32 v14, v0, 4, s37')
    A('s_lshl_b32 s38, s38, 16')
    A('s_waitcnt lgkmcnt(0)')
    for w in range(1, 7): A(f'v_add_f32 v16, v16, v{16+2*w}\nv_add_f32 v17, v17, v{17+2*w}')
    A('v_cvt_pk_bf16_f32 v18, v16, v17')
    unpack(['v16', 'v17'], ['v18'])
    A('v_add_f32 v16, s38, v16\nv_add_f32 v17, s38, v17\nv_cvt_pk_bf16_f32 v18, v16, v17')
    unpack(['v16', 'v17'], ['v18'])
    A(f'v_mul_f32 v18, {f2h(-LOG2E)}, v16\nv_mul_f32 v19, {f2h(-LOG2E)}, v17')
    A('v_exp_f32 v18, v18\nv_exp_f32 v19, v19\nv_add_f32 v18, 1.0, v18\nv_add_f32 v19, 1.0, v19\nv_rcp_f32 v18, v18\nv_rcp_f32 v19, v19')
    A('v_mul_f32 v16, v16, v18\nv_mul_f32 v17, v17, v19\nv_cvt_pk_bf16_f32 v18, v16, v17')
    unpack(['v30', 'v31'], ['v18'])
    A('v_lshlrev_b32 v9, 16, v9\nv_lshlrev_b32 v10, 16, v10')
    A('s_barrier                    ; B3')
    A('s_barrier                    ; B4')
    A('s_barrier                    ; B5')
    STAMP(10)
    A(f's_movk_i32 s43, {SPIN}')
    A('L_polls:')
    A('global_load_dwordx4 v[16:19], v14, s[28:29] sc1')
    A('global_load_dwordx4 v[20:23], v14, s[28:29] offset:1024 sc1')
    A('s_sub_u32 s43, s43, 1\ns_cbranch_scc1 L_polls_done')
    A('s_waitcnt vmcnt(0)')
    A('v_cmp_ne_u32 vcc, s33, v19\nv_cmp_ne_u32 s[54:55], s33, v23\ns_or_b64 vcc, vcc, s[54:55]\ns_cbranch_vccnz L_polls')
    A('L_polls_done:')
    A('s_waitcnt vmcnt(0)')
    STAMP(11)
    A('v_add_f32 v16, v16, v20\nv_add_f32 v17, v17, v21')
    for m in ('row_ror:4', 'row_ror:8'):
        A(f'v_add_f32 v16, v16, v16 {m}\nv_add_f32 v17, v17, v17 {m}')
    A('v_mov_b32 v18, v16\nv_mov_b32 v19, v17\nv_permlane16_swap_b32 v16, v18\nv_permlane16_swap_b32 v17, v19\nv_add_f32 v16, v16, v18\nv_add_f32 v17, v17, v19')
    A('v_mov_b32 v18, v16\nv_mov_b32 v19, v17\nv_permlane32_swap_b32 v16, v18\nv_permlane32_swap_b32 v17, v19\nv_add_f32 v16, v16, v18\nv_add_f32 v17, v17, v19')
    A('v_cvt_pk_bf16_f32 v18, v16, v17')
    unpack(['v16', 'v17'], ['v18'])
    A('v_mul_f32 v16, v16, v30\nv_mul_f32 v17, v17, v31\nv_cvt_pk_bf16_f32 v18, v16, v17')
    unpack(['v16', 'v17'], ['v18'])
    A('v_add_f32 v16, v16, v9\nv_add_f32 v17, v17, v10\nv_cvt_pk_bf16_f32 v18, v16, v17')
    A('s_mov_b64 exec, 15')
    A('global_store_short v7, v18, s[24:25]\nglobal_store_short_d16_hi v7, v18, s[24:25] offset:1024')
    A('s_cmp_lg_u32 s2, 0\ns_cbranch_scc1 L_fin8')
    A('s_mov_b64 exec, 1\nv_mov_b32 v20, 0\nv_mov_b32 v21, s33')
    A('global_store_dword v20, v21, s[28:29]')
    A('L_fin8:')
    STAMP(12)
    DUMP()
    A('L_end:')
    A('s_endpgm')
    A.raw(f'''.section .rodata,"a"
.p2align 6
.amdhsa_kernel {NAME}_kernel
  .amdhsa_next_free_vgpr 128
  .amdhsa_next_free_sgpr 96
  .amdhsa_accum_offset 128
  .amdhsa_group_segment_fixed_size 0
  .amdhsa_kernarg_size 104
  .amdhsa_user_sgpr_count 2
  .amdhsa_user_sgpr_kernarg_segment_ptr 1
  .amdhsa_system_sgpr_workgroup_id_x 1
.end_amdhsa_kernel''')
    return A.text()
if __name__ == '__main__':
    out = sys.argv[1]; stamps = 'stamps' in sys.argv[2:]
    opt = {k: True for k in sys.argv[2:]}
    open(out, 'w').write(gen(stamps, opt))
```

```python
import sys, struct, math
from asmlib import Asm
NAME = 'recurrent_scan__sliding_block_cached__mixer_token_mlp__decode'
def f2h(x): return '0x%08x' % struct.unpack('<I', struct.pack('<f', x))[0]
LOG2E = 1.4426950408889634
def gen(stamps=False, opt=None):
    opt = opt or {}
    NT = ' nt' if opt.get('nt') else ''
    A = Asm()
    WQ, KS, VS, WO = 0, 16384, 49152, 81920
    XN = 98304; QL = XN + 4352; SC = QL + 1280; OL = SC + 2048; HB = OL + 1280; GY = HB + 32
    LDS = GY + 256
    QR, OR_, SR, TS = 0x1000, 0x20000, 0x100000, 0x200000
    SPIN = 20000
    diag = opt.get('diag')
    cur = {'w8': False}
    def STAMP(n):
        if stamps: A('s_memrealtime s[%d:%d]' % (64 + 2 * n, 65 + 2 * n))
        if diag and diag[1] == n and ((diag[0] == 8) == cur['w8'] or n == 0): A('s_memrealtime s[92:93]')
    def DIAG(lbl):
        if diag and ((diag[0] == 8) == cur['w8']):
            A(f's_cmp_lg_u32 s30, {diag[0]}\ns_cbranch_scc1 {lbl}_x')
            if not opt.get('dall'): A(f's_cmp_lg_u32 s2, 0\ns_cbranch_scc1 {lbl}_x')
            A(f'{lbl}:\ns_memrealtime s[94:95]\ns_waitcnt lgkmcnt(0)\ns_sub_u32 s94, s94, s92\ns_cmp_lt_u32 s94, 4000\ns_cbranch_scc1 {lbl}\n{lbl}_x:')
    def LG(n): A(f's_waitcnt lgkmcnt({0 if (stamps or diag) else n})')
    def DUMP():
        if stamps:
            A('s_waitcnt lgkmcnt(0)\ns_getreg_b32 s62, hwreg(HW_REG_XCC_ID)\ns_mov_b64 exec, -1\nv_mov_b32 v100, 0')
            for n in range(14): A('v_writelane_b32 v100, s%d, %d' % (64 + 2 * n, n))
            A('v_writelane_b32 v100, s62, 14')
            A('s_lshl_b32 s60, s2, 4\ns_add_u32 s60, s60, s30\ns_lshl_b32 s60, s60, 6\ns_add_u32 s60, s60, %d' % TS)
            A('v_lshl_add_u32 v101, v0, 2, s60\ns_mov_b64 exec, 0xffff\nglobal_store_dword v101, v100, s[28:29]')
    def xrow(v, t, op):
        A(f'v_mov_b32 {t}, {v}\nv_permlane16_swap_b32 {v}, {t}\n{op} {v}, {v}, {t}')
        A(f'v_mov_b32 {t}, {v}\nv_permlane32_swap_b32 {v}, {t}\n{op} {v}, {v}, {t}')
    def wave_sum(v, t):
        for m in ('quad_perm:[1,0,3,2]', 'quad_perm:[2,3,0,1]', 'row_ror:4', 'row_ror:8'): A(f'v_add_f32 {v}, {v}, {v} {m}')
        xrow(v, t, 'v_add_f32')
    def rnd(d, s): A(f'v_cvt_pk_bf16_f32 {d}, {s}, {s}\nv_lshlrev_b32 {d}, 16, {d}')
    def unpack(dst, src):
        for j, s_ in enumerate(src): A(f'v_lshlrev_b32 {dst[2*j]}, 16, {s_}\nv_and_b32 {dst[2*j+1]}, 0xffff0000, {s_}')
    def poll(lbl, addr, n, step):
        A(f's_movk_i32 s43, {SPIN}')
        if opt.get('wst'): A('s_waitcnt vmcnt(0)')
        A(f'{lbl}:')
        for e in range(n): A(f'global_load_dwordx4 v[{16+4*e}:{19+4*e}], {addr}, s[28:29] offset:{step*e} sc1')
        A(f's_sub_u32 s43, s43, 1\ns_cbranch_scc1 {lbl}_done')
        A('s_waitcnt vmcnt(0)')
        if n == 2: A('v_cmp_ne_u32 vcc, s33, v19\nv_cmp_ne_u32 s[54:55], s33, v23\ns_or_b64 vcc, vcc, s[54:55]')
        else:
            A('v_xor_b32 v19, s33, v19\nv_xor_b32 v23, s33, v23\nv_xor_b32 v27, s33, v27\nv_xor_b32 v31, s33, v31')
            A('v_or3_b32 v19, v19, v23, v27\nv_or_b32 v19, v19, v31\nv_cmp_ne_u32 vcc, 0, v19')
        A(f's_cbranch_vccnz {lbl}')
        A(f'{lbl}_done:\ns_waitcnt vmcnt(0)')
    A.raw(f'; @launch grid=(256,1,1) block=(576,1,1) lds={LDS}')
    A.raw('.amdgcn_target "amdgcn-amd-amdhsa--gfx950"\n.text')
    A.raw(f'.globl {NAME}_kernel\n.p2align 8\n.type {NAME}_kernel,@function\n{NAME}_kernel:')
    STAMP(0)
    A('''
    s_load_dwordx16 s[4:19], s[0:1], 0
    s_load_dwordx8 s[20:27], s[0:1], 64
    s_load_dwordx2 s[28:29], s[0:1], 96
    s_cmp_ge_u32 s2, 256
    s_cbranch_scc1 L_end
    v_lshrrev_b32 v1, 6, v0
    v_and_b32 v0, 63, v0
    v_readfirstlane_b32 s30, v1
    s_and_b32 s31, s2, 7
    s_lshr_b32 s32, s2, 3
    s_lshr_b32 s34, s2, 6
    s_and_b32 s35, s32, 7
    v_lshrrev_b32 v2, 4, v0        ; g
    v_and_b32 v3, 15, v0           ; n
    v_and_b32 v50, 3, v0
    s_xor_b32 s58, s31, 1
    s_lshl_b32 s59, s31, 5
    s_add_u32 s59, s59, s32
    s_cmp_lg_u32 s30, 8
    s_cbranch_scc1 L_main
    ''')
    cur['w8'] = True
    A('''
    s_setprio 3
    v_lshrrev_b32 v4, 1, v0        ; pos
    v_bfe_u32 v5, v4, 2, 2
    v_lshlrev_b32 v5, 3, v5
    v_lshrrev_b32 v6, 4, v4
    v_lshl_add_u32 v5, v6, 2, v5
    v_and_b32 v6, 3, v4
    v_add_u32 v5, v5, v6           ; k
    v_lshlrev_b32 v5, 13, v5
    v_and_b32 v6, 1, v0
    v_lshl_add_u32 v5, v6, 4, v5
    s_lshl_b32 s36, s58, 10
    s_lshl_b32 s37, s32, 5
    s_add_u32 s36, s36, s37
    v_add_u32 v5, s36, v5          ; wq dma offset
    s_lshl_b32 s37, s59, 2
    v_lshl_add_u32 v7, v50, 10, s37   ; x/out offset: b*1024 + f*4
    s_mov_b32 m0, %d
    s_waitcnt lgkmcnt(0)
    ''' % WQ)
    STAMP(1)
    for c in range(16):
        A('global_load_lds_dwordx4 v5, s[10:11]')
        if c < 15: A('s_add_u32 m0, m0, 1024\nv_add_u32 v5, 0x40000, v5')
    STAMP(2)
    A('s_barrier                    ; B0')
    A('s_load_dword s33, s[28:29], 0')
    A('s_load_dword s38, s[22:23], 0')
    A(f'v_mul_u32_u24 v11, 1088, v50\nv_lshl_add_u32 v11, v2, 4, v11\nv_add_u32 v11, {XN}, v11')
    A(f'v_lshlrev_b32 v12, 3, v0')
    A(f's_lshl_b32 s36, s58, 13\ns_lshl_b32 s37, s32, 6\ns_add_u32 s37, s36, s37\ns_add_u32 s37, s37, {QR}')
    A('v_lshlrev_b32 v13, 11, v50\nv_lshl_add_u32 v13, v2, 4, v13\nv_add_u32 v13, s37, v13')
    A(f's_lshl_b32 s36, s31, 13\ns_lshl_b32 s37, s34, 11\ns_add_u32 s37, s36, s37\ns_add_u32 s37, s37, {QR}')
    A('v_lshl_add_u32 v14, v0, 4, s37')
    A(f'v_lshrrev_b32 v15, 5, v0\nv_lshl_add_u32 v15, v15, 6, v12\nv_add_u32 v15, {QL}, v15')
    A('s_mov_b32 s46, 0x000f000f\ns_mov_b32 s47, 0x000f000f')
    A('s_barrier                    ; B1')
    STAMP(4)
    for c in range(16): A(f'ds_read_b128 v[{64+4*c}:{67+4*c}], v11 offset:{64*c}')
    A('s_waitcnt lgkmcnt(0)')
    A('s_mul_i32 s33, s33, 1664525\ns_add_u32 s33, s33, 1013904223')
    A('v_mov_b32 v26, s33\nv_mov_b32 v27, s33')
    for grp in range(4):
        A(f's_waitcnt vmcnt({12 - 4*grp})')
        if grp == 0: STAMP(5)
        if grp == 3: STAMP(6)
        rb = 32 + 16 * (grp & 1)
        for c in range(4):
            for e in range(2):
                A(f'ds_read_b64_tr_b16 v[{rb+4*c+2*e}:{rb+1+4*c+2*e}], v12 offset:{WQ + 1024*(4*grp+c) + 512*e}')
        for c in range(4):
            LG(6 - 2 * c)
            cc = 4 * grp + c
            A(f'v_mfma_f32_16x16x32_bf16 v[16:19], v[{rb+4*c}:{rb+3+4*c}], v[{64+4*cc}:{67+4*cc}], ' + ('0' if cc == 0 else 'v[16:19]'))
    A('s_mov_b64 exec, s[46:47]')
    A('v_cvt_pk_bf16_f32 v24, v16, v17\nv_cvt_pk_bf16_f32 v25, v18, v19')
    A('global_store_dwordx4 v13, v[24:27], s[28:29] sc1')
    A('s_mov_b64 exec, -1')
    STAMP(7)
    A('global_load_dword v9, v7, s[4:5]')
    poll('L_pollq', 'v14', 2, 1024)
    if stamps: A('s_mov_b32 s90, s43')
    A('ds_write_b64 v15, v[16:17]\nds_write_b64 v15, v[20:21] offset:640')
    STAMP(8)
    A('v_and_b32 v50, 3, v0')
    A('s_waitcnt lgkmcnt(0)')
    A('s_barrier                    ; B2')
    A(f'v_lshlrev_b32 v11, 3, v50\nv_add_u32 v11, {GY}, v11')
    for w in range(7): A(f'ds_read_b64 v[{16+2*w}:{17+2*w}], v11 offset:{32*w}')
    A('s_barrier                    ; B3')
    A('s_setprio 0')
    A(f's_lshl_b32 s37, s59, 11\ns_add_u32 s37, s37, {SR}')
    A('v_lshl_add_u32 v14, v0, 4, s37')
    A('s_lshl_b32 s38, s38, 16')
    A('s_waitcnt lgkmcnt(0)')
    for w in range(1, 7): A(f'v_add_f32 v16, v16, v{16+2*w}\nv_add_f32 v17, v17, v{17+2*w}')
    A('v_cvt_pk_bf16_f32 v18, v16, v17')
    unpack(['v16', 'v17'], ['v18'])
    A('v_add_f32 v16, s38, v16\nv_add_f32 v17, s38, v17\nv_cvt_pk_bf16_f32 v18, v16, v17')
    unpack(['v16', 'v17'], ['v18'])
    A(f'v_mul_f32 v18, {f2h(-LOG2E)}, v16\nv_mul_f32 v19, {f2h(-LOG2E)}, v17')
    A('v_exp_f32 v18, v18\nv_exp_f32 v19, v19\nv_add_f32 v18, 1.0, v18\nv_add_f32 v19, 1.0, v19\nv_rcp_f32 v18, v18\nv_rcp_f32 v19, v19')
    A('v_mul_f32 v16, v16, v18\nv_mul_f32 v17, v17, v19\nv_cvt_pk_bf16_f32 v18, v16, v17')
    unpack(['v30', 'v31'], ['v18'])
    unpack(['v8', 'v10'], ['v9'])
    A('s_barrier                    ; B4')
    A('s_barrier                    ; B5')
    STAMP(10)
    poll('L_polls', 'v14', 2, 1024)
    STAMP(11)
    A('v_add_f32 v16, v16, v20\nv_add_f32 v17, v17, v21')
    for m in ('row_ror:4', 'row_ror:8'):
        A(f'v_add_f32 v16, v16, v16 {m}\nv_add_f32 v17, v17, v17 {m}')
    A('v_mov_b32 v18, v16\nv_mov_b32 v19, v17\nv_permlane16_swap_b32 v16, v18\nv_permlane16_swap_b32 v17, v19\nv_add_f32 v16, v16, v18\nv_add_f32 v17, v17, v19')
    A('v_mov_b32 v18, v16\nv_mov_b32 v19, v17\nv_permlane32_swap_b32 v16, v18\nv_permlane32_swap_b32 v17, v19\nv_add_f32 v16, v16, v18\nv_add_f32 v17, v17, v19')
    A('v_cvt_pk_bf16_f32 v18, v16, v17')
    unpack(['v16', 'v17'], ['v18'])
    A('v_mul_f32 v16, v16, v30\nv_mul_f32 v17, v17, v31\nv_cvt_pk_bf16_f32 v18, v16, v17')
    unpack(['v16', 'v17'], ['v18'])
    A('v_add_f32 v16, v16, v8\nv_add_f32 v17, v17, v10\nv_cvt_pk_bf16_f32 v18, v16, v17')
    A('s_mov_b64 exec, 15')
    A('global_store_dword v7, v18, s[24:25]')
    A('s_cmp_lg_u32 s2, 0\ns_cbranch_scc1 L_fin8')
    A('s_mov_b64 exec, 1\nv_mov_b32 v20, 0\nv_mov_b32 v21, s33')
    A('global_store_dword v20, v21, s[28:29]')
    A('L_fin8:')
    STAMP(12)
    DUMP(); DIAG('L_dg8')
    A('L_end:')
    A('s_endpgm')
    cur['w8'] = False
    A('L_main:')
    if opt.get('pf'):
        A('s_cmp_lg_u32 s30, 6\ns_cbranch_scc1 L_nopf')
        A(f's_getpc_b64 s[56:57]\nL_pc:\ns_sub_u32 s56, s56, L_pc-{NAME}_kernel\ns_subb_u32 s57, s57, 0\nv_lshlrev_b32 v4, 7, v0\nv_min_u32 v4, L_cend-{NAME}_kernel, v4')
        A('global_load_dword v12, v4, s[56:57]')
        A('L_nopf:')
    A('''
    v_lshlrev_b32 v4, 4, v0        ; l*16
    s_lshl_b32 s36, s30, 10
    v_add_u32 v5, s36, v4          ; x offset: w*1024 + l*16
    v_lshrrev_b32 v6, 1, v5        ; w*512 + l*8
    ; K/V base offset: ((b*8+kvh)*4096 + 3072 + 128*split)*256
    s_lshl_b32 s37, s34, 3
    s_add_u32 s37, s37, s31
    s_lshl_b32 s37, s37, 20
    s_lshl_b32 s38, s35, 15
    s_add_u32 s37, s37, s38
    s_add_u32 s37, s37, 0xc0000
    s_lshl_b32 s38, s30, 12        ; w*4096
    s_add_u32 s40, s37, s38
    v_xor_b32 v7, v3, v2
    v_lshlrev_b32 v7, 4, v7
    v_lshl_add_u32 v7, v2, 8, v7
    v_add_u32 v7, s40, v7          ; K dma offset (a=0)
    s_xor_b32 s39, s31, 2
    s_xor_b32 s61, s31, 3
    s_cmp_eq_u32 s35, s31
    s_cselect_b32 s39, s39, s58
    s_cselect_b32 s61, s61, s35    ; c_o
    s_lshl_b32 s39, s39, 2
    s_add_u32 s39, s39, s34        ; h_o = k_o*4 + hl
    s_add_u32 m0, s38, %d
    s_waitcnt lgkmcnt(0)
    ''' % KS)
    STAMP(1)
    A('''
    s_load_dword s33, s[28:29], 0
    s_cmp_ge_u32 s30, 4
    s_cbranch_scc1 L_nox
    global_load_dwordx4 v[12:15], v5, s[4:5]
    L_nox:
    s_cmp_eq_u32 s30, 7
    s_cbranch_scc1 L_now
    global_load_dwordx2 v[16:17], v6, s[16:17]
    global_load_dwordx2 v[18:19], v6, s[18:19]
    global_load_dwordx2 v[20:21], v6, s[20:21]
    L_now:
    s_barrier                      ; B0
    ''')
    def kload():
        A(f'global_load_lds_dwordx4 v7, s[6:7]{NT}')
        A(f'v_xor_b32 v7, 64, v7')
        A(f'global_load_lds_dwordx4 v7, s[6:7] offset:1024{NT}')
        A(f'v_xor_b32 v7, 192, v7')
        A(f'global_load_lds_dwordx4 v7, s[6:7] offset:2048{NT}')
        A(f'v_xor_b32 v7, 64, v7')
        A(f'global_load_lds_dwordx4 v7, s[6:7] offset:3072{NT}')
    lnfirst = opt.get('lnfirst')
    if lnfirst:
        A('s_cmp_lt_u32 s30, 4\ns_cbranch_scc1 L_ln')
        kload()
        STAMP(2)
        A('s_branch L_noln\nL_ln:\ns_waitcnt vmcnt(3)')
    else:
        kload()
        STAMP(2)
        A('s_cmp_ge_u32 s30, 4\ns_cbranch_scc1 L_noln\ns_waitcnt vmcnt(7)')
    STAMP(3)
    def ln_stats(a):
        A(f'v_add_f32 v40, {a[0]}, {a[1]}\nv_add_f32 v41, {a[2]}, {a[3]}\nv_add_f32 v42, {a[4]}, {a[5]}\nv_add_f32 v43, {a[6]}, {a[7]}')
        A('v_add_f32 v40, v40, v41\nv_add_f32 v42, v42, v43\nv_add_f32 v40, v40, v42')
        wave_sum('v40', 'v41')
        A(f'v_mul_f32 v40, {f2h(1/512)}, v40')
        A(f'v_sub_f32 v42, {a[0]}, v40\nv_sub_f32 v43, {a[1]}, v40\nv_mul_f32 v41, v42, v42\nv_mul_f32 v44, v43, v43')
        for j in range(2, 8, 2):
            A(f'v_sub_f32 v42, {a[j]}, v40\nv_sub_f32 v43, {a[j+1]}, v40\nv_fmac_f32 v41, v42, v42\nv_fmac_f32 v44, v43, v43')
        A('v_add_f32 v41, v41, v44')
        wave_sum('v41', 'v42')
        A(f'v_mul_f32 v41, {f2h(1/512)}, v41')
        rnd('v41', 'v41'); rnd('v40', 'v40')
        A(f'v_add_f32 v41, {f2h(1e-5)}, v41')
        rnd('v41', 'v41')
        A('v_sqrt_f32 v41, v41')
        rnd('v41', 'v41')
        A('v_rcp_f32 v41, v41')
    a = ['v%d' % (24 + j) for j in range(8)]
    unpack(a, ['v12', 'v13', 'v14', 'v15'])
    ln_stats(a)
    for j in range(8): A(f'v_sub_f32 {a[j]}, {a[j]}, v40')
    for j in range(4): A(f'v_cvt_pk_bf16_f32 v{12+j}, {a[2*j]}, {a[2*j+1]}')
    unpack(a, ['v12', 'v13', 'v14', 'v15'])
    for j in range(8): A(f'v_mul_f32 {a[j]}, {a[j]}, v41')
    for j in range(4): A(f'v_cvt_pk_bf16_f32 v{12+j}, {a[2*j]}, {a[2*j+1]}')
    A(f's_mul_i32 s42, s30, 1088\ns_add_u32 s42, s42, {XN}')
    A('v_add_u32 v45, s42, v4')
    A('ds_write_b128 v45, v[12:15]')
    A('s_lshl_b32 s43, s59, 2\ns_add_u32 s43, s43, s42\nv_mov_b32 v46, s43')
    A('ds_read_b32 v47, v46')
    unpack(a, ['v12', 'v13', 'v14', 'v15'])
    ln_stats(a)
    A('s_waitcnt lgkmcnt(0)')
    unpack(['v48', 'v49'], ['v47'])
    A('v_sub_f32 v48, v48, v40\nv_sub_f32 v49, v49, v40\nv_cvt_pk_bf16_f32 v47, v48, v49')
    unpack(['v48', 'v49'], ['v47'])
    A('v_mul_f32 v48, v48, v41\nv_mul_f32 v49, v49, v41\nv_cvt_pk_bf16_f32 v47, v48, v49')
    unpack(['v48', 'v49'], ['v47'])
    A(f's_lshl_b32 s43, s30, 3\ns_add_u32 s43, s43, {HB}\nv_mov_b32 v46, s43')
    A('s_mov_b64 exec, 1')
    A('ds_write_b64 v46, v[48:49]')
    A('s_mov_b64 exec, -1')
    A('s_waitcnt lgkmcnt(0)')
    A('L_noln:')
    STAMP(4)
    A('s_barrier                    ; B1')
    if lnfirst:
        A('s_cmp_ge_u32 s30, 4\ns_cbranch_scc1 L_nok2')
        kload()
        A('L_nok2:')
    A('s_cmp_eq_u32 s30, 7\ns_cbranch_scc0 L_gelu')
    A('''
    v_lshlrev_b32 v8, 1, v2
    v_xor_b32 v8, v3, v8
    v_lshlrev_b32 v8, 4, v8
    v_lshl_add_u32 v8, v2, 8, v8
    v_add_u32 v8, s37, v8          ; V dma offset (a even)
    v_xor_b32 v9, 128, v8          ; V dma offset (a odd)
    s_mov_b32 m0, %d
    s_movk_i32 s43, 8
    L_vl:''' % VS)
    A(f'global_load_lds_dwordx4 v8, s[8:9]{NT}')
    A(f'global_load_lds_dwordx4 v9, s[8:9] offset:1024{NT}')
    A(f'global_load_lds_dwordx4 v8, s[8:9] offset:2048{NT}')
    A(f'global_load_lds_dwordx4 v9, s[8:9] offset:3072{NT}')
    A('''
    s_add_u32 m0, m0, 4096
    v_add_u32 v8, 4096, v8
    v_add_u32 v9, 4096, v9
    s_sub_u32 s43, s43, 1
    s_cmp_lg_u32 s43, 0
    s_cbranch_scc1 L_vl
    s_lshl_b32 s40, s39, 17
    s_lshl_b32 s41, s61, 7
    s_add_u32 s40, s40, s41
    v_lshrrev_b32 v10, 3, v0
    v_lshlrev_b32 v10, 10, v10
    v_and_b32 v11, 7, v0
    v_lshl_add_u32 v10, v11, 4, v10
    v_add_u32 v10, s40, v10
    s_movk_i32 s43, 16
    L_wl:''')
    A(f'global_load_lds_dwordx4 v10, s[12:13]{NT}')
    A('''
    s_add_u32 m0, m0, 1024
    v_add_u32 v10, 8192, v10
    s_sub_u32 s43, s43, 1
    s_cmp_lg_u32 s43, 0
    s_cbranch_scc1 L_wl
    s_waitcnt vmcnt(48)
    s_branch L_nogelu
    L_gelu:''')
    A(f'v_mov_b32 v46, {HB}')
    A('ds_read_b128 v[24:27], v46\nds_read_b128 v[28:31], v46 offset:16')
    A('s_waitcnt vmcnt(4)')
    unpack(['v32', 'v33', 'v34', 'v35'], ['v16', 'v17'])
    unpack(['v36', 'v37', 'v38', 'v39'], ['v18', 'v19'])
    unpack(['v40', 'v41', 'v42', 'v43'], ['v20', 'v21'])
    c0 = math.sqrt(2 / math.pi)
    A(f's_mov_b32 s44, {f2h(-2 * c0 * 0.044715 * LOG2E)}\nv_mov_b32 v44, {f2h(-2 * c0 * LOG2E)}')
    A('s_waitcnt lgkmcnt(0)')
    for o in range(8):
        h = f'v{24+o}'; acc = f'v{64+o}'
        u = ['v%d' % (56 + j) for j in range(4)]; t = ['v%d' % (52 + j) for j in range(4)]
        for j in range(4): A(f'v_fma_f32 {u[j]}, {h}, v{32+j}, v{36+j}')
        for j in range(4): A(f'v_mul_f32 {t[j]}, {u[j]}, {u[j]}')
        for j in range(4): A(f'v_fma_f32 {t[j]}, {t[j]}, s44, v44')
        for j in range(4): A(f'v_mul_f32 {t[j]}, {t[j]}, {u[j]}')
        for j in range(4): A(f'v_exp_f32 {t[j]}, {t[j]}')
        for j in range(4): A(f'v_mul_f32 {u[j]}, {u[j]}, v{40+j}')
        for j in range(4): A(f'v_add_f32 {t[j]}, 1.0, {t[j]}')
        for j in range(4): A(f'v_rcp_f32 {t[j]}, {t[j]}')
        A(f'v_mul_f32 {acc}, {u[0]}, {t[0]}')
        for j in range(1, 4): A(f'v_fmac_f32 {acc}, {u[j]}, {t[j]}')
    for o in range(4): A(f'v_permlane32_swap_b32 v{64+o}, v{68+o}')
    for o in range(4): A(f'v_add_f32 v{64+o}, v{64+o}, v{68+o}')
    for o in range(2): A(f'v_permlane16_swap_b32 v{64+o}, v{66+o}')
    for o in range(2): A(f'v_add_f32 v{64+o}, v{64+o}, v{66+o}')
    for m in ('quad_perm:[1,0,3,2]', 'quad_perm:[2,3,0,1]', 'row_ror:4', 'row_ror:8'):
        for o in range(2): A(f'v_add_f32 v{64+o}, v{64+o}, v{64+o} {m}')
    A(f's_lshl_b32 s43, s30, 5\ns_add_u32 s43, s43, {GY}')
    A('v_lshl_add_u32 v46, v2, 3, s43')
    A('s_mov_b32 exec_lo, 0x00010001\ns_mov_b32 exec_hi, 0x00010001')
    A('ds_write_b64 v46, v[64:65]')
    A('s_mov_b64 exec, -1')
    STAMP(5)
    A('s_waitcnt vmcnt(0)')
    A('L_nogelu:')
    STAMP(6)
    A(f's_add_u32 s43, s38, {KS}')
    A('v_xor_b32 v46, v2, v3\nv_lshlrev_b32 v46, 4, v46\nv_lshl_add_u32 v46, v3, 8, v46\nv_add_u32 v46, s43, v46')
    A('v_xor_b32 v47, 64, v46\nv_xor_b32 v48, 128, v46\nv_xor_b32 v49, 192, v46')
    for i in range(4): A(f'ds_read_b128 v[{16+4*i}:{19+4*i}], v{46+i}')
    A(f'v_mul_u32_u24 v51, 320, v50\nv_lshl_add_u32 v51, v2, 4, v51\nv_add_u32 v66, {OL}, v51\nv_add_u32 v51, {QL}, v51')
    A(f's_lshl_b32 s43, s30, 8\ns_add_u32 s43, s43, {SC}')
    A('v_lshl_add_u32 v52, v2, 2, v50\nv_lshlrev_b32 v52, 4, v52       ; (g*4+h)*16')
    A('v_add_u32 v53, s43, v52')
    A(f'v_lshrrev_b32 v54, 2, v3\nv_lshl_add_u32 v54, v54, 9, v52\nv_add_u32 v54, {SC}, v54')
    A('v_lshrrev_b32 v60, 2, v0      ; 4g+r')
    A('v_and_b32 v61, 7, v60\nv_xor_b32 v61, s30, v61\nv_lshlrev_b32 v61, 5, v61')
    A('v_lshl_add_u32 v61, v60, 8, v61\nv_lshl_add_u32 v61, v50, 3, v61')
    A(f'v_add_u32 v61, {VS}, v61')
    A(f's_lshl_b32 s43, s31, 16\ns_lshl_b32 s45, s32, 9\ns_add_u32 s43, s43, s45\ns_lshl_b32 s45, s30, 6\ns_add_u32 s43, s43, s45\ns_add_u32 s43, s43, {OR_}')
    A('v_lshlrev_b32 v62, 14, v50\nv_lshl_add_u32 v62, v2, 4, v62\nv_add_u32 v62, s43, v62')
    A(f's_lshl_b32 s43, s39, 14\ns_add_u32 s43, s43, s38\ns_add_u32 s43, s43, {OR_}')
    A('v_add_u32 v63, s43, v4')
    A(f's_mul_i32 s43, s30, 320\ns_add_u32 s43, s43, {OL}\nv_and_b32 v64, 31, v0\nv_lshl_add_u32 v64, v64, 3, s43')
    A(f's_lshl_b32 s43, s30, 5\ns_add_u32 s43, s43, {WO - 128}')
    A('v_lshl_add_u32 v65, v2, 2, v60\nv_lshlrev_b32 v65, 7, v65\nv_lshl_add_u32 v65, v50, 3, v65\nv_add_u32 v65, s43, v65')
    A(f's_lshl_b32 s43, s61, 16\ns_lshl_b32 s45, s30, 14\ns_add_u32 s43, s43, s45\ns_lshl_b32 s45, s39, 6\ns_add_u32 s43, s43, s45\ns_add_u32 s43, s43, {SR - 4*16384}')
    A('v_bfe_u32 v67, v0, 2, 1\nv_lshl_add_u32 v67, v2, 1, v67\nv_lshlrev_b32 v67, 11, v67\nv_lshl_add_u32 v67, v50, 4, v67\nv_add_u32 v67, s43, v67')
    A('s_mov_b32 s46, 0x000f000f\ns_mov_b32 s47, 0x000f000f\ns_mov_b32 s48, 0x00ff00ff\ns_mov_b32 s49, 0x00ff00ff')
    A('s_waitcnt lgkmcnt(0)')
    A('s_mul_i32 s33, s33, 1664525\ns_add_u32 s33, s33, 1013904223')
    A(f's_mov_b32 s44, {f2h(128 ** -0.5)}\ns_mov_b32 s45, {f2h(LOG2E)}')
    A('v_mov_b32 v71, s33')
    A('s_barrier                    ; B2')
    STAMP(7)
    for i in range(4): A(f'ds_read_b128 v[{32+4*i}:{35+4*i}], v51 offset:{64*i}')
    for i in range(4):
        LG(3 - i)
        A(f'v_mfma_f32_16x16x32_bf16 v[56:59], v[{16+4*i}:{19+4*i}], v[{32+4*i}:{35+4*i}], ' + ('0' if i == 0 else 'v[56:59]'))
    A('s_mov_b64 exec, s[46:47]')
    A('v_cvt_pk_bf16_f32 v68, v56, v57\nv_cvt_pk_bf16_f32 v69, v58, v59')
    unpack(['v56', 'v57', 'v58', 'v59'], ['v68', 'v69'])
    for j in range(4): A(f'v_mul_f32 v{56+j}, s44, v{56+j}')
    A('v_cvt_pk_bf16_f32 v68, v56, v57\nv_cvt_pk_bf16_f32 v69, v58, v59')
    unpack(['v56', 'v57', 'v58', 'v59'], ['v68', 'v69'])
    A('ds_write_b128 v53, v[56:59]')
    A('s_mov_b64 exec, -1')
    A('s_waitcnt lgkmcnt(0)')
    A('s_barrier                    ; B3')
    A('ds_read_b128 v[16:19], v54\nds_read_b128 v[20:23], v54 offset:256')
    A('s_waitcnt lgkmcnt(0)')
    A('v_max3_f32 v24, v16, v17, v18\nv_max3_f32 v25, v19, v20, v21\nv_max3_f32 v24, v24, v22, v23\nv_max_f32 v24, v24, v25')
    A('v_max_f32 v24, v24, v24 row_ror:4\nv_max_f32 v24, v24, v24 row_ror:8')
    xrow('v24', 'v25', 'v_max_f32')
    A('v_mul_f32 v24, s45, v24')
    for j in range(8): A(f'v_fma_f32 v{16+j}, v{16+j}, s45, -v24')
    for j in range(8): A(f'v_exp_f32 v{16+j}, v{16+j}')
    A('v_add_f32 v26, v16, v17\nv_add_f32 v27, v18, v19\nv_add_f32 v28, v20, v21\nv_add_f32 v29, v22, v23')
    A('v_add_f32 v26, v26, v27\nv_add_f32 v28, v28, v29\nv_add_f32 v26, v26, v28')
    A('v_add_f32 v26, v26, v26 row_ror:4\nv_add_f32 v26, v26, v26 row_ror:8')
    xrow('v26', 'v25', 'v_add_f32')
    A('v_rcp_f32 v27, v26\nv_log_f32 v26, v26')
    for j in range(8): A(f'v_mul_f32 v{16+j}, v{16+j}, v27')
    A('v_add_f32 v70, v24, v26')
    for j in range(4): A(f'v_cvt_pk_bf16_f32 v{32+j}, v{16+2*j}, v{17+2*j}')
    for k in range(1, 4):
        for j in range(4): A(f'v_mov_b32 v{32+4*k+j}, v{32+j} row_ror:{16-4*k}')
    STAMP(8)
    A('s_waitcnt vmcnt(0)')
    STAMP(9)
    A('s_barrier                    ; B4')
    for e in range(8): A(f'ds_read_b64_tr_b16 v[{72+2*e}:{73+2*e}], v61 offset:{4096*e}')
    for k in range(4):
        LG(6 - 2 * k)
        A(f'v_mfma_f32_16x16x32_bf16 v[56:59], v[{72+4*k}:{75+4*k}], v[{32+4*k}:{35+4*k}], ' + ('0' if k == 0 else 'v[56:59]'))
    A('s_mov_b64 exec, s[46:47]')
    A('v_cvt_pk_bf16_f32 v68, v56, v57\nv_cvt_pk_bf16_f32 v69, v58, v59')
    A('global_store_dwordx4 v62, v[68:71], s[28:29] sc1')
    A('s_mov_b64 exec, -1')
    STAMP(10)
    A('s_cmp_ge_u32 s30, 4\ns_cbranch_scc1 L_oproj')
    poll('L_pollo', 'v63', 4, 1024)
    if stamps: A('s_mov_b32 s90, s43')
    STAMP(11)
    A('v_max3_f32 v32, v18, v22, v26\nv_max_f32 v32, v32, v30\nv_mov_b32 v33, v32\nv_permlane32_swap_b32 v32, v33\nv_max_f32 v32, v32, v33')
    for e in range(4): A(f'v_sub_f32 v{18+4*e}, v{18+4*e}, v32')
    for e in range(4): A(f'v_exp_f32 v{18+4*e}, v{18+4*e}')
    for e in range(4): unpack([f'v{36+4*e+j}' for j in range(4)], [f'v{16+4*e}', f'v{17+4*e}'])
    A('v_add_f32 v32, v18, v22\nv_add_f32 v33, v26, v30')
    for j in range(4): A(f'v_mul_f32 v{36+j}, v{36+j}, v18')
    A('v_add_f32 v32, v32, v33')
    for e in range(1, 4):
        for j in range(4): A(f'v_fmac_f32 v{36+j}, v{36+4*e+j}, v{18+4*e}')
    A('v_mov_b32 v33, v32\nv_permlane32_swap_b32 v32, v33\nv_add_f32 v32, v32, v33\nv_rcp_f32 v32, v32')
    A('v_permlane32_swap_b32 v36, v38\nv_permlane32_swap_b32 v37, v39')
    A('v_add_f32 v36, v36, v38\nv_add_f32 v37, v37, v39\nv_mul_f32 v36, v36, v32\nv_mul_f32 v37, v37, v32')
    A('v_lshrrev_b32 v33, 5, v0\nv_cvt_pk_bf16_f32 v36, v36, v37\nv_lshl_add_u32 v64, v33, 2, v64')
    A('ds_write_b32 v64, v36')
    A('s_waitcnt lgkmcnt(0)')
    A('s_barrier                    ; B5')
    A('s_branch L_fin')
    A('L_oproj:')
    for c in range(4):
        for e in range(2): A(f'ds_read_b64_tr_b16 v[{72+4*c+2*e}:{73+4*c+2*e}], v65 offset:{4096*c + 512*e}')
    A('v_mov_b32 v70, s33')
    A('s_waitcnt lgkmcnt(0)')
    A('s_barrier                    ; B5')
    STAMP(11)
    for c in range(4): A(f'ds_read_b128 v[{16+4*c}:{19+4*c}], v66 offset:{64*c}')
    for c in range(4):
        LG(3 - c)
        A(f'v_mfma_f32_16x16x32_bf16 v[56:59], v[{72+4*c}:{75+4*c}], v[{16+4*c}:{19+4*c}], ' + ('0' if c == 0 else 'v[56:59]'))
    A('s_mov_b64 exec, s[48:49]')
    A('v_cndmask_b32 v68, v58, v56, s[46:47]\nv_cndmask_b32 v69, v59, v57, s[46:47]')
    A('global_store_dwordx4 v67, v[68:71], s[28:29] sc1')
    A('L_fin:')
    STAMP(12)
    DUMP(); DIAG('L_dgm')
    A('L_cend:')
    A('s_endpgm')
    A.raw(f'''.section .rodata,"a"
.p2align 6
.amdhsa_kernel {NAME}_kernel
  .amdhsa_next_free_vgpr 128
  .amdhsa_next_free_sgpr 96
  .amdhsa_accum_offset 128
  .amdhsa_group_segment_fixed_size 0
  .amdhsa_kernarg_size 104
  .amdhsa_user_sgpr_count 2
  .amdhsa_user_sgpr_kernarg_segment_ptr 1
  .amdhsa_system_sgpr_workgroup_id_x 1
.end_amdhsa_kernel''')
    return A.text()
if __name__ == '__main__':
    out = sys.argv[1]; stamps = 'stamps' in sys.argv[2:]
    opt = {}
    for k in sys.argv[2:]:
        if k.startswith('diag='): opt['diag'] = tuple(int(x) for x in k[5:].split(','))
        elif '=' in k: opt[k.split('=')[0]] = int(k.split('=')[1])
        else: opt[k] = True
    open(out, 'w').write(gen(stamps, opt))
```

```python
import sys, struct, math
from asmlib import Asm
NAME = 'recurrent_scan__sliding_block_cached__mixer_token_mlp__decode'
def f2h(x): return '0x%08x' % struct.unpack('<I', struct.pack('<f', x))[0]
LOG2E = 1.4426950408889634
def gen(stamps=False, opt=None):
    opt = opt or {}
    NT = '' if opt.get('nont') else ' nt'
    A = Asm()
    WQ, KS, VS, WO = 0, 16384, 49152, 81920
    XN = 98304; QL = XN + 4352; SC = QL + 1280; OL = SC + 2048; HB = OL + 1280; FL = HB + 32; GY = FL + 32
    LDS = GY + 256
    QR, OR_, SR, TS = 0x180000, 0x20000, 0x100000, 0x200000
    SPIN = 20000
    D = opt.get('D', 24); V0 = opt.get('V0', 4); wop = opt.get('wo', 3)
    diag = opt.get('diag'); cur = {'w8': False}
    def STAMP(n):
        if stamps: A('s_memrealtime s[%d:%d]' % (64 + 2 * n, 65 + 2 * n))
        if diag and diag[1] == n and ((diag[0] == 8) == cur['w8'] or n == 0): A('s_memrealtime s[92:93]')
    def DIAG(lbl):
        if diag and ((diag[0] == 8) == cur['w8']):
            A(f's_cmp_lg_u32 s30, {diag[0]}\ns_cbranch_scc1 {lbl}_x')
            if not opt.get('dall'): A(f's_cmp_lg_u32 s2, 0\ns_cbranch_scc1 {lbl}_x')
            A(f'{lbl}:\ns_memrealtime s[94:95]\ns_waitcnt lgkmcnt(0)\ns_sub_u32 s94, s94, s92\ns_cmp_lt_u32 s94, 4000\ns_cbranch_scc1 {lbl}\n{lbl}_x:')
    def LG(n): A(f's_waitcnt lgkmcnt({0 if (stamps or diag) else n})')
    def DUMP():
        if stamps:
            A('s_waitcnt lgkmcnt(0)\ns_getreg_b32 s62, hwreg(HW_REG_XCC_ID)\ns_mov_b64 exec, -1\nv_mov_b32 v100, 0')
            for n in range(14): A('v_writelane_b32 v100, s%d, %d' % (64 + 2 * n, n))
            A('v_writelane_b32 v100, s62, 14')
            A('s_lshl_b32 s60, s2, 4\ns_add_u32 s60, s60, s30\ns_lshl_b32 s60, s60, 6\ns_add_u32 s60, s60, %d' % TS)
            A('v_lshl_add_u32 v101, v0, 2, s60\ns_mov_b64 exec, 0xffff\nglobal_store_dword v101, v100, s[28:29]')
    def xrow(pairs, op):
        for sw in ('v_permlane16_swap_b32', 'v_permlane32_swap_b32'):
            for v, t in pairs: A(f'v_mov_b32 {t}, {v}')
            for v, t in pairs: A(f'{sw} {v}, {t}')
            for v, t in pairs: A(f'{op} {v}, {v}, {t}')
    def rnd(d, s): A(f'v_cvt_pk_bf16_f32 {d}, {s}, {s}\nv_lshlrev_b32 {d}, 16, {d}')
    def unpack(dst, src):
        for j, s_ in enumerate(src): A(f'v_lshlrev_b32 {dst[2*j]}, 16, {s_}\nv_and_b32 {dst[2*j+1]}, 0xffff0000, {s_}')
    def poll(lbl, loads, check, st=None, nowait=False, post=None):
        A(f's_movk_i32 s43, {SPIN}')
        if not nowait: A('s_waitcnt vmcnt(0)')
        if st is not None: STAMP(st)
        A(f'{lbl}:')
        for r, addr, off in loads: A(f'global_load_dwordx4 v[{r}:{r+3}], {addr}, s[28:29] offset:{off} sc1')
        if post: post()
        A(f's_sub_u32 s43, s43, 1\ns_cbranch_scc1 {lbl}_done')
        check()
        A(f's_cbranch_vccnz {lbl}')
        A(f'{lbl}_done:\ns_waitcnt vmcnt(0)')
    def spin(lbl, off, cnt):
        A(f'v_mov_b32 v46, {FL}\ns_movk_i32 s43, {SPIN}\n{lbl}:\nds_read_b32 v47, v46 offset:{off}\ns_sub_u32 s43, s43, 1\ns_cbranch_scc1 {lbl}_d\ns_waitcnt lgkmcnt(0)')
        A(f'v_cmp_ne_u32 vcc, {cnt}, v47\ns_cbranch_vccnz {lbl}\n{lbl}_d:')
    def signal(off): A(f's_mov_b64 exec, 1\nds_add_u32 v51, v52 offset:{off}\ns_mov_b64 exec, -1')
    A.raw(f'; @launch grid=(256,1,1) block=(576,1,1) lds={LDS}')
    A.raw('.amdgcn_target "amdgcn-amd-amdhsa--gfx950"\n.text')
    A.raw(f'.globl {NAME}_kernel\n.p2align 8\n.type {NAME}_kernel,@function\n{NAME}_kernel:')
    STAMP(0)
    A(f'''
    s_load_dwordx16 s[4:19], s[0:1], 0
    s_load_dwordx8 s[20:27], s[0:1], 64
    s_load_dwordx2 s[28:29], s[0:1], 96
    s_lshr_b32 s34, s2, 6
    s_cmp_ge_u32 s34, 4
    s_cbranch_scc1 L_end
    v_lshrrev_b32 v1, 6, v0
    v_lshlrev_b32 v4, 4, v0        ; tid*16
    v_readfirstlane_b32 s30, v1
    s_and_b32 s31, s2, 7           ; x
    s_bfe_u32 s35, s2, 0x30003
    s_xor_b32 s58, s31, 1          ; kq
    s_cmp_eq_u32 s30, 8
    s_cbranch_scc0 L_main
    s_getpc_b64 s[56:57]
    L_pc:
    v_and_b32 v0, 63, v0
    v_lshlrev_b32 v4, 7, v0
    v_min_u32 v4, L_cend-L_pc, v4
    global_load_dword v59, v4, s[56:57]     ; code prefetch into L2
    v_mov_b32 v46, {FL}
    v_mov_b32 v48, 0
    v_mov_b32 v49, 0
    ds_write2_b64 v46, v[48:49], v[48:49] offset1:1
    s_waitcnt lgkmcnt(0)
    s_barrier                    ; B0
    s_branch L_w8
    L_main:
    v_and_b32 v5, 0xfff, v4        ; x offset
    v_lshrrev_b32 v6, 3, v0
    v_lshlrev_b32 v7, 13, v6
    v_and_b32 v6, 2, v6
    v_lshl_or_b32 v6, v1, 2, v6
    v_xor_b32 v6, v6, v0
    v_and_b32 v6, 7, v6
    v_lshl_or_b32 v7, v6, 4, v7
    s_lshl_b32 s36, s34, 10
    s_or_b32 s36, s36, s58
    s_lshl_b32 s36, s36, 3
    s_or_b32 s36, s36, s35
    s_lshl_b32 s36, s36, 7
    v_add_u32 v7, s36, v7
    s_lshl_b32 s36, s30, 10        ; w*1024
    s_mov_b32 m0, s36
    v_lshrrev_b32 v6, 1, v4        ; w*512 + l*8
    s_waitcnt lgkmcnt(0)
    global_load_dwordx4 v[12:15], v5, s[4:5]
    global_load_lds_dwordx4 v7, s[10:11]{NT}
    s_add_u32 m0, s36, 8192
    v_add_u32 v7, 0x80000, v7
    global_load_lds_dwordx4 v7, s[10:11]{NT}
    s_load_dword s33, s[28:29], 0
    ''')
    STAMP(1)
    A(f'''
    v_and_b32 v0, 63, v0
    v_lshrrev_b32 v2, 4, v0        ; g
    v_and_b32 v3, 15, v0           ; n
    s_lshl_b32 s37, s34, 3
    s_or_b32 s37, s37, s31
    s_lshl_b32 s37, s37, 5
    s_or_b32 s37, s37, s35
    s_or_b32 s37, s37, 24
    s_lshl_b32 s37, s37, 15
    s_lshl_b32 s38, s30, 12        ; w*4096
    s_add_u32 s40, s37, s38
    v_xor_b32 v46, v3, v2
    v_lshlrev_b32 v46, 4, v46
    v_lshl_add_u32 v7, v2, 8, v46
    v_add_u32 v7, s40, v7
    s_add_u32 m0, s38, {KS}
    v_xor_b32 v8, 64, v7
    v_xor_b32 v9, 128, v7
    v_xor_b32 v10, 192, v7
    v_and_b32 v4, 0x3ff, v4        ; l*16
    v_and_b32 v50, 3, v0
    v_mov_b32 v51, {FL}
    v_mov_b32 v52, 1
    s_lshr_b32 s32, s2, 3
    s_lshl_b32 s59, s31, 5
    s_add_u32 s59, s59, s32
    s_barrier
    s_cmp_eq_u32 s30, 7
    s_cbranch_scc1 L_loader
    global_load_dwordx2 v[16:17], v6, s[16:17]
    global_load_dwordx2 v[18:19], v6, s[18:19]
    global_load_dwordx2 v[20:21], v6, s[20:21]
    s_cmp_ge_u32 s30, 4
    s_cbranch_scc1 L_noln
    ''')
    def kload():
        for a_ in range(4): A(f'global_load_lds_dwordx4 v{7+a_}, s[6:7] offset:{1024*a_}{NT}')
    STAMP(2)
    A('s_waitcnt vmcnt(5)')
    STAMP(3)
    a = ['v%d' % (24 + j) for j in range(8)]
    def ln_stats():
        A('v_readfirstlane_b32 s44, v24')
        for j in range(0, 8, 2): A(f'v_pk_add_f32 v[{32+j}:{33+j}], v[{24+j}:{25+j}], s[44:45] op_sel_hi:[1,0] neg_lo:[0,1] neg_hi:[0,1]')
        A('v_pk_add_f32 v[40:41], v[32:33], v[34:35]\nv_pk_mul_f32 v[42:43], v[32:33], v[32:33]\nv_pk_add_f32 v[44:45], v[36:37], v[38:39]\nv_pk_fma_f32 v[42:43], v[34:35], v[34:35], v[42:43]')
        A('v_pk_add_f32 v[40:41], v[40:41], v[44:45]\nv_pk_fma_f32 v[42:43], v[36:37], v[36:37], v[42:43]\nv_add_f32 v40, v40, v41\nv_pk_fma_f32 v[42:43], v[38:39], v[38:39], v[42:43]\nv_add_f32 v41, v42, v43')
        for m in ('quad_perm:[1,0,3,2]', 'quad_perm:[2,3,0,1]', 'row_ror:4', 'row_ror:8'):
            A(f'v_add_f32 v40, v40, v40 {m}\nv_add_f32 v41, v41, v41 {m}')
        xrow([('v40', 'v42'), ('v41', 'v43')], 'v_add_f32')
        A(f'v_mul_f32 v40, {f2h(1/512)}, v40\nv_mul_f32 v41, {f2h(1/512)}, v41')
        A('v_fma_f32 v41, -v40, v40, v41\nv_add_f32 v40, s44, v40\nv_max_f32 v41, 0, v41')
        A('v_cvt_pk_bf16_f32 v42, v40, v41\nv_and_b32 v41, 0xffff0000, v42\nv_lshlrev_b32 v40, 16, v42')
        A(f'v_add_f32 v41, {f2h(1e-5)}, v41')
        rnd('v41', 'v41')
        A('v_sqrt_f32 v41, v41')
    unpack(a, ['v12', 'v13', 'v14', 'v15'])
    ln_stats()
    for j in range(0, 8, 2): A(f'v_pk_add_f32 v[{24+j}:{25+j}], v[{24+j}:{25+j}], v[40:41] op_sel_hi:[1,0] neg_lo:[0,1] neg_hi:[0,1]')
    rnd('v41', 'v41')
    A('v_rcp_f32 v41, v41')
    for j in range(4): A(f'v_cvt_pk_bf16_f32 v{12+j}, {a[2*j]}, {a[2*j+1]}')
    unpack(a, ['v12', 'v13', 'v14', 'v15'])
    for j in range(0, 8, 2): A(f'v_pk_mul_f32 v[{24+j}:{25+j}], v[{24+j}:{25+j}], v[40:41] op_sel:[0,1] op_sel_hi:[1,1]')
    A(f's_mul_i32 s42, s30, 1088\ns_add_u32 s42, s42, {XN}')
    A('v_add_u32 v45, s42, v4')
    for j in range(4): A(f'v_cvt_pk_bf16_f32 v{12+j}, {a[2*j]}, {a[2*j+1]}')
    A('ds_write_b128 v45, v[12:15]')
    kl = opt.get('kl', 0)
    if kl != 1:
        A('s_waitcnt vmcnt(3)')
        signal(0)
        if kl == 0: kload()
        if kl == 3:
            A('s_cmp_ge_u32 s30, 2\ns_cbranch_scc1 L_k3')
            kload()
            A('L_k3:')
    else:
        kload()
        A('s_waitcnt vmcnt(7)')
        signal(0)
    A('s_lshl_b32 s43, s59, 2\ns_add_u32 s43, s43, s42\nv_mov_b32 v46, s43')
    A('ds_read_b32 v47, v46')
    unpack(a, ['v12', 'v13', 'v14', 'v15'])
    ln_stats()
    rnd('v41', 'v41')
    A('v_rcp_f32 v41, v41')
    A('s_waitcnt lgkmcnt(0)')
    unpack(['v48', 'v49'], ['v47'])
    A('v_sub_f32 v48, v48, v40\nv_sub_f32 v49, v49, v40\nv_cvt_pk_bf16_f32 v47, v48, v49')
    unpack(['v48', 'v49'], ['v47'])
    A('v_mul_f32 v48, v48, v41\nv_mul_f32 v49, v49, v41\nv_cvt_pk_bf16_f32 v47, v48, v49')
    unpack(['v48', 'v49'], ['v47'])
    A(f's_lshl_b32 s43, s30, 3\ns_add_u32 s43, s43, {HB}\nv_mov_b32 v46, s43')
    A('s_mov_b64 exec, 1\nds_write_b64 v46, v[48:49]\nds_add_u32 v51, v52 offset:4\ns_mov_b64 exec, -1')
    if kl >= 2:
        if kl == 3: A('s_cmp_lt_u32 s30, 2\ns_cbranch_scc1 L_gelu')
        spin('L_spk', 12, 1)
        kload()
    A('s_branch L_gelu')
    A('L_noln:')
    kload()
    STAMP(2)
    A('s_waitcnt vmcnt(7)')
    signal(0)
    A('L_gelu:')
    STAMP(4)
    spin('L_spg', 4, 4)
    A(f'v_mov_b32 v46, {HB}')
    A('ds_read_b128 v[24:27], v46\nds_read_b128 v[28:31], v46 offset:16')
    A('s_waitcnt vmcnt(4)')
    unpack(['v32', 'v33', 'v34', 'v35'], ['v16', 'v17'])
    unpack(['v36', 'v37', 'v38', 'v39'], ['v18', 'v19'])
    unpack(['v40', 'v41', 'v42', 'v43'], ['v20', 'v21'])
    c0 = math.sqrt(2 / math.pi)
    A(f'v_mov_b32 v44, {f2h(-2 * c0 * 0.044715 * LOG2E)}\nv_mov_b32 v45, {f2h(-2 * c0 * LOG2E)}')
    A('s_waitcnt lgkmcnt(0)')
    for o in range(8):
        hp = 24 + (o & ~1); sel = o & 1
        acc = 72 + 2 * o
        for j in (0, 2): A(f'v_pk_fma_f32 v[{56+j}:{57+j}], v[{32+j}:{33+j}], v[{hp}:{hp+1}], v[{36+j}:{37+j}] op_sel:[0,{sel},0] op_sel_hi:[1,{sel},1]')
        for j in (0, 2): A(f'v_pk_mul_f32 v[{52+j}:{53+j}], v[{56+j}:{57+j}], v[{56+j}:{57+j}]')
        for j in (0, 2): A(f'v_pk_fma_f32 v[{52+j}:{53+j}], v[{52+j}:{53+j}], v[44:45], v[44:45] op_sel:[0,0,1] op_sel_hi:[1,0,1]')
        for j in (0, 2): A(f'v_pk_mul_f32 v[{52+j}:{53+j}], v[{52+j}:{53+j}], v[{56+j}:{57+j}]')
        for j in range(4): A(f'v_exp_f32 v{52+j}, v{52+j}')
        for j in (0, 2): A(f'v_pk_mul_f32 v[{56+j}:{57+j}], v[{56+j}:{57+j}], v[{40+j}:{41+j}]')
        for j in (0, 2): A(f'v_pk_add_f32 v[{52+j}:{53+j}], v[{52+j}:{53+j}], 1.0 op_sel_hi:[1,0]')
        for j in range(4): A(f'v_rcp_f32 v{52+j}, v{52+j}')
        A(f'v_pk_mul_f32 v[{acc}:{acc+1}], v[56:57], v[52:53]')
        A(f'v_pk_fma_f32 v[{acc}:{acc+1}], v[58:59], v[54:55], v[{acc}:{acc+1}]')
    for o in range(8): A(f'v_add_f32 v{64+o}, v{72+2*o}, v{73+2*o}')
    for o in range(4): A(f'v_permlane32_swap_b32 v{64+o}, v{68+o}')
    for o in range(4): A(f'v_add_f32 v{64+o}, v{64+o}, v{68+o}')
    for o in range(2): A(f'v_permlane16_swap_b32 v{64+o}, v{66+o}')
    for o in range(2): A(f'v_add_f32 v{64+o}, v{64+o}, v{66+o}')
    for m in ('quad_perm:[1,0,3,2]', 'quad_perm:[2,3,0,1]', 'row_ror:4', 'row_ror:8'):
        for o in range(2): A(f'v_add_f32 v{64+o}, v{64+o}, v{64+o} {m}')
    A(f's_lshl_b32 s43, s30, 5\ns_add_u32 s43, s43, {GY}')
    A('v_lshl_add_u32 v46, v2, 3, s43')
    A('s_mov_b32 exec_lo, 0x00010001\ns_mov_b32 exec_hi, 0x00010001')
    A('ds_write_b64 v46, v[64:65]')
    A('s_mov_b64 exec, -1')
    STAMP(5)
    A('s_waitcnt vmcnt(0)')
    A('s_branch L_nogelu')
    A('L_loader:')
    kload()
    STAMP(2)
    A(f'''
    s_setprio 2
    v_lshlrev_b32 v8, 1, v2
    v_xor_b32 v8, v3, v8
    v_lshlrev_b32 v8, 4, v8
    v_lshl_add_u32 v8, v2, 8, v8
    v_add_u32 v8, s37, v8
    v_xor_b32 v9, 128, v8
    s_mov_b32 m0, {VS}
    s_waitcnt vmcnt(4)''')
    signal(0)
    A(f's_waitcnt vmcnt({V0})')
    STAMP(4)
    V1 = opt.get('V1', 2)
    def vgrp():
        for a_ in range(4): A(f'global_load_lds_dwordx4 v{8+(a_&1)}, s[8:9] offset:{1024*a_}{NT}')
        A('s_add_u32 m0, m0, 4096\ns_add_u32 s8, s8, 4096\ns_addc_u32 s9, s9, 0')
    for _ in range(V1): vgrp()
    spin('L_spv', 8, 1)
    STAMP(3)
    A(f's_movk_i32 s43, {8 - V1}')
    A('L_vl:')
    vgrp()
    A(f'''
    s_sub_u32 s43, s43, 1
    s_cmp_eq_u32 s43, 0
    s_cbranch_scc1 L_vd
    s_waitcnt vmcnt({D})
    s_branch L_vl
    L_vd:
    s_waitcnt vmcnt(32)
    s_setprio 0''')
    STAMP(5)
    A('L_nogelu:')
    A(f's_add_u32 s43, s38, {KS}')
    A('v_xor_b32 v46, v2, v3\nv_lshlrev_b32 v46, 4, v46\nv_lshl_add_u32 v46, v3, 8, v46\nv_add_u32 v46, s43, v46')
    A('v_xor_b32 v47, 64, v46\nv_xor_b32 v48, 128, v46\nv_xor_b32 v49, 192, v46')
    for i in range(4): A(f'ds_read_b128 v[{16+4*i}:{19+4*i}], v{46+i}')
    A('''s_xor_b32 s39, s31, 2
    s_xor_b32 s61, s31, 3
    s_cmp_eq_u32 s35, s31
    s_cselect_b32 s39, s39, s58
    s_cselect_b32 s61, s61, s35    ; c_o
    s_lshl_b32 s39, s39, 2
    s_add_u32 s39, s39, s34        ; h_o = k_o*4 + hl''')
    A(f'v_mul_u32_u24 v51, 320, v50\nv_lshl_add_u32 v51, v2, 4, v51\nv_add_u32 v66, {OL}, v51\nv_add_u32 v51, {QL}, v51')
    A(f's_lshl_b32 s43, s30, 8\ns_add_u32 s43, s43, {SC}')
    A('v_lshl_add_u32 v52, v2, 2, v50\nv_lshlrev_b32 v52, 4, v52       ; (g*4+h)*16')
    A('v_add_u32 v53, s43, v52')
    A(f'v_lshrrev_b32 v54, 2, v3\nv_lshl_add_u32 v54, v54, 9, v52\nv_add_u32 v54, {SC}, v54')
    A('v_lshrrev_b32 v60, 2, v0      ; 4g+r')
    A('v_and_b32 v61, 7, v60\nv_xor_b32 v61, s30, v61\nv_lshlrev_b32 v61, 5, v61')
    A('v_lshl_add_u32 v61, v60, 8, v61\nv_lshl_add_u32 v61, v50, 3, v61')
    A(f'v_add_u32 v61, {VS}, v61')
    A(f's_lshl_b32 s43, s31, 16\ns_lshl_b32 s45, s32, 9\ns_add_u32 s43, s43, s45\ns_lshl_b32 s45, s30, 6\ns_add_u32 s43, s43, s45\ns_add_u32 s43, s43, {OR_}')
    A('v_lshlrev_b32 v62, 14, v50\nv_lshl_add_u32 v62, v2, 4, v62\nv_add_u32 v62, s43, v62')
    A(f's_lshl_b32 s43, s39, 14\ns_add_u32 s43, s43, s38\ns_add_u32 s43, s43, {OR_}')
    A('v_add_u32 v63, s43, v4')
    A(f's_mul_i32 s43, s30, 320\ns_add_u32 s43, s43, {OL}\nv_and_b32 v64, 31, v0\nv_lshl_add_u32 v64, v64, 3, s43\nv_lshrrev_b32 v33, 5, v0\nv_lshl_add_u32 v64, v33, 2, v64')
    A(f's_lshl_b32 s43, s30, 5\ns_add_u32 s43, s43, {WO - 128}')
    A('v_lshl_add_u32 v65, v2, 2, v60\nv_lshlrev_b32 v65, 7, v65\nv_lshl_add_u32 v65, v50, 3, v65\nv_add_u32 v65, s43, v65')
    A(f's_lshl_b32 s43, s61, 16\ns_lshl_b32 s45, s30, 14\ns_add_u32 s43, s43, s45\ns_lshl_b32 s45, s39, 6\ns_add_u32 s43, s43, s45\ns_add_u32 s43, s43, {SR - 4*16384}')
    A('v_bfe_u32 v67, v0, 2, 1\nv_lshl_add_u32 v67, v2, 1, v67\nv_lshlrev_b32 v67, 11, v67\nv_lshl_add_u32 v67, v50, 4, v67\nv_add_u32 v67, s43, v67')
    A(f'''s_lshl_b32 s40, s39, 17
    s_lshl_b32 s41, s61, 7
    s_add_u32 s40, s40, s41
    s_lshl_b32 s41, s30, 14
    s_add_u32 s40, s40, s41
    v_lshrrev_b32 v10, 3, v0
    v_lshlrev_b32 v10, 10, v10
    v_and_b32 v11, 7, v0
    v_lshl_add_u32 v10, v11, 4, v10
    v_add_u32 v10, s40, v10
    v_add_u32 v11, 7168, v10
    s_lshl_b32 s41, s30, 11
    s_add_u32 m0, s41, {WO}''')
    def woload(): A(f'global_load_lds_dwordx4 v10, s[12:13]{NT}\nglobal_load_lds_dwordx4 v11, s[12:13] offset:1024{NT}')
    if wop == 1: woload()
    A('s_mov_b32 s46, 0x000f000f\ns_mov_b32 s47, 0x000f000f\ns_mov_b32 s48, 0x00ff00ff\ns_mov_b32 s49, 0x00ff00ff')
    A('s_waitcnt lgkmcnt(0)')
    A('s_mul_i32 s33, s33, 1664525\ns_add_u32 s33, s33, 1013904223')
    A(f's_mov_b32 s44, {f2h(128 ** -0.5)}\ns_mov_b32 s45, {f2h(LOG2E)}')
    A('v_mov_b32 v71, s33')
    STAMP(6)
    A('s_barrier                    ; B2')
    STAMP(7)
    for i in range(4): A(f'ds_read_b128 v[{32+4*i}:{35+4*i}], v51 offset:{64*i}')
    if wop == 2: woload()
    for i in range(4):
        LG(3 - i)
        A(f'v_mfma_f32_16x16x32_bf16 v[56:59], v[{16+4*i}:{19+4*i}], v[{32+4*i}:{35+4*i}], ' + ('0' if i == 0 else 'v[56:59]'))
    A('s_mov_b64 exec, s[46:47]')
    A('v_cvt_pk_bf16_f32 v68, v56, v57\nv_cvt_pk_bf16_f32 v69, v58, v59')
    unpack(['v56', 'v57', 'v58', 'v59'], ['v68', 'v69'])
    for j in (0, 2): A(f'v_pk_mul_f32 v[{56+j}:{57+j}], v[{56+j}:{57+j}], s[44:45] op_sel_hi:[1,0]')
    A('v_cvt_pk_bf16_f32 v68, v56, v57\nv_cvt_pk_bf16_f32 v69, v58, v59')
    unpack(['v56', 'v57', 'v58', 'v59'], ['v68', 'v69'])
    A('ds_write_b128 v53, v[56:59]')
    A('s_mov_b64 exec, -1')
    A('s_waitcnt lgkmcnt(0)')
    A('s_barrier                    ; B3')
    A('ds_read_b128 v[16:19], v54\nds_read_b128 v[20:23], v54 offset:256')
    A('s_waitcnt lgkmcnt(0)')
    A('v_max3_f32 v24, v16, v17, v18\nv_max3_f32 v25, v19, v20, v21\nv_max3_f32 v24, v24, v22, v23\nv_max_f32 v24, v24, v25')
    A('v_max_f32 v24, v24, v24 row_ror:4\nv_max_f32 v24, v24, v24 row_ror:8')
    xrow([('v24', 'v25')], 'v_max_f32')
    A('v_mul_f32 v24, s45, v24')
    for j in range(0, 8, 2): A(f'v_pk_fma_f32 v[{16+j}:{17+j}], v[{16+j}:{17+j}], s[44:45], v[24:25] op_sel:[0,1,0] op_sel_hi:[1,1,0] neg_lo:[0,0,1] neg_hi:[0,0,1]')
    for j in range(8): A(f'v_exp_f32 v{16+j}, v{16+j}')
    A('v_pk_add_f32 v[26:27], v[16:17], v[18:19]\nv_pk_add_f32 v[28:29], v[20:21], v[22:23]\nv_pk_add_f32 v[26:27], v[26:27], v[28:29]\nv_add_f32 v26, v26, v27')
    A('v_add_f32 v26, v26, v26 row_ror:4\nv_add_f32 v26, v26, v26 row_ror:8')
    xrow([('v26', 'v25')], 'v_add_f32')
    A('v_rcp_f32 v27, v26\nv_log_f32 v26, v26')
    for j in range(0, 8, 2): A(f'v_pk_mul_f32 v[{16+j}:{17+j}], v[{16+j}:{17+j}], v[26:27] op_sel:[0,1] op_sel_hi:[1,1]')
    A('v_add_f32 v70, v24, v26')
    for j in range(4): A(f'v_cvt_pk_bf16_f32 v{32+j}, v{16+2*j}, v{17+2*j}')
    for k in range(1, 4):
        for j in range(4): A(f'v_mov_b32 v{32+4*k+j}, v{32+j} row_ror:{16-4*k}')
    if wop == 3: woload()
    STAMP(8)
    A('s_waitcnt vmcnt(%d)' % (0 if wop >= 4 else 2))
    STAMP(9)
    A('s_barrier                    ; B4')
    for e in range(8): A(f'ds_read_b64_tr_b16 v[{72+2*e}:{73+2*e}], v61 offset:{4096*e}')
    if wop == 4: woload()
    for k in range(4):
        LG(6 - 2 * k)
        A(f'v_mfma_f32_16x16x32_bf16 v[56:59], v[{72+4*k}:{75+4*k}], v[{32+4*k}:{35+4*k}], ' + ('0' if k == 0 else 'v[56:59]'))
    A('s_mov_b64 exec, s[46:47]')
    A('v_cvt_pk_bf16_f32 v68, v56, v57\nv_cvt_pk_bf16_f32 v69, v58, v59')
    A('global_store_dwordx4 v62, v[68:71], s[28:29] sc1')
    A('s_mov_b64 exec, -1')
    STAMP(10)
    if wop == 5:
        A('s_barrier')
        woload()
    A('s_waitcnt vmcnt(0)\ns_barrier     ; B4b')
    A('s_cmp_ge_u32 s30, 4\ns_cbranch_scc1 L_oproj')
    def chk4():
        A('s_waitcnt vmcnt(0)')
        A('v_xor_b32 v19, s33, v19\nv_xor_b32 v23, s33, v23\nv_xor_b32 v27, s33, v27\nv_xor_b32 v31, s33, v31')
        A('v_or3_b32 v19, v19, v23, v27\nv_or_b32 v19, v19, v31\nv_cmp_ne_u32 vcc, 0, v19')
    poll('L_pollo', [(16 + 4 * e, 'v63', 1024 * e) for e in range(4)], chk4)
    if stamps: A('s_mov_b32 s90, s43')
    STAMP(11)
    A('v_max3_f32 v32, v18, v22, v26\nv_max_f32 v32, v32, v30\nv_mov_b32 v33, v32\nv_permlane32_swap_b32 v32, v33\nv_max_f32 v32, v32, v33')
    for e in range(4): A(f'v_sub_f32 v{18+4*e}, v{18+4*e}, v32')
    for e in range(4): A(f'v_exp_f32 v{18+4*e}, v{18+4*e}')
    for e in range(4): unpack([f'v{36+4*e+j}' for j in range(4)], [f'v{16+4*e}', f'v{17+4*e}'])
    A('v_add_f32 v32, v18, v22\nv_add_f32 v33, v26, v30')
    for j in (0, 2): A(f'v_pk_mul_f32 v[{36+j}:{37+j}], v[{36+j}:{37+j}], v[18:19] op_sel_hi:[1,0]')
    A('v_add_f32 v32, v32, v33')
    for e in range(1, 4):
        for j in (0, 2): A(f'v_pk_fma_f32 v[{36+j}:{37+j}], v[{36+4*e+j}:{37+4*e+j}], v[{18+4*e}:{19+4*e}], v[{36+j}:{37+j}] op_sel_hi:[1,0,1]')
    A('v_mov_b32 v33, v32\nv_permlane32_swap_b32 v32, v33\nv_add_f32 v32, v32, v33\nv_rcp_f32 v32, v32')
    A('v_permlane32_swap_b32 v36, v38\nv_permlane32_swap_b32 v37, v39')
    A('v_pk_add_f32 v[36:37], v[36:37], v[38:39]\nv_pk_mul_f32 v[36:37], v[36:37], v[32:33] op_sel_hi:[1,0]')
    A('v_cvt_pk_bf16_f32 v36, v36, v37')
    A('ds_write_b32 v64, v36')
    A('s_waitcnt lgkmcnt(0)')
    A('s_barrier                    ; B5')
    A('s_branch L_fin')
    A('L_oproj:')
    for c in range(4):
        for e in range(2): A(f'ds_read_b64_tr_b16 v[{72+4*c+2*e}:{73+4*c+2*e}], v65 offset:{4096*c + 512*e}')
    A('v_mov_b32 v70, s33')
    A('s_waitcnt lgkmcnt(0)')
    A('s_barrier                    ; B5')
    STAMP(11)
    for c in range(4): A(f'ds_read_b128 v[{16+4*c}:{19+4*c}], v66 offset:{64*c}')
    for c in range(4):
        LG(3 - c)
        A(f'v_mfma_f32_16x16x32_bf16 v[56:59], v[{72+4*c}:{75+4*c}], v[{16+4*c}:{19+4*c}], ' + ('0' if c == 0 else 'v[56:59]'))
    A('s_mov_b64 exec, s[48:49]')
    A('v_cndmask_b32 v68, v58, v56, s[46:47]\nv_cndmask_b32 v69, v59, v57, s[46:47]')
    A('global_store_dwordx4 v67, v[68:71], s[28:29] sc1')
    A('L_fin:')
    STAMP(12)
    DUMP(); DIAG('L_dgm')
    A('L_end:')
    A('s_endpgm')
    cur['w8'] = True
    A(f'''
    L_w8:
    s_setprio 3
    v_lshrrev_b32 v2, 4, v0
    v_and_b32 v50, 3, v0
    s_lshr_b32 s32, s2, 3
    s_lshl_b32 s59, s31, 5
    s_add_u32 s59, s59, s32
    s_load_dword s33, s[28:29], 0
    s_load_dword s38, s[22:23], 0
    s_lshl_b32 s37, s59, 2
    v_lshl_add_u32 v7, v50, 10, s37
    global_load_dword v9, v7, s[4:5]
    ''')
    STAMP(1)
    A(f's_lshl_b32 s37, s34, 8\ns_add_u32 s37, s37, {XN}\nv_mul_u32_u24 v11, 1088, v50\nv_lshl_add_u32 v11, v2, 4, v11\nv_add_u32 v11, s37, v11')
    A('v_lshrrev_b32 v12, 2, v0\nv_lshl_add_u32 v12, v2, 2, v12\nv_lshlrev_b32 v12, 7, v12\nv_bfe_u32 v13, v0, 3, 2\nv_lshl_add_u32 v12, v13, 5, v12\nv_lshl_add_u32 v12, v50, 3, v12')
    A('v_xor_b32 v3, 32, v12\nv_xor_b32 v4, 64, v12\nv_xor_b32 v5, 96, v12')
    A(f's_lshl_b32 s36, s58, 15\ns_lshl_b32 s37, s32, 8\ns_add_u32 s37, s36, s37\ns_add_u32 s37, s37, {QR}')
    A('v_lshlrev_b32 v13, 13, v50\nv_and_b32 v14, 12, v0\nv_add_u32 v14, v14, v2\nv_lshl_add_u32 v13, v14, 4, v13\nv_add_u32 v13, s37, v13')
    if opt.get('pre'): A('global_load_dword v58, v13, s[28:29]' + (' sc1' if opt['pre'] == 2 else ''))
    A(f's_lshl_b32 s36, s31, 15\ns_lshl_b32 s37, s34, 13\ns_add_u32 s37, s36, s37\ns_add_u32 s37, s37, {QR + 4096}')
    A('v_lshl_add_u32 v14, v0, 4, s37')
    A(f'v_lshrrev_b32 v15, 5, v0\nv_lshlrev_b32 v15, 6, v15\nv_lshl_add_u32 v15, v0, 3, v15\nv_add_u32 v15, {QL}, v15')
    A('s_mov_b32 s46, 0x000f000f\ns_mov_b32 s47, 0x000f000f\ns_lshl_b64 s[48:49], s[46:47], 4\ns_lshl_b64 s[50:51], s[46:47], 8\ns_lshl_b64 s[52:53], s[46:47], 12')
    A('s_waitcnt lgkmcnt(0)')
    A('s_mul_i32 s33, s33, 1664525\ns_add_u32 s33, s33, 1013904223')
    A('v_mov_b32 v60, s33\nv_lshrrev_b32 v61, 8, v60\nv_lshrrev_b32 v62, 16, v60\nv_lshrrev_b32 v63, 24, v60\ns_movk_i32 s44, 0xff\ns_movk_i32 s45, 0xff00\ns_mov_b32 s40, 0x0c0c0400\ns_mov_b32 s41, 0x0c040100\ns_mov_b32 s42, 0x04020100')
    A(f'v_mov_b32 v54, {FL}\nv_mov_b32 v55, 1')
    spin('L_sp8', 0, 8)
    STAMP(4)
    for c in range(4): A(f'ds_read_b128 v[{16+4*c}:{19+4*c}], v11 offset:{64*c}')
    ad = ['v12', 'v3', 'v4', 'v5']
    for t in range(4):
        for c in range(4):
            for e in range(2):
                r = 64 + 16 * t + 4 * c + 2 * e
                A(f'ds_read_b64_tr_b16 v[{r}:{r+1}], {ad[t]} offset:{WQ + 4096*c + 512*e}')
        if t >= 1:
            LG(8)
            for c in range(4):
                r = 64 + 16 * (t - 1) + 4 * c
                A(f'v_mfma_f32_16x16x32_bf16 v[{32+4*(t-1)}:{35+4*(t-1)}], v[{r}:{r+3}], v[{16+4*c}:{19+4*c}], ' + ('0' if c == 0 else f'v[{32+4*(t-1)}:{35+4*(t-1)}]'))
    for c in range(4):
        LG(6 - 2 * c)
        r = 64 + 48 + 4 * c
        A(f'v_mfma_f32_16x16x32_bf16 v[44:47], v[{r}:{r+3}], v[{16+4*c}:{19+4*c}], ' + ('0' if c == 0 else 'v[44:47]'))
    for t in range(4):
        A(f's_mov_b64 exec, s[{46+2*t}:{47+2*t}]')
        for j in range(4): A(f'v_bfi_b32 v{24+j}, s44, v{60+j}, v{32+4*t+j}')
    A('s_mov_b64 exec, -1')
    A('global_store_dwordx4 v13, v[24:27], s[28:29] ' + {0: 'sc1', 1: 'sc0 sc1', 2: 'sc1 nt', 3: 'sc0 sc1 nt'}[opt.get('qst', 0)])
    if kl >= 2: A('ds_write_b32 v54, v55 offset:12')
    STAMP(7)
    def chkq():
        for e in range(8):
            r = 16 + 4 * e
            A(f's_waitcnt vmcnt({7-e})')
            if e == 0: STAMP(6)
            A(f'v_perm_b32 v56, v{r+1}, v{r}, s40\nv_perm_b32 v56, v{r+2}, v56, s41\nv_perm_b32 v56, v{r+3}, v56, s42')
            if e == 0: A('v_xor_b32 v57, s33, v56')
            else: A('v_xor_b32 v56, s33, v56\nv_or_b32 v57, v57, v56')
            for j in range(4): A(f'v_and_b32 v{r+j}, s45, v{r+j}')
        A('v_cmp_ne_u32 vcc, 0, v57')
    poll('L_pollq', [(16 + 4 * e, 'v14', 1024 * e - 4096) for e in range(8)], chkq, st=5, nowait=opt.get('qnw'), post=lambda: A('ds_write_b32 v54, v55 offset:8'))
    if stamps: A('s_mov_b32 s90, s43')
    for hh in range(2):
        r = 16 + 4 * hh
        for j in (0, 2): A(f'v_pk_add_f32 v[{r+j}:{r+j+1}], v[{r+j}:{r+j+1}], v[{r+8+j}:{r+9+j}]\nv_pk_add_f32 v[{r+16+j}:{r+17+j}], v[{r+16+j}:{r+17+j}], v[{r+24+j}:{r+25+j}]')
    for hh in range(2):
        r = 16 + 4 * hh
        for j in (0, 2): A(f'v_pk_add_f32 v[{r+j}:{r+j+1}], v[{r+j}:{r+j+1}], v[{r+16+j}:{r+17+j}]')
    A('v_cvt_pk_bf16_f32 v16, v16, v17\nv_cvt_pk_bf16_f32 v17, v18, v19\nv_cvt_pk_bf16_f32 v20, v20, v21\nv_cvt_pk_bf16_f32 v21, v22, v23')
    A('ds_write_b64 v15, v[16:17]\nds_write_b64 v15, v[20:21] offset:640')
    STAMP(8)
    A('s_waitcnt lgkmcnt(0)')
    A('s_barrier                    ; B2')
    A(f'v_lshlrev_b32 v11, 3, v50\nv_add_u32 v11, {GY}, v11')
    for w in range(7): A(f'ds_read_b64 v[{16+2*w}:{17+2*w}], v11 offset:{32*w}')
    A('s_barrier                    ; B3')
    A('s_setprio 0')
    A(f's_lshl_b32 s37, s59, 11\ns_add_u32 s37, s37, {SR}')
    A('v_lshl_add_u32 v14, v0, 4, s37')
    A('s_lshl_b32 s38, s38, 16')
    A('s_waitcnt lgkmcnt(0)')
    for w in range(1, 7): A(f'v_pk_add_f32 v[16:17], v[16:17], v[{16+2*w}:{17+2*w}]')
    A('v_cvt_pk_bf16_f32 v18, v16, v17')
    unpack(['v16', 'v17'], ['v18'])
    A('v_add_f32 v16, s38, v16\nv_add_f32 v17, s38, v17\nv_cvt_pk_bf16_f32 v18, v16, v17')
    unpack(['v16', 'v17'], ['v18'])
    A(f'v_mul_f32 v18, {f2h(-LOG2E)}, v16\nv_mul_f32 v19, {f2h(-LOG2E)}, v17')
    A('v_exp_f32 v18, v18\nv_exp_f32 v19, v19\nv_add_f32 v18, 1.0, v18\nv_add_f32 v19, 1.0, v19\nv_rcp_f32 v18, v18\nv_rcp_f32 v19, v19')
    A('v_mul_f32 v16, v16, v18\nv_mul_f32 v17, v17, v19\nv_cvt_pk_bf16_f32 v18, v16, v17')
    unpack(['v30', 'v31'], ['v18'])
    unpack(['v8', 'v10'], ['v9'])
    if wop == 5: A('s_barrier')
    A('s_barrier                    ; B4\ns_barrier                    ; B4b\ns_barrier                    ; B5')
    STAMP(10)
    def chk2():
        A('s_waitcnt vmcnt(0)\nv_cmp_ne_u32 vcc, s33, v19\nv_cmp_ne_u32 s[54:55], s33, v23\ns_or_b64 vcc, vcc, s[54:55]')
    poll('L_polls', [(16, 'v14', 0), (20, 'v14', 1024)], chk2)
    STAMP(11)
    A('v_pk_add_f32 v[16:17], v[16:17], v[20:21]')
    for m in ('row_ror:4', 'row_ror:8'):
        A(f'v_add_f32 v16, v16, v16 {m}\nv_add_f32 v17, v17, v17 {m}')
    xrow([('v16', 'v18'), ('v17', 'v19')], 'v_add_f32')
    A('v_cvt_pk_bf16_f32 v18, v16, v17')
    unpack(['v16', 'v17'], ['v18'])
    A('v_pk_mul_f32 v[16:17], v[16:17], v[30:31]\nv_cvt_pk_bf16_f32 v18, v16, v17')
    unpack(['v16', 'v17'], ['v18'])
    A('v_add_f32 v16, v16, v8\nv_add_f32 v17, v17, v10\nv_cvt_pk_bf16_f32 v18, v16, v17')
    A('s_mov_b64 exec, 15')
    A('global_store_dword v7, v18, s[24:25]')
    A('s_cmp_lg_u32 s2, 0\ns_cbranch_scc1 L_fin8')
    A('s_mov_b64 exec, 1\nv_mov_b32 v20, 0\nv_mov_b32 v21, s33')
    A('global_store_dword v20, v21, s[28:29]')
    A('L_fin8:')
    STAMP(12)
    DUMP(); DIAG('L_dg8')
    A('L_cend:')
    A('s_endpgm')
    A.raw(f'''.section .rodata,"a"
.p2align 6
.amdhsa_kernel {NAME}_kernel
  .amdhsa_next_free_vgpr 128
  .amdhsa_next_free_sgpr 96
  .amdhsa_accum_offset 128
  .amdhsa_group_segment_fixed_size 0
  .amdhsa_kernarg_size 104
  .amdhsa_user_sgpr_count 2
  .amdhsa_user_sgpr_kernarg_segment_ptr 1
  .amdhsa_system_sgpr_workgroup_id_x 1
.end_amdhsa_kernel''')
    return A.text()
if __name__ == '__main__':
    out = sys.argv[1]; stamps = 'stamps' in sys.argv[2:]
    opt = {}
    for k in sys.argv[2:]:
        if k.startswith('diag='): opt['diag'] = tuple(int(x) for x in k[5:].split(','))
        elif '=' in k: opt[k.split('=')[0]] = int(k.split('=')[1])
        else: opt[k] = True
    open(out, 'w').write(gen(stamps, opt))
```

```python
import sys, struct, math
from asmlib import Asm
NAME = 'recurrent_scan__sliding_block_cached__mixer_token_mlp__decode'
def f2h(x): return '0x%08x' % struct.unpack('<I', struct.pack('<f', x))[0]
LOG2E = 1.4426950408889634
def gen(stamps=False, opt=None):
    opt = opt or {}
    NT = '' if opt.get('nont') else ' nt'
    A = Asm()
    WQ, KS, VS, WO = 0, 16384, 49152, 81920
    XN = 98304; QL = XN + 4352; SC = QL + 1280; OL = SC + 2048; HB = OL + 1280; FL = HB + 32; MX = FL + 32; GY = MX + 32
    LDS = GY + 256
    QR, OR_, SR, TS = 0x180000, 0x20000, 0x100000, 0x200000
    SPIN = 20000
    D = opt.get('D', 40); V0 = opt.get('V0', 0); wop = opt.get('wo', 4)
    diag = opt.get('diag'); cur = {'w8': False}
    def STAMP(n):
        if stamps: A('s_memrealtime s[%d:%d]' % (64 + 2 * n, 65 + 2 * n))
        if diag and diag[1] == n and ((diag[0] == 8) == cur['w8'] or n == 0): A('s_memrealtime s[92:93]')
    def DIAG(lbl):
        if diag and ((diag[0] == 8) == cur['w8']):
            A(f's_cmp_lg_u32 s30, {diag[0]}\ns_cbranch_scc1 {lbl}_x')
            if not opt.get('dall'): A(f's_cmp_lg_u32 s2, 0\ns_cbranch_scc1 {lbl}_x')
            A(f'{lbl}:\ns_memrealtime s[94:95]\ns_waitcnt lgkmcnt(0)\ns_sub_u32 s94, s94, s92\ns_cmp_lt_u32 s94, 4000\ns_cbranch_scc1 {lbl}\n{lbl}_x:')
    def LG(n): A(f's_waitcnt lgkmcnt({0 if (stamps or diag) else n})')
    def DUMP():
        if stamps:
            A('s_waitcnt lgkmcnt(0)\ns_getreg_b32 s62, hwreg(HW_REG_XCC_ID)\ns_mov_b64 exec, -1\nv_mov_b32 v100, 0')
            for n in range(14): A('v_writelane_b32 v100, s%d, %d' % (64 + 2 * n, n))
            A('v_writelane_b32 v100, s62, 14')
            A('s_lshl_b32 s60, s2, 4\ns_add_u32 s60, s60, s30\ns_lshl_b32 s60, s60, 6\ns_add_u32 s60, s60, %d' % TS)
            A('v_lshl_add_u32 v101, v0, 2, s60\ns_mov_b64 exec, 0xffff\nglobal_store_dword v101, v100, s[28:29]')
    def xrow(pairs, op):
        for sw in ('v_permlane16_swap_b32', 'v_permlane32_swap_b32'):
            for v, t in pairs: A(f'v_mov_b32 {t}, {v}')
            for v, t in pairs: A(f'{sw} {v}, {t}')
            for v, t in pairs: A(f'{op} {v}, {v}, {t}')
    def rnd(d, s): A(f'v_cvt_pk_bf16_f32 {d}, {s}, {s}\nv_lshlrev_b32 {d}, 16, {d}')
    def unpack(dst, src):
        for j, s_ in enumerate(src): A(f'v_lshlrev_b32 {dst[2*j]}, 16, {s_}\nv_and_b32 {dst[2*j+1]}, 0xffff0000, {s_}')
    def poll(lbl, loads, check, st=None, nowait=False, post=None):
        A(f's_movk_i32 s43, {SPIN}')
        if not nowait: A('s_waitcnt vmcnt(0)')
        if st is not None: STAMP(st)
        A(f'{lbl}:')
        for r, addr, off in loads: A(f'global_load_dwordx4 v[{r}:{r+3}], {addr}, s[28:29] offset:{off} sc1')
        if post: post()
        A(f's_sub_u32 s43, s43, 1\ns_cbranch_scc1 {lbl}_done')
        check()
        A(f's_cbranch_vccnz {lbl}')
        A(f'{lbl}_done:\ns_waitcnt vmcnt(0)')
    def spin(lbl, off, cnt):
        A(f'v_mov_b32 v46, {FL}\ns_movk_i32 s43, {SPIN}\n{lbl}:\nds_read_b32 v47, v46 offset:{off}\ns_sub_u32 s43, s43, 1\ns_cbranch_scc1 {lbl}_d\ns_waitcnt lgkmcnt(0)')
        A(f'v_cmp_ne_u32 vcc, {cnt}, v47\ns_cbranch_vccnz {lbl}\n{lbl}_d:')
    def signal(off): A(f's_mov_b64 exec, 1\nds_add_u32 v51, v52 offset:{off}\ns_mov_b64 exec, -1')
    A.raw(f'; @launch grid=(256,1,1) block=(576,1,1) lds={LDS}')
    A.raw('.amdgcn_target "amdgcn-amd-amdhsa--gfx950"\n.text')
    A.raw(f'.globl {NAME}_kernel\n.p2align 8\n.type {NAME}_kernel,@function\n{NAME}_kernel:')
    def kload():
        for a_ in range(4): A(f'global_load_lds_dwordx4 v{7+a_}, s[6:7] offset:{1024*a_}{NT}')
    def params():
        A('global_load_dwordx2 v[16:17], v6, s[16:17]\nglobal_load_dwordx2 v[18:19], v6, s[18:19]\ns_waitcnt lgkmcnt(0)\nglobal_load_dwordx2 v[20:21], v6, s[20:21]')
    A(f'''
    s_load_dwordx16 s[4:19], s[0:1], 0
    v_lshrrev_b32 v1, 6, v0
    s_lshr_b32 s34, s2, 6
    v_readfirstlane_b32 s30, v1
    s_cmp_ge_u32 s34, 4
    s_cbranch_scc1 L_end
    s_cmp_eq_u32 s30, 8
    s_cbranch_scc0 L_main
    s_getpc_b64 s[56:57]
    L_pc:
    v_and_b32 v0, 63, v0
    v_lshlrev_b32 v4, 7, v0
    v_min_u32 v4, L_cend-L_pc, v4
    global_load_dword v59, v4, s[56:57]     ; code prefetch into L2
    s_branch L_stub
    L_main:
    ''')
    STAMP(0)
    A(f'''
    s_load_dwordx8 s[20:27], s[0:1], 64
    v_lshlrev_b32 v4, 4, v0        ; tid*16
    s_and_b32 s31, s2, 7           ; x
    s_bfe_u32 s35, s2, 0x30003
    s_xor_b32 s58, s31, 1          ; kq
    s_cmp_ge_u32 s30, 4
    s_cbranch_scc1 L_wq
    s_waitcnt lgkmcnt(0)
    global_load_dwordx4 v[12:15], v4, s[4:5]
    s_branch L_kk
    L_wq:
    v_lshrrev_b32 v6, 3, v0
    s_lshl3_add_u32 s36, s58, s35
    v_lshl_add_u32 v7, s34, 7, v6
    v_and_b32 v6, 2, v6
    v_lshl_or_b32 v6, v1, 2, v6
    v_xor_b32 v6, v6, v0
    v_and_b32 v6, 7, v6
    v_lshl_add_u32 v6, s36, 3, v6
    v_lshl_add_u32 v7, v7, 9, v6
    v_lshlrev_b32 v7, 4, v7
    s_lshl_b32 m0, s30, 10
    s_waitcnt lgkmcnt(0)
    global_load_lds_dwordx4 v7, s[10:11]{NT}
    s_addk_i32 m0, 4096
    v_add_u32 v7, 0x40000, v7
    global_load_lds_dwordx4 v7, s[10:11]{NT}
    s_addk_i32 m0, 4096
    v_add_u32 v7, 0x40000, v7
    global_load_lds_dwordx4 v7, s[10:11]{NT}
    s_addk_i32 m0, -12288
    v_add_u32 v7, 0xfff40000, v7
    global_load_lds_dwordx4 v7, s[10:11]{NT}
    L_kk:
    ''')
    STAMP(1)
    A(f'''
    s_lshl3_add_u32 s37, s34, s31
    s_lshl2_add_u32 s37, s37, 3
    s_lshl3_add_u32 s37, s37, s35
    s_lshl_b32 s37, s37, 15
    s_lshl_b32 s38, s30, 12        ; w*4096
    v_and_b32 v0, 63, v0
    v_lshrrev_b32 v2, 4, v0        ; g
    v_xor_b32 v7, v2, v0
    s_add_u32 s40, s37, s38
    v_lshl_add_u32 v7, v7, 4, s40
    s_add_u32 m0, s38, {KS}
    v_xor_b32 v8, 64, v7
    v_xor_b32 v9, 128, v7
    v_xor_b32 v10, 64, v9
    v_lshrrev_b32 v6, 1, v4        ; w*512 + l*8
    s_cmp_eq_u32 s30, 7
    s_barrier
    s_cbranch_scc1 L_k7
    global_load_dwordx2 v[16:17], v6, s[16:17]
    global_load_dwordx2 v[18:19], v6, s[18:19]
    global_load_dwordx2 v[20:21], v6, s[20:21]
    s_cmp_lt_u32 s30, {opt.get('kh', 6)}
    s_cbranch_scc1 L_go
    L_k7:
    ''')
    kload()
    A(f'''
    s_branch L_go
    L_stub:
    v_lshlrev_b32 v46, 2, v0
    v_bfe_i32 v48, v0, 3, 1
    v_add_u32 v46, {FL}, v46
    v_lshlrev_b32 v48, 23, v48
    ds_write_b32 v46, v48
    s_waitcnt lgkmcnt(0)
    s_barrier                    ; B0
    s_load_dwordx2 s[28:29], s[0:1], 96
    s_load_dwordx8 s[20:27], s[0:1], 64
    s_waitcnt lgkmcnt(0)
    s_load_dword s33, s[28:29], 0
    s_branch L_w8
    L_go:
    ''')
    STAMP(2)
    A(f'''
    s_load_dwordx2 s[28:29], s[0:1], 96
    v_and_b32 v3, 15, v0           ; n
    v_and_b32 v4, 0x3ff, v4        ; l*16
    v_and_b32 v50, 3, v0
    v_mov_b32 v51, {FL}
    v_mov_b32 v52, 1
    s_lshr_b32 s32, s2, 3
    s_lshl_b32 s59, s31, 5
    s_add_u32 s59, s59, s32
    s_cmp_ge_u32 s30, 4
    s_cbranch_scc1 L_noln
    s_waitcnt vmcnt(3)
    ''')
    STAMP(3)
    a = ['v%d' % (24 + j) for j in range(8)]
    def ln_stats():
        A('v_readfirstlane_b32 s44, v24')
        for j in range(0, 8, 2): A(f'v_pk_add_f32 v[{32+j}:{33+j}], v[{24+j}:{25+j}], s[44:45] op_sel_hi:[1,0] neg_lo:[0,1] neg_hi:[0,1]')
        A('v_pk_add_f32 v[40:41], v[32:33], v[34:35]\nv_pk_mul_f32 v[42:43], v[32:33], v[32:33]\nv_pk_add_f32 v[44:45], v[36:37], v[38:39]\nv_pk_fma_f32 v[42:43], v[34:35], v[34:35], v[42:43]')
        A('v_pk_add_f32 v[40:41], v[40:41], v[44:45]\nv_pk_fma_f32 v[42:43], v[36:37], v[36:37], v[42:43]\nv_add_f32 v40, v40, v41\nv_pk_fma_f32 v[42:43], v[38:39], v[38:39], v[42:43]\nv_add_f32 v41, v42, v43')
        for m in ('quad_perm:[1,0,3,2]', 'quad_perm:[2,3,0,1]', 'row_ror:4', 'row_ror:8'):
            A(f'v_add_f32 v40, v40, v40 {m}\nv_add_f32 v41, v41, v41 {m}')
        xrow([('v40', 'v42'), ('v41', 'v43')], 'v_add_f32')
        A(f'v_mul_f32 v40, {f2h(1/512)}, v40\nv_mul_f32 v41, {f2h(1/512)}, v41')
        A('v_fma_f32 v41, -v40, v40, v41\nv_add_f32 v40, s44, v40\nv_max_f32 v41, 0, v41')
        A('v_cvt_pk_bf16_f32 v42, v40, v41\nv_and_b32 v41, 0xffff0000, v42\nv_lshlrev_b32 v40, 16, v42')
        A(f'v_add_f32 v41, {f2h(1e-5)}, v41')
        rnd('v41', 'v41')
        A('v_sqrt_f32 v41, v41')
    unpack(a, ['v12', 'v13', 'v14', 'v15'])
    ln_stats()
    for j in range(0, 8, 2): A(f'v_pk_add_f32 v[{24+j}:{25+j}], v[{24+j}:{25+j}], v[40:41] op_sel_hi:[1,0] neg_lo:[0,1] neg_hi:[0,1]')
    rnd('v41', 'v41')
    A('v_rcp_f32 v41, v41')
    for j in range(4): A(f'v_cvt_pk_bf16_f32 v{12+j}, {a[2*j]}, {a[2*j+1]}')
    unpack(a, ['v12', 'v13', 'v14', 'v15'])
    for j in range(0, 8, 2): A(f'v_pk_mul_f32 v[{24+j}:{25+j}], v[{24+j}:{25+j}], v[40:41] op_sel:[0,1] op_sel_hi:[1,1]')
    A(f's_mul_i32 s42, s30, 1088\ns_add_u32 s42, s42, {XN}')
    A('v_add_u32 v45, s42, v4')
    for j in range(4): A(f'v_cvt_pk_bf16_f32 v{12+j}, {a[2*j]}, {a[2*j+1]}')
    A('ds_write_b128 v45, v[12:15]')
    kl = opt.get('kl', 2)
    signal(0)
    if kl > 0:
        if kl < 4: A(f's_cmp_ge_u32 s30, {kl}\ns_cbranch_scc1 L_k3')
        kload()
        A('L_k3:')
    A('s_lshl_b32 s43, s59, 2\ns_add_u32 s43, s43, s42\nv_mov_b32 v46, s43')
    A('ds_read_b32 v47, v46')
    unpack(a, ['v12', 'v13', 'v14', 'v15'])
    ln_stats()
    rnd('v41', 'v41')
    A('v_rcp_f32 v41, v41')
    A('s_waitcnt lgkmcnt(0)')
    unpack(['v48', 'v49'], ['v47'])
    A('v_sub_f32 v48, v48, v40\nv_sub_f32 v49, v49, v40\nv_cvt_pk_bf16_f32 v47, v48, v49')
    unpack(['v48', 'v49'], ['v47'])
    A('v_mul_f32 v48, v48, v41\nv_mul_f32 v49, v49, v41\nv_cvt_pk_bf16_f32 v47, v48, v49')
    unpack(['v48', 'v49'], ['v47'])
    A(f's_lshl_b32 s43, s30, 3\ns_add_u32 s43, s43, {HB}\nv_mov_b32 v46, s43')
    A('s_mov_b64 exec, 1\nds_write_b64 v46, v[48:49]\nds_add_u32 v51, v52 offset:4\ns_mov_b64 exec, -1')
    if kl < 4:
        if kl > 0: A(f's_cmp_lt_u32 s30, {kl}\ns_cbranch_scc1 L_gelu')
        spin('L_spk', 12, 1)
        kload()
    A('s_branch L_gelu')
    A('L_noln:')
    A('s_cmp_eq_u32 s30, 7\ns_cbranch_scc1 L_loader')
    kh = opt.get('kh', 6)
    if kh < 7:
        A(f's_cmp_lt_u32 s30, {kh}\ns_cbranch_scc1 L_kh\ns_waitcnt vmcnt(7)')
        signal(0)
        A('s_branch L_gelu\nL_kh:')
    A('s_waitcnt vmcnt(3)')
    signal(0)
    STAMP(2)
    kload()
    A('L_gelu:')
    A('s_waitcnt lgkmcnt(0)\ns_load_dword s33, s[28:29], 0')
    STAMP(4)
    spin('L_spg', 4, 4)
    A(f'v_mov_b32 v46, {HB}')
    A('ds_read_b128 v[24:27], v46\nds_read_b128 v[28:31], v46 offset:16')
    A('s_waitcnt vmcnt(4)')
    unpack(['v32', 'v33', 'v34', 'v35'], ['v16', 'v17'])
    unpack(['v36', 'v37', 'v38', 'v39'], ['v18', 'v19'])
    unpack(['v40', 'v41', 'v42', 'v43'], ['v20', 'v21'])
    c0 = math.sqrt(2 / math.pi)
    A(f'v_mov_b32 v44, {f2h(-2 * c0 * 0.044715 * LOG2E)}\nv_mov_b32 v45, {f2h(-2 * c0 * LOG2E)}')
    A('s_waitcnt lgkmcnt(0)')
    for o in range(8):
        hp = 24 + (o & ~1); sel = o & 1
        acc = 72 + 2 * o
        for j in (0, 2): A(f'v_pk_fma_f32 v[{56+j}:{57+j}], v[{32+j}:{33+j}], v[{hp}:{hp+1}], v[{36+j}:{37+j}] op_sel:[0,{sel},0] op_sel_hi:[1,{sel},1]')
        for j in (0, 2): A(f'v_pk_mul_f32 v[{52+j}:{53+j}], v[{56+j}:{57+j}], v[{56+j}:{57+j}]')
        for j in (0, 2): A(f'v_pk_fma_f32 v[{52+j}:{53+j}], v[{52+j}:{53+j}], v[44:45], v[44:45] op_sel:[0,0,1] op_sel_hi:[1,0,1]')
        for j in (0, 2): A(f'v_pk_mul_f32 v[{52+j}:{53+j}], v[{52+j}:{53+j}], v[{56+j}:{57+j}]')
        for j in range(4): A(f'v_exp_f32 v{52+j}, v{52+j}')
        for j in (0, 2): A(f'v_pk_mul_f32 v[{56+j}:{57+j}], v[{56+j}:{57+j}], v[{40+j}:{41+j}]')
        for j in (0, 2): A(f'v_pk_add_f32 v[{52+j}:{53+j}], v[{52+j}:{53+j}], 1.0 op_sel_hi:[1,0]')
        for j in range(4): A(f'v_rcp_f32 v{52+j}, v{52+j}')
        A(f'v_pk_mul_f32 v[{acc}:{acc+1}], v[56:57], v[52:53]')
        A(f'v_pk_fma_f32 v[{acc}:{acc+1}], v[58:59], v[54:55], v[{acc}:{acc+1}]')
    for o in range(8): A(f'v_add_f32 v{64+o}, v{72+2*o}, v{73+2*o}')
    for o in range(4): A(f'v_permlane32_swap_b32 v{64+o}, v{68+o}')
    for o in range(4): A(f'v_add_f32 v{64+o}, v{64+o}, v{68+o}')
    for o in range(2): A(f'v_permlane16_swap_b32 v{64+o}, v{66+o}')
    for o in range(2): A(f'v_add_f32 v{64+o}, v{64+o}, v{66+o}')
    for m in ('quad_perm:[1,0,3,2]', 'quad_perm:[2,3,0,1]', 'row_ror:4', 'row_ror:8'):
        for o in range(2): A(f'v_add_f32 v{64+o}, v{64+o}, v{64+o} {m}')
    A(f's_lshl_b32 s43, s30, 5\ns_add_u32 s43, s43, {GY}')
    A('v_lshl_add_u32 v46, v2, 3, s43')
    A('s_mov_b32 exec_lo, 0x00010001\ns_mov_b32 exec_hi, 0x00010001')
    A('ds_write_b64 v46, v[64:65]')
    A('s_mov_b64 exec, -1')
    STAMP(5)
    A('s_waitcnt vmcnt(0)')
    A('s_branch L_nogelu')
    A('L_loader:')
    A('s_setprio 2\ns_waitcnt vmcnt(4)')
    signal(0)
    A('s_waitcnt lgkmcnt(0)\ns_load_dword s33, s[28:29], 0')
    A(f'''
    v_lshlrev_b32 v8, 1, v2
    v_xor_b32 v8, v3, v8
    v_lshlrev_b32 v8, 4, v8
    v_lshl_add_u32 v8, v2, 8, v8
    v_add_u32 v8, s37, v8
    v_xor_b32 v9, 128, v8
    s_mov_b32 m0, {VS}''')
    A(f's_waitcnt vmcnt({V0})')
    STAMP(4)
    V1 = opt.get('V1', 1)
    def vgrp():
        for a_ in range(4): A(f'global_load_lds_dwordx4 v{8+(a_&1)}, s[8:9] offset:{1024*a_}{NT}')
        A('s_add_u32 m0, m0, 4096\ns_add_u32 s8, s8, 4096\ns_addc_u32 s9, s9, 0')
    for _ in range(V1): vgrp()
    spin('L_spv', 8, 1)
    STAMP(3)
    A(f's_movk_i32 s43, {8 - V1}')
    A('L_vl:')
    vgrp()
    A(f'''
    s_sub_u32 s43, s43, 1
    s_cmp_eq_u32 s43, 0
    s_cbranch_scc1 L_vd
    s_waitcnt vmcnt({D})
    s_branch L_vl
    L_vd:
    s_waitcnt vmcnt(32)
    s_setprio 0''')
    STAMP(5)
    A('L_nogelu:')
    A(f's_add_u32 s43, s38, {KS}')
    A('v_xor_b32 v46, v2, v3\nv_lshlrev_b32 v46, 4, v46\nv_lshl_add_u32 v46, v3, 8, v46\nv_add_u32 v46, s43, v46')
    A('v_xor_b32 v47, 64, v46\nv_xor_b32 v48, 128, v46\nv_xor_b32 v49, 192, v46')
    for i in range(4): A(f'ds_read_b128 v[{16+4*i}:{19+4*i}], v{46+i}')
    A('''s_xor_b32 s39, s31, 2
    s_xor_b32 s61, s31, 3
    s_cmp_eq_u32 s35, s31
    s_cselect_b32 s39, s39, s58
    s_cselect_b32 s61, s61, s35    ; c_o
    s_lshl_b32 s39, s39, 2
    s_add_u32 s39, s39, s34        ; h_o = k_o*4 + hl''')
    A(f'v_mul_u32_u24 v51, 320, v50\nv_lshl_add_u32 v51, v2, 4, v51\nv_add_u32 v66, {OL}, v51\nv_add_u32 v51, {QL}, v51')
    A(f's_lshl_b32 s43, s30, 8\ns_add_u32 s43, s43, {SC}')
    A('v_lshl_add_u32 v52, v2, 2, v50\nv_lshlrev_b32 v52, 4, v52       ; (g*4+h)*16')
    A('v_add_u32 v53, s43, v52')
    A(f'v_lshrrev_b32 v54, 2, v3\nv_lshl_add_u32 v54, v54, 9, v52\nv_add_u32 v54, {SC}, v54')
    A('v_lshrrev_b32 v60, 2, v0      ; 4g+r')
    A('v_and_b32 v61, 7, v60\nv_xor_b32 v61, s30, v61\nv_lshlrev_b32 v61, 5, v61')
    A('v_lshl_add_u32 v61, v60, 8, v61\nv_lshl_add_u32 v61, v50, 3, v61')
    A(f'v_add_u32 v61, {VS}, v61')
    A(f's_lshl_b32 s43, s31, 16\ns_lshl_b32 s45, s32, 9\ns_add_u32 s43, s43, s45\ns_lshl_b32 s45, s30, 6\ns_add_u32 s43, s43, s45\ns_add_u32 s43, s43, {OR_}')
    A('v_lshlrev_b32 v62, 14, v50\nv_lshl_add_u32 v62, v2, 4, v62\nv_add_u32 v62, s43, v62')
    A(f's_lshl_b32 s43, s39, 14\ns_add_u32 s43, s43, s38\ns_add_u32 s43, s43, {OR_}')
    A('v_add_u32 v63, s43, v4')
    A(f's_mul_i32 s43, s30, 320\ns_add_u32 s43, s43, {OL}\nv_and_b32 v64, 31, v0\nv_lshl_add_u32 v64, v64, 3, s43\nv_lshrrev_b32 v33, 5, v0\nv_lshl_add_u32 v64, v33, 2, v64')
    A(f's_lshl_b32 s43, s30, 5\ns_add_u32 s43, s43, {WO - 128}')
    A('v_lshl_add_u32 v65, v2, 2, v60\nv_lshlrev_b32 v65, 7, v65\nv_lshl_add_u32 v65, v50, 3, v65\nv_add_u32 v65, s43, v65')
    A(f's_lshl_b32 s43, s61, 16\ns_lshl_b32 s45, s30, 14\ns_add_u32 s43, s43, s45\ns_lshl_b32 s45, s39, 6\ns_add_u32 s43, s43, s45\ns_add_u32 s43, s43, {SR - 4*16384}')
    A('v_bfe_u32 v67, v0, 2, 1\nv_lshl_add_u32 v67, v2, 1, v67\nv_lshlrev_b32 v67, 11, v67\nv_lshl_add_u32 v67, v50, 4, v67\nv_add_u32 v67, s43, v67')
    A(f'''s_lshl_b32 s40, s39, 17
    s_lshl_b32 s41, s61, 7
    s_add_u32 s40, s40, s41
    s_and_b32 s41, s30, 3
    s_lshl_b32 s41, s41, 15
    s_add_u32 s40, s40, s41
    v_lshrrev_b32 v10, 3, v0
    v_lshlrev_b32 v10, 10, v10
    v_and_b32 v11, 7, v0
    v_lshl_add_u32 v10, v11, 4, v10
    v_add_u32 v10, s40, v10
    v_add_u32 v11, 7168, v10
    v_add_u32 v12, 14336, v10
    v_add_u32 v13, 21504, v10
    s_lshr_b32 s41, s41, 3
    s_add_u32 m0, s41, {WO}
    v_lshlrev_b32 v14, 2, v50
    v_add_u32 v14, {MX}, v14''')
    def woload(lbl):
        A(f's_cmp_lt_u32 s30, 4\ns_cbranch_scc1 {lbl}')
        for a_ in range(4): A(f'global_load_lds_dwordx4 v{10+a_}, s[12:13] offset:{1024*a_}{NT}')
        A(f'{lbl}:')
    A('s_mov_b32 s46, 0x000f000f\ns_mov_b32 s47, 0x000f000f\ns_mov_b32 s48, 0x00ff00ff\ns_mov_b32 s49, 0x00ff00ff')
    A('s_waitcnt lgkmcnt(0)')
    A('s_mul_i32 s33, s33, 1664525\ns_add_u32 s33, s33, 1013904223')
    A(f's_mov_b32 s44, {f2h(128 ** -0.5)}\ns_mov_b32 s45, {f2h(LOG2E)}')
    A('v_mov_b32 v71, s33')
    STAMP(6)
    A('s_barrier                    ; B2')
    STAMP(7)
    for i in range(4): A(f'ds_read_b128 v[{32+4*i}:{35+4*i}], v51 offset:{64*i}')
    for i in range(4):
        LG(3 - i)
        A(f'v_mfma_f32_16x16x32_bf16 v[56:59], v[{16+4*i}:{19+4*i}], v[{32+4*i}:{35+4*i}], ' + ('0' if i == 0 else 'v[56:59]'))
    A('s_mov_b64 exec, s[46:47]')
    A('v_cvt_pk_bf16_f32 v68, v56, v57\nv_cvt_pk_bf16_f32 v69, v58, v59')
    unpack(['v56', 'v57', 'v58', 'v59'], ['v68', 'v69'])
    for j in (0, 2): A(f'v_pk_mul_f32 v[{56+j}:{57+j}], v[{56+j}:{57+j}], s[44:45] op_sel_hi:[1,0]')
    A('v_cvt_pk_bf16_f32 v68, v56, v57\nv_cvt_pk_bf16_f32 v69, v58, v59')
    unpack(['v56', 'v57', 'v58', 'v59'], ['v68', 'v69'])
    A('ds_write_b128 v53, v[56:59]')
    A('v_max3_f32 v24, v56, v57, v58\nv_max_f32 v24, v24, v59')
    A('ds_max_f32 v14, v24')
    A('s_mov_b64 exec, -1')
    A('s_waitcnt lgkmcnt(0)')
    A('s_barrier                    ; B3')
    A('ds_read_b32 v24, v14\nds_read_b128 v[16:19], v54\nds_read_b128 v[20:23], v54 offset:256')
    LG(2)
    A('v_mul_f32 v24, s45, v24')
    LG(1)
    for j in range(0, 8, 2):
        if j == 4: A('s_waitcnt lgkmcnt(0)')
        A(f'v_pk_fma_f32 v[{16+j}:{17+j}], v[{16+j}:{17+j}], s[44:45], v[24:25] op_sel:[0,1,0] op_sel_hi:[1,1,0] neg_lo:[0,0,1] neg_hi:[0,0,1]')
    for j in range(8): A(f'v_exp_f32 v{16+j}, v{16+j}')
    for j in range(4): A(f'v_cvt_pk_bf16_f32 v{32+j}, v{16+2*j}, v{17+2*j}')
    sp = opt.get('sp', 1)
    def rot():
        for k in range(1, 4):
            for j in range(4): A(f'v_mov_b32 v{32+4*k+j}, v{32+j} row_ror:{16-4*k}')
    tree = ['v_pk_add_f32 v[26:27], v[16:17], v[18:19]\nv_pk_add_f32 v[28:29], v[20:21], v[22:23]',
            'v_pk_add_f32 v[26:27], v[26:27], v[28:29]\nv_add_f32 v26, v26, v27',
            'v_add_f32 v26, v26, v26 row_ror:4\nv_add_f32 v26, v26, v26 row_ror:8',
            'v_mov_b32 v25, v26\nv_permlane16_swap_b32 v26, v25\nv_add_f32 v26, v26, v25',
            'v_mov_b32 v25, v26\nv_permlane32_swap_b32 v26, v25\nv_add_f32 v26, v26, v25\nv_rcp_f32 v27, v26\nv_log_f32 v26, v26']
    if sp >= 1:
        for t_ in tree: A(t_)
    if sp >= 2: rot()
    STAMP(8)
    A('s_waitcnt vmcnt(0)')
    STAMP(9)
    A('s_barrier                    ; B4')
    for e in range(8): A(f'ds_read_b64_tr_b16 v[{72+2*e}:{73+2*e}], v61 offset:{4096*e}')
    if wop == 4: woload('L_wo4')
    if sp < 2: rot()
    for k in range(4):
        if sp == 0: A(tree[k])
        LG(6 - 2 * k)
        A(f'v_mfma_f32_16x16x32_bf16 v[56:59], v[{72+4*k}:{75+4*k}], v[{32+4*k}:{35+4*k}], ' + ('0' if k == 0 else 'v[56:59]'))
    if sp == 0: A(tree[4])
    A('s_mov_b64 exec, s[46:47]')
    for j in (0, 2): A(f'v_pk_mul_f32 v[{56+j}:{57+j}], v[{56+j}:{57+j}], v[26:27] op_sel:[0,1] op_sel_hi:[1,1]')
    A('v_add_f32 v70, v24, v26')
    A('v_cvt_pk_bf16_f32 v68, v56, v57\nv_cvt_pk_bf16_f32 v69, v58, v59')
    A('global_store_dwordx4 v62, v[68:71], s[28:29] sc1')
    A('s_mov_b64 exec, -1')
    STAMP(10)
    A('s_cmp_ge_u32 s30, 4\ns_cbranch_scc1 L_oproj')
    def chk4():
        A('s_waitcnt vmcnt(0)')
        A('v_xor_b32 v19, s33, v19\nv_xor_b32 v23, s33, v23\nv_xor_b32 v27, s33, v27\nv_xor_b32 v31, s33, v31')
        A('v_or3_b32 v19, v19, v23, v27\nv_or_b32 v19, v19, v31\nv_cmp_ne_u32 vcc, 0, v19')
    poll('L_pollo', [(16 + 4 * e, 'v63', 1024 * e) for e in range(4)], chk4)
    if stamps: A('s_mov_b32 s90, s43')
    STAMP(11)
    A('v_max3_f32 v32, v18, v22, v26\nv_max_f32 v32, v32, v30\nv_mov_b32 v33, v32\nv_permlane32_swap_b32 v32, v33\nv_max_f32 v32, v32, v33')
    for e in range(4): A(f'v_sub_f32 v{18+4*e}, v{18+4*e}, v32')
    for e in range(4): A(f'v_exp_f32 v{18+4*e}, v{18+4*e}')
    for e in range(4): unpack([f'v{36+4*e+j}' for j in range(4)], [f'v{16+4*e}', f'v{17+4*e}'])
    A('v_add_f32 v32, v18, v22\nv_add_f32 v33, v26, v30')
    for j in (0, 2): A(f'v_pk_mul_f32 v[{36+j}:{37+j}], v[{36+j}:{37+j}], v[18:19] op_sel_hi:[1,0]')
    A('v_add_f32 v32, v32, v33')
    for e in range(1, 4):
        for j in (0, 2): A(f'v_pk_fma_f32 v[{36+j}:{37+j}], v[{36+4*e+j}:{37+4*e+j}], v[{18+4*e}:{19+4*e}], v[{36+j}:{37+j}] op_sel_hi:[1,0,1]')
    A('v_mov_b32 v33, v32\nv_permlane32_swap_b32 v32, v33\nv_add_f32 v32, v32, v33\nv_rcp_f32 v32, v32')
    A('v_permlane32_swap_b32 v36, v38\nv_permlane32_swap_b32 v37, v39')
    A('v_pk_add_f32 v[36:37], v[36:37], v[38:39]\nv_pk_mul_f32 v[36:37], v[36:37], v[32:33] op_sel_hi:[1,0]')
    A('v_cvt_pk_bf16_f32 v36, v36, v37')
    A('ds_write_b32 v64, v36')
    A('s_waitcnt lgkmcnt(0)')
    A('s_barrier                    ; B5')
    A('s_branch L_fin')
    A('L_oproj:')
    if wop == 5:
        for a_ in range(4): A(f'global_load_lds_dwordx4 v{10+a_}, s[12:13] offset:{1024*a_}{NT}')
    A(f'v_mov_b32 v51, {FL}\nv_mov_b32 v52, 1\ns_waitcnt vmcnt(0)')
    signal(16)
    spin('L_spw', 16, 4)
    STAMP(3)
    for c in range(4):
        for e in range(2): A(f'ds_read_b64_tr_b16 v[{72+4*c+2*e}:{73+4*c+2*e}], v65 offset:{4096*c + 512*e}')
    A('v_mov_b32 v70, s33')
    A('s_waitcnt lgkmcnt(0)')
    A('s_barrier                    ; B5')
    STAMP(11)
    for c in range(4): A(f'ds_read_b128 v[{16+4*c}:{19+4*c}], v66 offset:{64*c}')
    for c in range(4):
        LG(3 - c)
        A(f'v_mfma_f32_16x16x32_bf16 v[56:59], v[{72+4*c}:{75+4*c}], v[{16+4*c}:{19+4*c}], ' + ('0' if c == 0 else 'v[56:59]'))
    A('s_mov_b64 exec, s[48:49]')
    A('v_cndmask_b32 v68, v58, v56, s[46:47]\nv_cndmask_b32 v69, v59, v57, s[46:47]')
    A('global_store_dwordx4 v67, v[68:71], s[28:29] sc1')
    A('L_fin:')
    STAMP(12)
    DUMP(); DIAG('L_dgm')
    A('L_end:')
    A('s_endpgm')
    cur['w8'] = True
    A(f'''
    L_w8:
    s_setprio 3
    s_and_b32 s31, s2, 7           ; x
    s_xor_b32 s58, s31, 1          ; kq
    v_lshrrev_b32 v2, 4, v0
    v_and_b32 v50, 3, v0
    s_lshr_b32 s32, s2, 3
    s_lshl_b32 s59, s31, 5
    s_add_u32 s59, s59, s32
    s_load_dword s38, s[22:23], 0
    s_lshl_b32 s37, s59, 2
    v_lshl_add_u32 v7, v50, 10, s37
    global_load_dword v9, v7, s[4:5]
    ''')
    STAMP(0)
    STAMP(1)
    qc = opt.get('qc', 1)
    A('v_bfe_u32 v6, v0, 2, 2')
    A(f's_lshl_b32 s37, s34, 8\ns_add_u32 s37, s37, {XN}\nv_mul_u32_u24 v11, 1088, {"v6" if qc else "v50"}\nv_lshl_add_u32 v11, v2, 4, v11\nv_add_u32 v11, s37, v11')
    A('v_lshrrev_b32 v12, 2, v0\nv_lshl_add_u32 v12, v2, 2, v12\nv_lshlrev_b32 v12, 7, v12\nv_bfe_u32 v13, v0, 3, 2\nv_lshl_add_u32 v12, v13, 5, v12\nv_lshl_add_u32 v12, v50, 3, v12')
    A('v_xor_b32 v3, 32, v12\nv_xor_b32 v4, 64, v12\nv_xor_b32 v5, 96, v12')
    A(f's_lshl_b32 s36, s58, 15\ns_lshl_b32 s37, s32, 8\ns_add_u32 s37, s36, s37\ns_add_u32 s37, s37, {QR}')
    if qc: A('v_lshlrev_b32 v13, 13, v6\nv_lshl_add_u32 v14, v2, 2, v50\nv_lshl_add_u32 v13, v14, 4, v13\nv_add_u32 v13, s37, v13')
    else: A('v_lshlrev_b32 v13, 13, v50\nv_and_b32 v14, 12, v0\nv_add_u32 v14, v14, v2\nv_lshl_add_u32 v13, v14, 4, v13\nv_add_u32 v13, s37, v13')
    if opt.get('pre'): A('global_load_dword v58, v13, s[28:29]' + (' sc1' if opt['pre'] == 2 else ''))
    A(f's_lshl_b32 s36, s31, 15\ns_lshl_b32 s37, s34, 13\ns_add_u32 s37, s36, s37\ns_add_u32 s37, s37, {QR + 4096}')
    A('v_lshl_add_u32 v14, v0, 4, s37')
    if qc:
        A(f'v_lshrrev_b32 v15, 5, v0\nv_lshlrev_b32 v15, 6, v15\nv_lshl_add_u32 v15, v2, 7, v15\nv_lshl_add_u32 v15, v50, 5, v15\nv_lshl_add_u32 v15, v6, 3, v15\nv_add_u32 v15, {QL}, v15')
        A('s_mov_b32 s46, 0x11111111\ns_mov_b32 s47, 0x11111111\ns_lshl_b64 s[48:49], s[46:47], 1\ns_lshl_b64 s[50:51], s[46:47], 2\ns_lshl_b64 s[52:53], s[46:47], 3')
    else:
        A(f'v_lshrrev_b32 v15, 5, v0\nv_lshlrev_b32 v15, 6, v15\nv_lshl_add_u32 v15, v0, 3, v15\nv_add_u32 v15, {QL}, v15')
        A('s_mov_b32 s46, 0x000f000f\ns_mov_b32 s47, 0x000f000f\ns_lshl_b64 s[48:49], s[46:47], 4\ns_lshl_b64 s[50:51], s[46:47], 8\ns_lshl_b64 s[52:53], s[46:47], 12')
    A('s_waitcnt lgkmcnt(0)')
    A('s_mul_i32 s33, s33, 1664525\ns_add_u32 s33, s33, 1013904223')
    NB = opt.get('nb', 5)
    for j in range(4): A(f'v_bfe_u32 v{60+j}, s33, {NB*j}, {NB}')
    A(f's_movk_i32 s44, {(1<<NB)-1}')
    A(f'v_mov_b32 v54, {FL}\nv_mov_b32 v55, 1')
    spin('L_sp8', 0, 8)
    STAMP(4)
    for c in range(4): A(f'ds_read_b128 v[{16+4*c}:{19+4*c}], v11 offset:{64*c}')
    ad = ['v12', 'v3', 'v4', 'v5']
    for t in range(4):
        for c in range(4):
            for e in range(2):
                r = 64 + 16 * t + 4 * c + 2 * e
                A(f'ds_read_b64_tr_b16 v[{r}:{r+1}], {ad[t]} offset:{WQ + 4096*c + 512*e}')
        if t >= 1:
            LG(8)
            for c in range(4):
                r = 64 + 16 * (t - 1) + 4 * c
                A(f'v_mfma_f32_16x16x32_bf16 v[{32+4*(t-1)}:{35+4*(t-1)}], v[{r}:{r+3}], v[{16+4*c}:{19+4*c}], ' + ('0' if c == 0 else f'v[{32+4*(t-1)}:{35+4*(t-1)}]'))
    for c in range(4):
        LG(6 - 2 * c)
        r = 64 + 48 + 4 * c
        A(f'v_mfma_f32_16x16x32_bf16 v[44:47], v[{r}:{r+3}], v[{16+4*c}:{19+4*c}], ' + ('0' if c == 0 else 'v[44:47]'))
    for t in range(4):
        A(f's_mov_b64 exec, s[{46+2*t}:{47+2*t}]')
        for j in range(4): A(f'v_add_u32 v{24+j}, {1<<(NB-1)}, v{32+4*t+j}')
    A('s_mov_b64 exec, -1')
    for j in range(4): A(f'v_bfi_b32 v{24+j}, s44, v{60+j}, v{24+j}')
    A('global_store_dwordx4 v13, v[24:27], s[28:29] ' + {0: 'sc1', 1: 'sc0 sc1', 2: 'sc1 nt', 3: 'sc0 sc1 nt'}[opt.get('qst', 0)])
    A('ds_write_b32 v54, v55 offset:12')
    STAMP(7)
    def chkq():
        for e in range(8):
            r = 16 + 4 * e
            A(f's_waitcnt vmcnt({7-e})')
            if e == 0: STAMP(6)
            for j in range(4): A(f'v_xor_b32 v{r+j}, v{60+j}, v{r+j}')
            if e == 0: A(f'v_or_b32 v57, v{r}, v{r+1}')
            else: A(f'v_or3_b32 v57, v57, v{r}, v{r+1}')
            A(f'v_or3_b32 v57, v57, v{r+2}, v{r+3}')
        A('v_and_b32 v57, s44, v57')
        A('v_cmp_ne_u32 vcc, 0, v57')
    poll('L_pollq', [(16 + 4 * e, 'v14', 1024 * e - 4096) for e in range(8)], chkq, st=5, nowait=opt.get('qnw'), post=lambda: A('ds_write_b32 v54, v55 offset:8'))
    if stamps: A('s_mov_b32 s90, s43')
    for hh in range(2):
        r = 16 + 4 * hh
        for j in (0, 2): A(f'v_pk_add_f32 v[{r+j}:{r+j+1}], v[{r+j}:{r+j+1}], v[{r+8+j}:{r+9+j}]\nv_pk_add_f32 v[{r+16+j}:{r+17+j}], v[{r+16+j}:{r+17+j}], v[{r+24+j}:{r+25+j}]')
    for hh in range(2):
        r = 16 + 4 * hh
        for j in (0, 2): A(f'v_pk_add_f32 v[{r+j}:{r+j+1}], v[{r+j}:{r+j+1}], v[{r+16+j}:{r+17+j}]')
    A('v_cvt_pk_bf16_f32 v16, v16, v17\nv_cvt_pk_bf16_f32 v17, v18, v19\nv_cvt_pk_bf16_f32 v20, v20, v21\nv_cvt_pk_bf16_f32 v21, v22, v23')
    A('ds_write_b64 v15, v[16:17]\nds_write_b64 v15, v[20:21] offset:640')
    STAMP(8)
    A('s_waitcnt lgkmcnt(0)')
    A('s_barrier                    ; B2')
    A(f'v_lshlrev_b32 v11, 3, v50\nv_add_u32 v11, {GY}, v11')
    for w in range(7): A(f'ds_read_b64 v[{16+2*w}:{17+2*w}], v11 offset:{32*w}')
    A('s_barrier                    ; B3')
    A('s_setprio 0')
    A(f's_lshl_b32 s37, s59, 11\ns_add_u32 s37, s37, {SR}')
    A('v_lshl_add_u32 v14, v0, 4, s37')
    A('s_lshl_b32 s38, s38, 16')
    A('s_waitcnt lgkmcnt(0)')
    for w in range(1, 7): A(f'v_pk_add_f32 v[16:17], v[16:17], v[{16+2*w}:{17+2*w}]')
    A('v_cvt_pk_bf16_f32 v18, v16, v17')
    unpack(['v16', 'v17'], ['v18'])
    A('v_add_f32 v16, s38, v16\nv_add_f32 v17, s38, v17\nv_cvt_pk_bf16_f32 v18, v16, v17')
    unpack(['v16', 'v17'], ['v18'])
    A(f'v_mul_f32 v18, {f2h(-LOG2E)}, v16\nv_mul_f32 v19, {f2h(-LOG2E)}, v17')
    A('v_exp_f32 v18, v18\nv_exp_f32 v19, v19\nv_add_f32 v18, 1.0, v18\nv_add_f32 v19, 1.0, v19\nv_rcp_f32 v18, v18\nv_rcp_f32 v19, v19')
    A('v_mul_f32 v16, v16, v18\nv_mul_f32 v17, v17, v19\nv_cvt_pk_bf16_f32 v18, v16, v17')
    unpack(['v30', 'v31'], ['v18'])
    unpack(['v8', 'v10'], ['v9'])
    A('s_barrier                    ; B4\ns_barrier                    ; B5')
    STAMP(10)
    def chk2():
        A('s_waitcnt vmcnt(0)\nv_cmp_ne_u32 vcc, s33, v19\nv_cmp_ne_u32 s[54:55], s33, v23\ns_or_b64 vcc, vcc, s[54:55]')
    poll('L_polls', [(16, 'v14', 0), (20, 'v14', 1024)], chk2)
    STAMP(11)
    A('v_pk_add_f32 v[16:17], v[16:17], v[20:21]')
    for m in ('row_ror:4', 'row_ror:8'):
        A(f'v_add_f32 v16, v16, v16 {m}\nv_add_f32 v17, v17, v17 {m}')
    xrow([('v16', 'v18'), ('v17', 'v19')], 'v_add_f32')
    A('v_cvt_pk_bf16_f32 v18, v16, v17')
    unpack(['v16', 'v17'], ['v18'])
    A('v_pk_mul_f32 v[16:17], v[16:17], v[30:31]\nv_cvt_pk_bf16_f32 v18, v16, v17')
    unpack(['v16', 'v17'], ['v18'])
    A('v_add_f32 v16, v16, v8\nv_add_f32 v17, v17, v10\nv_cvt_pk_bf16_f32 v18, v16, v17')
    A('s_mov_b64 exec, 15')
    A('global_store_dword v7, v18, s[24:25]')
    A('s_cmp_lg_u32 s2, 0\ns_cbranch_scc1 L_fin8')
    A('s_mov_b64 exec, 1\nv_mov_b32 v20, 0\nv_mov_b32 v21, s33')
    A('global_store_dword v20, v21, s[28:29]')
    A('L_fin8:')
    STAMP(12)
    DUMP(); DIAG('L_dg8')
    A('L_cend:')
    A('s_endpgm')
    A.raw(f'''.section .rodata,"a"
.p2align 6
.amdhsa_kernel {NAME}_kernel
  .amdhsa_next_free_vgpr 128
  .amdhsa_next_free_sgpr 96
  .amdhsa_accum_offset 128
  .amdhsa_group_segment_fixed_size 0
  .amdhsa_kernarg_size 104
  .amdhsa_user_sgpr_count 2
  .amdhsa_user_sgpr_kernarg_segment_ptr 1
  .amdhsa_system_sgpr_workgroup_id_x 1
.end_amdhsa_kernel''')
    return A.text()
if __name__ == '__main__':
    out = sys.argv[1]; stamps = 'stamps' in sys.argv[2:]
    opt = {}
    for k in sys.argv[2:]:
        if k.startswith('diag='): opt['diag'] = tuple(int(x) for x in k[5:].split(','))
        elif '=' in k: opt[k.split('=')[0]] = int(k.split('=')[1])
        else: opt[k] = True
    open(out, 'w').write(gen(stamps, opt))
```

```python
import sys, struct, math
from asmlib import Asm
NAME = 'recurrent_scan__sliding_block_cached__mixer_token_mlp__decode'
def f2h(x): return '0x%08x' % struct.unpack('<I', struct.pack('<f', x))[0]
LOG2E = 1.4426950408889634
def gen(stamps=False, opt=None):
    opt = opt or {}
    NT = '' if opt.get('nont') else ' nt'
    A = Asm()
    WQ, KS, VS, WO = 0, 16384, 49152, 81920
    XN = 98304; QL = XN + 4352; SC = QL + 1280; OL = SC + 2048; HB = OL + 1280; FL = HB + 32; MX = FL + 32; GY = MX + 32
    LDS = GY + 256
    QR, OR_, SR, TS = 0x180000, 0x20000, 0x100000, 0x200000
    SPIN = 20000
    D = opt.get('D', 40); V0 = opt.get('V0', 0); wop = opt.get('wo', 4)
    diag = opt.get('diag'); cur = {'w8': False}
    def STAMP(n):
        if stamps and (not opt.get('lite') or n in (0, 12)): A('s_memrealtime s[%d:%d]' % (64 + 2 * n, 65 + 2 * n))
        if diag and diag[1] == n and ((diag[0] == 8) == cur['w8'] or n == 0): A('s_memrealtime s[92:93]')
    def DIAG(lbl):
        if diag and ((diag[0] == 8) == cur['w8']):
            A(f's_cmp_lg_u32 s30, {diag[0]}\ns_cbranch_scc1 {lbl}_x')
            if not opt.get('dall'): A(f's_cmp_lg_u32 s2, 0\ns_cbranch_scc1 {lbl}_x')
            A(f'{lbl}:\ns_memrealtime s[94:95]\ns_waitcnt lgkmcnt(0)\ns_sub_u32 s94, s94, s92\ns_cmp_lt_u32 s94, 4000\ns_cbranch_scc1 {lbl}\n{lbl}_x:')
    def LG(n): A(f's_waitcnt lgkmcnt({0 if ((stamps and not opt.get("lite")) or diag) else n})')
    def DUMP():
        if stamps:
            A('s_waitcnt lgkmcnt(0)\ns_getreg_b32 s62, hwreg(HW_REG_XCC_ID)\ns_mov_b64 exec, -1\nv_mov_b32 v100, 0')
            for n in range(14): A('v_writelane_b32 v100, s%d, %d' % (64 + 2 * n, n))
            A('v_writelane_b32 v100, s62, 14')
            A('s_lshl_b32 s60, s2, 4\ns_add_u32 s60, s60, s30\ns_lshl_b32 s60, s60, 6\ns_add_u32 s60, s60, %d' % TS)
            A('v_lshl_add_u32 v101, v0, 2, s60\ns_mov_b64 exec, 0xffff\nglobal_store_dword v101, v100, s[28:29]')
    def xrow(pairs, op):
        for sw in ('v_permlane16_swap_b32', 'v_permlane32_swap_b32'):
            for v, t in pairs: A(f'v_mov_b32 {t}, {v}')
            for v, t in pairs: A(f'{sw} {v}, {t}')
            for v, t in pairs: A(f'{op} {v}, {v}, {t}')
    def rnd(d, s): A(f'v_cvt_pk_bf16_f32 {d}, {s}, {s}\nv_lshlrev_b32 {d}, 16, {d}')
    def unpack(dst, src):
        for j, s_ in enumerate(src): A(f'v_lshlrev_b32 {dst[2*j]}, 16, {s_}\nv_and_b32 {dst[2*j+1]}, 0xffff0000, {s_}')
    def poll(lbl, loads, check, st=None, nowait=False, post=None):
        A(f's_movk_i32 s43, {SPIN}')
        if not nowait: A('s_waitcnt vmcnt(0)')
        if st is not None: STAMP(st)
        A(f'{lbl}:')
        for r, addr, off in loads: A(f'global_load_dwordx4 v[{r}:{r+3}], {addr}, s[28:29] offset:{off} sc1')
        if post: post()
        A(f's_sub_u32 s43, s43, 1\ns_cbranch_scc1 {lbl}_done')
        check()
        A(f's_cbranch_vccnz {lbl}')
        A(f'{lbl}_done:\ns_waitcnt vmcnt(0)')
    def spin(lbl, off, cnt):
        A(f'v_mov_b32 v46, {FL}\ns_movk_i32 s43, {SPIN}\n{lbl}:\nds_read_b32 v47, v46 offset:{off}\ns_sub_u32 s43, s43, 1\ns_cbranch_scc1 {lbl}_d\ns_waitcnt lgkmcnt(0)')
        A(f'v_cmp_gt_u32 vcc, {cnt}, v47\ns_cbranch_vccnz {lbl}\n{lbl}_d:')
    def signal(off): A(f's_mov_b64 exec, 1\nds_add_u32 v51, v52 offset:{off}\ns_mov_b64 exec, -1')
    A.raw(f'; @launch grid=(256,1,1) block=(576,1,1) lds={LDS}')
    A.raw('.amdgcn_target "amdgcn-amd-amdhsa--gfx950"\n.text')
    A.raw(f'.globl {NAME}_kernel\n.p2align 8\n.type {NAME}_kernel,@function\n{NAME}_kernel:')
    KQ = {0: 's_xor_b32 s58, s31, 1', 1: 's_lshl1_add_u32 s58, s34, 1\ns_xor_b32 s58, s58, s31', 2: 's_lshl1_add_u32 s58, s34, 1\ns_and_b32 s58, s58, 5\ns_xor_b32 s58, s58, s31'}[opt.get('kq', 0)]
    ROT = {0: 's_lshl_b32 s37, s37, 15', 1: 's_lshl3_add_u32 s37, s37, s35\ns_lshl_b32 s37, s37, 12', 2: 's_lshl3_add_u32 s37, s37, s31\ns_lshl_b32 s37, s37, 12'}[opt.get('rot', 1)]
    def kload():
        for a_ in range(4): A(f'global_load_lds_dwordx4 v{7+a_}, s[6:7] offset:{1024*a_}{NT}')
    def params():
        A('global_load_dwordx2 v[16:17], v6, s[16:17]\nglobal_load_dwordx2 v[18:19], v6, s[18:19]\ns_waitcnt lgkmcnt(0)\nglobal_load_dwordx2 v[20:21], v6, s[20:21]')
    A(f'''
    s_load_dwordx16 s[4:19], s[0:1], 0
    v_lshrrev_b32 v1, 6, v0
    s_lshr_b32 s34, s2, 6
    v_readfirstlane_b32 s30, v1
    s_cmp_ge_u32 s34, 4
    s_cbranch_scc1 L_end
    s_cmp_eq_u32 s30, 8
    s_cbranch_scc0 L_main
    s_getpc_b64 s[56:57]
    L_pc:
    v_and_b32 v0, 63, v0
    v_lshlrev_b32 v4, 7, v0
    v_min_u32 v4, L_cend-L_pc, v4
    global_load_dword v59, v4, s[56:57]     ; code prefetch into L2
    s_branch L_stub
    L_main:
    ''')
    STAMP(0)
    A(f'''
    s_load_dwordx8 s[20:27], s[0:1], 64
    v_lshlrev_b32 v4, 4, v0        ; tid*16
    s_and_b32 s31, s2, 7           ; x
    s_bfe_u32 s35, s2, 0x30003
    {KQ}
    s_cmp_ge_u32 s30, 4
    s_cbranch_scc1 L_wq
    s_waitcnt lgkmcnt(0)
    global_load_dwordx4 v[12:15], v4, s[4:5]
    s_branch L_kk
    L_wq:
    v_lshrrev_b32 v6, 3, v0
    s_lshl3_add_u32 s36, s58, s35
    v_lshl_add_u32 v7, s34, 7, v6
    v_and_b32 v6, 2, v6
    v_lshl_or_b32 v6, v1, 2, v6
    v_xor_b32 v6, v6, v0
    v_and_b32 v6, 7, v6
    v_lshl_add_u32 v6, s36, 3, v6
    v_lshl_add_u32 v7, v7, 9, v6
    v_lshlrev_b32 v7, 4, v7
    s_lshl_b32 m0, s30, 10
    s_waitcnt lgkmcnt(0)
    global_load_lds_dwordx4 v7, s[10:11]{NT}
    s_addk_i32 m0, 4096
    v_add_u32 v7, 0x40000, v7
    global_load_lds_dwordx4 v7, s[10:11]{NT}
    s_addk_i32 m0, 4096
    v_add_u32 v7, 0x40000, v7
    global_load_lds_dwordx4 v7, s[10:11]{NT}
    s_addk_i32 m0, -12288
    v_add_u32 v7, 0xfff40000, v7
    global_load_lds_dwordx4 v7, s[10:11]{NT}
    L_kk:
    ''')
    STAMP(1)
    A(f'''
    s_lshl3_add_u32 s37, s34, s31
    s_lshl2_add_u32 s37, s37, 3
    s_lshl3_add_u32 s37, s37, s35
    s_lshl_b32 s38, s30, 12        ; w*4096
    v_and_b32 v0, 63, v0
    v_lshrrev_b32 v2, 4, v0        ; g
    v_xor_b32 v7, v2, v0
    {ROT}
    s_xor_b32 s40, s37, s38
    v_lshl_add_u32 v7, v7, 4, s40
    s_add_u32 m0, s38, {KS}
    v_xor_b32 v8, 64, v7
    v_xor_b32 v9, 128, v7
    v_xor_b32 v10, 64, v9
    v_lshrrev_b32 v6, 1, v4        ; w*512 + l*8
    s_cmp_eq_u32 s30, 7
    s_barrier
    s_cbranch_scc1 {'L_go' if opt.get('kh', 7) == 8 else 'L_k7'}
    global_load_dwordx2 v[16:17], v6, s[16:17]
    global_load_dwordx2 v[18:19], v6, s[18:19]
    global_load_dwordx2 v[20:21], v6, s[20:21]
    s_cmp_lt_u32 s30, {opt.get('kh', 7)}
    s_cbranch_scc1 L_go
    L_k7:
    ''')
    kload()
    A(f'''
    s_branch L_go
    L_stub:
    v_lshlrev_b32 v46, 2, v0
    v_bfe_i32 v48, v0, 3, 1
    v_add_u32 v46, {FL}, v46
    v_lshlrev_b32 v48, 23, v48
    ds_write_b32 v46, v48
    s_waitcnt lgkmcnt(0)
    s_barrier                    ; B0
    s_load_dwordx2 s[28:29], s[0:1], 96
    s_load_dwordx8 s[20:27], s[0:1], 64
    s_waitcnt lgkmcnt(0)
    s_load_dword s33, s[28:29], 0
    s_branch L_w8
    L_go:
    ''')
    STAMP(2)
    A(f'''
    s_load_dwordx2 s[28:29], s[0:1], 96
    v_and_b32 v3, 15, v0           ; n
    v_and_b32 v4, 0x3ff, v4        ; l*16
    v_and_b32 v50, 3, v0
    v_mov_b32 v51, {FL}
    v_mov_b32 v52, 1
    s_lshr_b32 s32, s2, 3
    s_lshl_b32 s59, s31, 5
    s_add_u32 s59, s59, s32
    s_cmp_ge_u32 s30, 4
    s_cbranch_scc1 L_noln
    s_waitcnt vmcnt(3)
    ''')
    STAMP(3)
    a = ['v%d' % (24 + j) for j in range(8)]
    def ln_stats():
        A('v_readfirstlane_b32 s44, v24')
        for j in range(0, 8, 2): A(f'v_pk_add_f32 v[{32+j}:{33+j}], v[{24+j}:{25+j}], s[44:45] op_sel_hi:[1,0] neg_lo:[0,1] neg_hi:[0,1]')
        A('v_pk_add_f32 v[40:41], v[32:33], v[34:35]\nv_pk_mul_f32 v[42:43], v[32:33], v[32:33]\nv_pk_add_f32 v[44:45], v[36:37], v[38:39]\nv_pk_fma_f32 v[42:43], v[34:35], v[34:35], v[42:43]')
        A('v_pk_add_f32 v[40:41], v[40:41], v[44:45]\nv_pk_fma_f32 v[42:43], v[36:37], v[36:37], v[42:43]\nv_add_f32 v40, v40, v41\nv_pk_fma_f32 v[42:43], v[38:39], v[38:39], v[42:43]\nv_add_f32 v41, v42, v43')
        for m in ('quad_perm:[1,0,3,2]', 'quad_perm:[2,3,0,1]', 'row_ror:4', 'row_ror:8'):
            A(f'v_add_f32 v40, v40, v40 {m}\nv_add_f32 v41, v41, v41 {m}')
        xrow([('v40', 'v42'), ('v41', 'v43')], 'v_add_f32')
        A(f'v_mul_f32 v40, {f2h(1/512)}, v40\nv_mul_f32 v41, {f2h(1/512)}, v41')
        A('v_fma_f32 v41, -v40, v40, v41\nv_add_f32 v40, s44, v40\nv_max_f32 v41, 0, v41')
        A('v_cvt_pk_bf16_f32 v42, v40, v41\nv_and_b32 v41, 0xffff0000, v42\nv_lshlrev_b32 v40, 16, v42')
        A(f'v_add_f32 v41, {f2h(1e-5)}, v41')
        rnd('v41', 'v41')
        A('v_sqrt_f32 v41, v41')
    unpack(a, ['v12', 'v13', 'v14', 'v15'])
    ln_stats()
    for j in range(0, 8, 2): A(f'v_pk_add_f32 v[{24+j}:{25+j}], v[{24+j}:{25+j}], v[40:41] op_sel_hi:[1,0] neg_lo:[0,1] neg_hi:[0,1]')
    rnd('v41', 'v41')
    A('v_rcp_f32 v41, v41')
    for j in range(4): A(f'v_cvt_pk_bf16_f32 v{12+j}, {a[2*j]}, {a[2*j+1]}')
    unpack(a, ['v12', 'v13', 'v14', 'v15'])
    for j in range(0, 8, 2): A(f'v_pk_mul_f32 v[{24+j}:{25+j}], v[{24+j}:{25+j}], v[40:41] op_sel:[0,1] op_sel_hi:[1,1]')
    A(f's_mul_i32 s42, s30, 1088\ns_add_u32 s42, s42, {XN}')
    A('v_add_u32 v45, s42, v4')
    for j in range(4): A(f'v_cvt_pk_bf16_f32 v{12+j}, {a[2*j]}, {a[2*j+1]}')
    A('ds_write_b128 v45, v[12:15]')
    kl = opt.get('kl', 2)
    signal(0)
    if kl > 0:
        if kl < 4: A(f's_cmp_ge_u32 s30, {kl}\ns_cbranch_scc1 L_k3')
        kload()
        A('L_k3:')
    A('s_lshl_b32 s43, s59, 2\ns_add_u32 s43, s43, s42\nv_mov_b32 v46, s43')
    A('ds_read_b32 v47, v46')
    unpack(a, ['v12', 'v13', 'v14', 'v15'])
    ln_stats()
    rnd('v41', 'v41')
    A('v_rcp_f32 v41, v41')
    A('s_waitcnt lgkmcnt(0)')
    unpack(['v48', 'v49'], ['v47'])
    A('v_sub_f32 v48, v48, v40\nv_sub_f32 v49, v49, v40\nv_cvt_pk_bf16_f32 v47, v48, v49')
    unpack(['v48', 'v49'], ['v47'])
    A('v_mul_f32 v48, v48, v41\nv_mul_f32 v49, v49, v41\nv_cvt_pk_bf16_f32 v47, v48, v49')
    unpack(['v48', 'v49'], ['v47'])
    A(f's_lshl_b32 s43, s30, 3\ns_add_u32 s43, s43, {HB}\nv_mov_b32 v46, s43')
    A('s_mov_b64 exec, 1\nds_write_b64 v46, v[48:49]\nds_add_u32 v51, v52 offset:4\ns_mov_b64 exec, -1')
    if kl < 4:
        if kl > 0: A(f's_cmp_lt_u32 s30, {kl}\ns_cbranch_scc1 L_gelu')
        spin('L_spk', 12, 1)
        kload()
    A('s_branch L_gelu')
    A('L_noln:')
    A('s_cmp_eq_u32 s30, 7\ns_cbranch_scc1 L_loader')
    kh = opt.get('kh', 7)
    if kh < 7:
        A(f's_cmp_lt_u32 s30, {kh}\ns_cbranch_scc1 L_kh\ns_waitcnt vmcnt(7)')
        signal(0)
        A('s_branch L_gelu\nL_kh:')
    A('s_waitcnt vmcnt(3)')
    signal(0)
    STAMP(2)
    kload()
    A('L_gelu:')
    A('s_waitcnt lgkmcnt(0)\ns_load_dword s33, s[28:29], 0')
    STAMP(4)
    spin('L_spg', 4, 4)
    A(f'v_mov_b32 v46, {HB}')
    A('ds_read_b128 v[24:27], v46\nds_read_b128 v[28:31], v46 offset:16')
    A('s_waitcnt vmcnt(4)')
    unpack(['v32', 'v33', 'v34', 'v35'], ['v16', 'v17'])
    unpack(['v36', 'v37', 'v38', 'v39'], ['v18', 'v19'])
    unpack(['v40', 'v41', 'v42', 'v43'], ['v20', 'v21'])
    c0 = math.sqrt(2 / math.pi)
    A(f'v_mov_b32 v44, {f2h(-2 * c0 * 0.044715 * LOG2E)}\nv_mov_b32 v45, {f2h(-2 * c0 * LOG2E)}')
    A('s_waitcnt lgkmcnt(0)')
    for o in range(8):
        hp = 24 + (o & ~1); sel = o & 1
        acc = 72 + 2 * o
        for j in (0, 2): A(f'v_pk_fma_f32 v[{56+j}:{57+j}], v[{32+j}:{33+j}], v[{hp}:{hp+1}], v[{36+j}:{37+j}] op_sel:[0,{sel},0] op_sel_hi:[1,{sel},1]')
        for j in (0, 2): A(f'v_pk_mul_f32 v[{52+j}:{53+j}], v[{56+j}:{57+j}], v[{56+j}:{57+j}]')
        for j in (0, 2): A(f'v_pk_fma_f32 v[{52+j}:{53+j}], v[{52+j}:{53+j}], v[44:45], v[44:45] op_sel:[0,0,1] op_sel_hi:[1,0,1]')
        for j in (0, 2): A(f'v_pk_mul_f32 v[{52+j}:{53+j}], v[{52+j}:{53+j}], v[{56+j}:{57+j}]')
        for j in range(4): A(f'v_exp_f32 v{52+j}, v{52+j}')
        for j in (0, 2): A(f'v_pk_mul_f32 v[{56+j}:{57+j}], v[{56+j}:{57+j}], v[{40+j}:{41+j}]')
        for j in (0, 2): A(f'v_pk_add_f32 v[{52+j}:{53+j}], v[{52+j}:{53+j}], 1.0 op_sel_hi:[1,0]')
        for j in range(4): A(f'v_rcp_f32 v{52+j}, v{52+j}')
        A(f'v_pk_mul_f32 v[{acc}:{acc+1}], v[56:57], v[52:53]')
        A(f'v_pk_fma_f32 v[{acc}:{acc+1}], v[58:59], v[54:55], v[{acc}:{acc+1}]')
    for o in range(8): A(f'v_add_f32 v{64+o}, v{72+2*o}, v{73+2*o}')
    for o in range(4): A(f'v_permlane32_swap_b32 v{64+o}, v{68+o}')
    for o in range(4): A(f'v_add_f32 v{64+o}, v{64+o}, v{68+o}')
    for o in range(2): A(f'v_permlane16_swap_b32 v{64+o}, v{66+o}')
    for o in range(2): A(f'v_add_f32 v{64+o}, v{64+o}, v{66+o}')
    for m in ('quad_perm:[1,0,3,2]', 'quad_perm:[2,3,0,1]', 'row_ror:4', 'row_ror:8'):
        for o in range(2): A(f'v_add_f32 v{64+o}, v{64+o}, v{64+o} {m}')
    A(f's_lshl_b32 s43, s30, 5\ns_add_u32 s43, s43, {GY}')
    A('v_lshl_add_u32 v46, v2, 3, s43')
    A('s_mov_b32 exec_lo, 0x00010001\ns_mov_b32 exec_hi, 0x00010001')
    A('ds_write_b64 v46, v[64:65]')
    A('s_mov_b64 exec, -1')
    STAMP(5)
    A('s_waitcnt vmcnt(0)')
    A('s_branch L_nogelu')
    A('L_loader:')
    A('s_setprio 2\ns_waitcnt vmcnt(%d)' % (0 if kh == 8 else 4))
    signal(0)
    if kh == 8: kload()
    A('s_waitcnt lgkmcnt(0)\ns_load_dword s33, s[28:29], 0')
    A(f'''
    v_lshlrev_b32 v8, 1, v2
    v_xor_b32 v8, v3, v8
    v_lshlrev_b32 v8, 4, v8
    v_lshl_add_u32 v8, v2, 8, v8
    v_add_u32 v8, s37, v8
    v_xor_b32 v9, 128, v8
    s_mov_b32 m0, {VS}''')
    A(f's_waitcnt vmcnt({V0})')
    STAMP(4)
    V1 = opt.get('V1', 2)
    vg = [0]
    def vgrp():
        for a_ in range(4): A(f'global_load_lds_dwordx4 v{8+(a_&1)}, s[8:9] offset:{1024*a_}{NT}')
        j = vg[0]; vg[0] += 1
        if j < 7: A(f's_addk_i32 m0, 4096\nv_xor_b32 v8, {(j ^ (j + 1)) << 12}, v8\nv_xor_b32 v9, {(j ^ (j + 1)) << 12}, v9')
    for _ in range(V1): vgrp()
    A('L_nogelu:')
    A(f's_add_u32 s43, s38, {KS}')
    A('v_xor_b32 v46, v2, v3\nv_lshlrev_b32 v46, 4, v46\nv_lshl_add_u32 v46, v3, 8, v46\nv_add_u32 v46, s43, v46')
    A('v_xor_b32 v47, 64, v46\nv_xor_b32 v48, 128, v46\nv_xor_b32 v49, 192, v46')
    for i in range(4): A(f'ds_read_b128 v[{16+4*i}:{19+4*i}], v{46+i}')
    A('''s_xor_b32 s39, s31, 2
    s_xor_b32 s58, s31, 1
    s_xor_b32 s61, s31, 3
    s_cmp_eq_u32 s35, s31
    s_cselect_b32 s39, s39, s58
    s_cselect_b32 s61, s61, s35    ; c_o
    s_lshl_b32 s39, s39, 2
    s_add_u32 s39, s39, s34        ; h_o = k_o*4 + hl''')
    A(f'v_mul_u32_u24 v51, 320, v50\nv_lshl_add_u32 v51, v2, 4, v51\nv_add_u32 v66, {OL}, v51\nv_add_u32 v51, {QL}, v51')
    A(f's_lshl_b32 s43, s30, 8\ns_add_u32 s43, s43, {SC}')
    A('v_lshl_add_u32 v52, v2, 2, v50\nv_lshlrev_b32 v52, 4, v52       ; (g*4+h)*16')
    A('v_add_u32 v53, s43, v52')
    A(f'v_lshrrev_b32 v54, 2, v3\nv_lshl_add_u32 v54, v54, 9, v52\nv_add_u32 v54, {SC}, v54')
    A('v_lshrrev_b32 v60, 2, v0      ; 4g+r')
    A('v_and_b32 v61, 7, v60\nv_xor_b32 v61, s30, v61\nv_lshlrev_b32 v61, 5, v61')
    A('v_lshl_add_u32 v61, v60, 8, v61\nv_lshl_add_u32 v61, v50, 3, v61')
    A(f'v_add_u32 v61, {VS}, v61')
    A(f's_lshl_b32 s43, s31, 16\ns_lshl_b32 s45, s32, 9\ns_add_u32 s43, s43, s45\ns_lshl_b32 s45, s30, 6\ns_add_u32 s43, s43, s45\ns_add_u32 s43, s43, {OR_}')
    A('v_lshlrev_b32 v62, 14, v50\nv_lshl_add_u32 v62, v2, 4, v62\nv_add_u32 v62, s43, v62')
    A(f's_lshl_b32 s43, s39, 14\ns_add_u32 s43, s43, s38\ns_add_u32 s43, s43, {OR_}')
    A('v_add_u32 v63, s43, v4')
    A(f's_mul_i32 s43, s30, 320\ns_add_u32 s43, s43, {OL}\nv_and_b32 v64, 31, v0\nv_lshl_add_u32 v64, v64, 3, s43\nv_lshrrev_b32 v33, 5, v0\nv_lshl_add_u32 v64, v33, 2, v64')
    A(f's_lshl_b32 s43, s30, 5\ns_add_u32 s43, s43, {WO - 128}')
    A('v_lshl_add_u32 v65, v2, 2, v60\nv_lshlrev_b32 v65, 7, v65\nv_lshl_add_u32 v65, v50, 3, v65\nv_add_u32 v65, s43, v65')
    A(f's_lshl_b32 s43, s61, 16\ns_lshl_b32 s45, s30, 14\ns_add_u32 s43, s43, s45\ns_lshl_b32 s45, s39, 6\ns_add_u32 s43, s43, s45\ns_add_u32 s43, s43, {SR - 4*16384}')
    A('v_bfe_u32 v67, v0, 2, 1\nv_lshl_add_u32 v67, v2, 1, v67\nv_lshlrev_b32 v67, 11, v67\nv_lshl_add_u32 v67, v50, 4, v67\nv_add_u32 v67, s43, v67')
    A(f'''s_lshl_b32 s40, s39, 17
    s_lshl_b32 s41, s61, 7
    s_add_u32 s40, s40, s41
    s_and_b32 s41, s30, 3
    s_lshl_b32 s41, s41, 15
    s_add_u32 s40, s40, s41
    v_lshrrev_b32 v10, 3, v0
    v_lshlrev_b32 v10, 10, v10
    v_and_b32 v11, 7, v0
    v_lshl_add_u32 v10, v11, 4, v10
    v_add_u32 v10, s40, v10
    v_add_u32 v11, 7168, v10
    v_add_u32 v12, 14336, v10
    v_add_u32 v13, 21504, v10
    s_lshr_b32 s41, s41, 3
    v_lshlrev_b32 v14, 2, v50
    v_add_u32 v14, {MX}, v14''')
    def woload(lbl):
        A(f's_cmp_lt_u32 s30, 4\ns_cbranch_scc1 {lbl}')
        for a_ in range(4): A(f'global_load_lds_dwordx4 v{10+a_}, s[12:13] offset:{1024*a_}{NT}')
        A(f'{lbl}:')
    A('s_mov_b32 s46, 0x000f000f\ns_mov_b32 s47, 0x000f000f\ns_mov_b32 s48, 0x00ff00ff\ns_mov_b32 s49, 0x00ff00ff')
    A('s_waitcnt lgkmcnt(0)')
    A('s_mul_i32 s33, s33, 1664525\ns_add_u32 s33, s33, 1013904223')
    A(f's_mov_b32 s44, {f2h(128 ** -0.5)}\ns_mov_b32 s45, {f2h(LOG2E)}')
    A('v_mov_b32 v71, s33')
    A('s_cmp_lg_u32 s30, 7\ns_cbranch_scc1 L_b2')
    VA = opt.get('VA', 4)
    spin('L_spv', 8, 1)
    STAMP(3)
    for _ in range(VA): vgrp()
    if V1 + VA < 8:
        spin('L_spv2', 8, 2)
        for _ in range(8 - V1 - VA): vgrp()
    A('s_setprio 0')
    STAMP(5)
    A('L_b2:')
    A(f's_add_u32 m0, s41, {WO}')
    STAMP(6)
    A('s_barrier                    ; B2')
    STAMP(7)
    for i in range(4): A(f'ds_read_b128 v[{32+4*i}:{35+4*i}], v51 offset:{64*i}')
    for i in range(4):
        LG(3 - i)
        A(f'v_mfma_f32_16x16x32_bf16 v[56:59], v[{16+4*i}:{19+4*i}], v[{32+4*i}:{35+4*i}], ' + ('0' if i == 0 else 'v[56:59]'))
    A('s_mov_b64 exec, s[46:47]')
    A('v_cvt_pk_bf16_f32 v68, v56, v57\nv_cvt_pk_bf16_f32 v69, v58, v59')
    unpack(['v56', 'v57', 'v58', 'v59'], ['v68', 'v69'])
    for j in (0, 2): A(f'v_pk_mul_f32 v[{56+j}:{57+j}], v[{56+j}:{57+j}], s[44:45] op_sel_hi:[1,0]')
    A('v_cvt_pk_bf16_f32 v68, v56, v57\nv_cvt_pk_bf16_f32 v69, v58, v59')
    unpack(['v56', 'v57', 'v58', 'v59'], ['v68', 'v69'])
    A('ds_write_b128 v53, v[56:59]')
    A('v_max3_f32 v24, v56, v57, v58\nv_max_f32 v24, v24, v59')
    A('ds_max_f32 v14, v24')
    A('s_mov_b64 exec, -1')
    A('s_waitcnt lgkmcnt(0)')
    A('s_barrier                    ; B3')
    A('ds_read_b32 v24, v14\nds_read_b128 v[16:19], v54\nds_read_b128 v[20:23], v54 offset:256')
    LG(2)
    A('v_mul_f32 v24, s45, v24')
    LG(1)
    for j in range(0, 8, 2):
        if j == 4: A('s_waitcnt lgkmcnt(0)')
        A(f'v_pk_fma_f32 v[{16+j}:{17+j}], v[{16+j}:{17+j}], s[44:45], v[24:25] op_sel:[0,1,0] op_sel_hi:[1,1,0] neg_lo:[0,0,1] neg_hi:[0,0,1]')
    for j in range(8): A(f'v_exp_f32 v{16+j}, v{16+j}')
    for j in range(4): A(f'v_cvt_pk_bf16_f32 v{32+j}, v{16+2*j}, v{17+2*j}')
    sp = opt.get('sp', 1)
    def rot():
        for k in range(1, 4):
            for j in range(4): A(f'v_mov_b32 v{32+4*k+j}, v{32+j} row_ror:{16-4*k}')
    tree = ['v_pk_add_f32 v[26:27], v[16:17], v[18:19]\nv_pk_add_f32 v[28:29], v[20:21], v[22:23]',
            'v_pk_add_f32 v[26:27], v[26:27], v[28:29]\nv_add_f32 v26, v26, v27',
            'v_add_f32 v26, v26, v26 row_ror:4\nv_add_f32 v26, v26, v26 row_ror:8',
            'v_mov_b32 v25, v26\nv_permlane16_swap_b32 v26, v25\nv_add_f32 v26, v26, v25',
            'v_mov_b32 v25, v26\nv_permlane32_swap_b32 v26, v25\nv_add_f32 v26, v26, v25\nv_rcp_f32 v27, v26\nv_log_f32 v26, v26']
    if sp >= 1:
        for t_ in tree: A(t_)
    if sp >= 2: rot()
    STAMP(8)
    A('s_waitcnt vmcnt(0)')
    STAMP(9)
    A('s_barrier                    ; B4')
    for e in range(8): A(f'ds_read_b64_tr_b16 v[{72+2*e}:{73+2*e}], v61 offset:{4096*e}')
    if wop == 4: woload('L_wo4')
    if sp < 2: rot()
    for k in range(4):
        if sp == 0: A(tree[k])
        LG(6 - 2 * k)
        A(f'v_mfma_f32_16x16x32_bf16 v[56:59], v[{72+4*k}:{75+4*k}], v[{32+4*k}:{35+4*k}], ' + ('0' if k == 0 else 'v[56:59]'))
    if sp == 0: A(tree[4])
    A('s_mov_b64 exec, s[46:47]')
    for j in (0, 2): A(f'v_pk_mul_f32 v[{56+j}:{57+j}], v[{56+j}:{57+j}], v[26:27] op_sel:[0,1] op_sel_hi:[1,1]')
    A('v_add_f32 v70, v24, v26')
    A('v_cvt_pk_bf16_f32 v68, v56, v57\nv_cvt_pk_bf16_f32 v69, v58, v59')
    A('global_store_dwordx4 v62, v[68:71], s[28:29] sc1')
    A('s_mov_b64 exec, -1')
    STAMP(10)
    A('s_cmp_ge_u32 s30, 4\ns_cbranch_scc1 L_oproj')
    def chk4():
        A('s_waitcnt vmcnt(0)')
        A('v_xor_b32 v19, s33, v19\nv_xor_b32 v23, s33, v23\nv_xor_b32 v27, s33, v27\nv_xor_b32 v31, s33, v31')
        A('v_or3_b32 v19, v19, v23, v27\nv_or_b32 v19, v19, v31\nv_cmp_ne_u32 vcc, 0, v19')
    poll('L_pollo', [(16 + 4 * e, 'v63', 1024 * e) for e in range(4)], chk4)
    if stamps: A('s_mov_b32 s90, s43')
    STAMP(11)
    A('v_max3_f32 v32, v18, v22, v26\nv_max_f32 v32, v32, v30\nv_mov_b32 v33, v32\nv_permlane32_swap_b32 v32, v33\nv_max_f32 v32, v32, v33')
    for e in range(4): A(f'v_sub_f32 v{18+4*e}, v{18+4*e}, v32')
    for e in range(4): A(f'v_exp_f32 v{18+4*e}, v{18+4*e}')
    for e in range(4): unpack([f'v{36+4*e+j}' for j in range(4)], [f'v{16+4*e}', f'v{17+4*e}'])
    A('v_add_f32 v32, v18, v22\nv_add_f32 v33, v26, v30')
    for j in (0, 2): A(f'v_pk_mul_f32 v[{36+j}:{37+j}], v[{36+j}:{37+j}], v[18:19] op_sel_hi:[1,0]')
    A('v_add_f32 v32, v32, v33')
    for e in range(1, 4):
        for j in (0, 2): A(f'v_pk_fma_f32 v[{36+j}:{37+j}], v[{36+4*e+j}:{37+4*e+j}], v[{18+4*e}:{19+4*e}], v[{36+j}:{37+j}] op_sel_hi:[1,0,1]')
    A('v_mov_b32 v33, v32\nv_permlane32_swap_b32 v32, v33\nv_add_f32 v32, v32, v33\nv_rcp_f32 v32, v32')
    A('v_permlane32_swap_b32 v36, v38\nv_permlane32_swap_b32 v37, v39')
    A('v_pk_add_f32 v[36:37], v[36:37], v[38:39]\nv_pk_mul_f32 v[36:37], v[36:37], v[32:33] op_sel_hi:[1,0]')
    A('v_cvt_pk_bf16_f32 v36, v36, v37')
    A('ds_write_b32 v64, v36')
    A('s_waitcnt lgkmcnt(0)')
    A('s_barrier                    ; B5')
    A('s_branch L_fin')
    A('L_oproj:')
    if wop == 5:
        for a_ in range(4): A(f'global_load_lds_dwordx4 v{10+a_}, s[12:13] offset:{1024*a_}{NT}')
    A(f'v_mov_b32 v51, {FL}\nv_mov_b32 v52, 1\ns_waitcnt vmcnt(0)')
    signal(16)
    spin('L_spw', 16, 4)
    STAMP(3)
    for c in range(4):
        for e in range(2): A(f'ds_read_b64_tr_b16 v[{72+4*c+2*e}:{73+4*c+2*e}], v65 offset:{4096*c + 512*e}')
    A('v_mov_b32 v70, s33')
    A('s_waitcnt lgkmcnt(0)')
    A('s_barrier                    ; B5')
    STAMP(11)
    for c in range(4): A(f'ds_read_b128 v[{16+4*c}:{19+4*c}], v66 offset:{64*c}')
    for c in range(4):
        LG(3 - c)
        A(f'v_mfma_f32_16x16x32_bf16 v[56:59], v[{72+4*c}:{75+4*c}], v[{16+4*c}:{19+4*c}], ' + ('0' if c == 0 else 'v[56:59]'))
    A('s_mov_b64 exec, s[48:49]')
    A('v_cndmask_b32 v68, v58, v56, s[46:47]\nv_cndmask_b32 v69, v59, v57, s[46:47]')
    A('global_store_dwordx4 v67, v[68:71], s[28:29] sc1')
    if opt.get('b6'):
        A('s_waitcnt vmcnt(0)')
        signal(20)
    A('L_fin:')
    STAMP(12)
    DUMP(); DIAG('L_dgm')
    A('L_end:')
    A('s_endpgm')
    cur['w8'] = True
    A(f'''
    L_w8:
    s_setprio 3
    s_and_b32 s31, s2, 7           ; x
    {KQ}
    v_lshrrev_b32 v2, 4, v0
    v_and_b32 v50, 3, v0
    s_lshr_b32 s32, s2, 3
    s_lshl_b32 s59, s31, 5
    s_add_u32 s59, s59, s32
    s_lshl_b32 s37, s59, 2
    v_lshl_add_u32 v7, v50, 10, s37
    ''')
    STAMP(0)
    STAMP(1)
    qc = opt.get('qc', 1)
    A('v_bfe_u32 v6, v0, 2, 2')
    A(f's_lshl_b32 s37, s34, 8\ns_add_u32 s37, s37, {XN}\nv_mul_u32_u24 v11, 1088, {"v6" if qc else "v50"}\nv_lshl_add_u32 v11, v2, 4, v11\nv_add_u32 v11, s37, v11')
    A('v_lshrrev_b32 v12, 2, v0\nv_lshl_add_u32 v12, v2, 2, v12\nv_lshlrev_b32 v12, 7, v12\nv_bfe_u32 v13, v0, 3, 2\nv_lshl_add_u32 v12, v13, 5, v12\nv_lshl_add_u32 v12, v50, 3, v12')
    A('v_xor_b32 v3, 32, v12\nv_xor_b32 v4, 64, v12\nv_xor_b32 v5, 96, v12')
    A(f's_lshl_b32 s36, s58, 15\ns_lshl_b32 s37, s32, 8\ns_add_u32 s37, s36, s37\ns_add_u32 s37, s37, {QR}')
    if qc: A('v_lshlrev_b32 v13, 13, v6\nv_lshl_add_u32 v14, v2, 2, v50\nv_lshl_add_u32 v13, v14, 4, v13\nv_add_u32 v13, s37, v13')
    else: A('v_lshlrev_b32 v13, 13, v50\nv_and_b32 v14, 12, v0\nv_add_u32 v14, v14, v2\nv_lshl_add_u32 v13, v14, 4, v13\nv_add_u32 v13, s37, v13')
    if opt.get('pre'): A('global_load_dword v58, v13, s[28:29]' + (' sc1' if opt['pre'] == 2 else ''))
    A(f's_lshl_b32 s36, s31, 15\ns_lshl_b32 s37, s34, 13\ns_add_u32 s37, s36, s37\ns_add_u32 s37, s37, {QR + 4096}')
    A('v_lshl_add_u32 v14, v0, 4, s37')
    if qc:
        A(f'v_lshrrev_b32 v15, 5, v0\nv_lshlrev_b32 v15, 6, v15\nv_lshl_add_u32 v15, v2, 7, v15\nv_lshl_add_u32 v15, v50, 5, v15\nv_lshl_add_u32 v15, v6, 3, v15\nv_add_u32 v15, {QL}, v15')
        A('s_mov_b32 s46, 0x11111111\ns_mov_b32 s47, 0x11111111\ns_lshl_b64 s[48:49], s[46:47], 1\ns_lshl_b64 s[50:51], s[46:47], 2\ns_lshl_b64 s[52:53], s[46:47], 3')
    else:
        A(f'v_lshrrev_b32 v15, 5, v0\nv_lshlrev_b32 v15, 6, v15\nv_lshl_add_u32 v15, v0, 3, v15\nv_add_u32 v15, {QL}, v15')
        A('s_mov_b32 s46, 0x000f000f\ns_mov_b32 s47, 0x000f000f\ns_lshl_b64 s[48:49], s[46:47], 4\ns_lshl_b64 s[50:51], s[46:47], 8\ns_lshl_b64 s[52:53], s[46:47], 12')
    A('s_waitcnt lgkmcnt(0)')
    A('s_mul_i32 s33, s33, 1664525\ns_add_u32 s33, s33, 1013904223')
    NB = opt.get('nb', 5)
    for j in range(4): A(f'v_bfe_u32 v{60+j}, s33, {NB*j}, {NB}')
    A(f's_movk_i32 s44, {(1<<NB)-1}')
    A(f'v_mov_b32 v54, {FL}\nv_mov_b32 v55, 1')
    STAMP(2)
    spin('L_sp8', 0, 8)
    STAMP(4)
    for c in range(4): A(f'ds_read_b128 v[{16+4*c}:{19+4*c}], v11 offset:{64*c}')
    ad = ['v12', 'v3', 'v4', 'v5']
    for t in range(4):
        for c in range(4):
            for e in range(2):
                r = 64 + 16 * t + 4 * c + 2 * e
                A(f'ds_read_b64_tr_b16 v[{r}:{r+1}], {ad[t]} offset:{WQ + 4096*c + 512*e}')
        if t >= 1:
            LG(8)
            for c in range(4):
                r = 64 + 16 * (t - 1) + 4 * c
                A(f'v_mfma_f32_16x16x32_bf16 v[{32+4*(t-1)}:{35+4*(t-1)}], v[{r}:{r+3}], v[{16+4*c}:{19+4*c}], ' + ('0' if c == 0 else f'v[{32+4*(t-1)}:{35+4*(t-1)}]'))
    for c in range(4):
        LG(6 - 2 * c)
        r = 64 + 48 + 4 * c
        A(f'v_mfma_f32_16x16x32_bf16 v[44:47], v[{r}:{r+3}], v[{16+4*c}:{19+4*c}], ' + ('0' if c == 0 else 'v[44:47]'))
    for t in range(4):
        A(f's_mov_b64 exec, s[{46+2*t}:{47+2*t}]')
        for j in range(4): A(f'v_add_u32 v{24+j}, {1<<(NB-1)}, v{32+4*t+j}')
    A('s_mov_b64 exec, -1')
    for j in range(4): A(f'v_bfi_b32 v{24+j}, s44, v{60+j}, v{24+j}')
    A('global_store_dwordx4 v13, v[24:27], s[28:29] ' + {0: 'sc1', 1: 'sc0 sc1', 2: 'sc1 nt', 3: 'sc0 sc1 nt'}[opt.get('qst', 0)])
    A('ds_write_b32 v54, v55 offset:12')
    A('global_load_dword v9, v7, s[4:5]\ns_load_dword s38, s[22:23], 0')
    STAMP(7)
    def chkq():
        for e in range(8):
            r = 16 + 4 * e
            A(f's_waitcnt vmcnt({7-e})')
            if e == 0: STAMP(6)
            for j in range(4): A(f'v_xor_b32 v{r+j}, v{60+j}, v{r+j}')
            if e == 0: A(f'v_or_b32 v57, v{r}, v{r+1}')
            else: A(f'v_or3_b32 v57, v57, v{r}, v{r+1}')
            A(f'v_or3_b32 v57, v57, v{r+2}, v{r+3}')
        A('v_and_b32 v57, s44, v57')
        A('v_cmp_ne_u32 vcc, 0, v57')
    poll('L_pollq', [(16 + 4 * e, 'v14', 1024 * e - 4096) for e in range(8)], chkq, st=5, nowait=opt.get('qnw'), post=lambda: A('ds_write_b32 v54, v55 offset:8\nv_mov_b32 v55, 2'))
    A('ds_write_b32 v54, v55 offset:8')
    if stamps: A('s_mov_b32 s90, s43')
    for hh in range(2):
        r = 16 + 4 * hh
        for j in (0, 2): A(f'v_pk_add_f32 v[{r+j}:{r+j+1}], v[{r+j}:{r+j+1}], v[{r+8+j}:{r+9+j}]\nv_pk_add_f32 v[{r+16+j}:{r+17+j}], v[{r+16+j}:{r+17+j}], v[{r+24+j}:{r+25+j}]')
    for hh in range(2):
        r = 16 + 4 * hh
        for j in (0, 2): A(f'v_pk_add_f32 v[{r+j}:{r+j+1}], v[{r+j}:{r+j+1}], v[{r+16+j}:{r+17+j}]')
    A('v_cvt_pk_bf16_f32 v16, v16, v17\nv_cvt_pk_bf16_f32 v17, v18, v19\nv_cvt_pk_bf16_f32 v20, v20, v21\nv_cvt_pk_bf16_f32 v21, v22, v23')
    A('ds_write_b64 v15, v[16:17]\nds_write_b64 v15, v[20:21] offset:640')
    STAMP(8)
    A('s_waitcnt lgkmcnt(0)')
    A('s_barrier                    ; B2')
    A(f'v_lshlrev_b32 v11, 3, v50\nv_add_u32 v11, {GY}, v11')
    for w in range(7): A(f'ds_read_b64 v[{16+2*w}:{17+2*w}], v11 offset:{32*w}')
    A('s_barrier                    ; B3')
    A('s_setprio 0')
    A(f's_lshl_b32 s37, s59, 11\ns_add_u32 s37, s37, {SR}')
    A('v_lshl_add_u32 v14, v0, 4, s37')
    A('s_waitcnt lgkmcnt(0)')
    A('s_lshl_b32 s38, s38, 16')
    def ep1():
        for w in range(1, 7): A(f'v_pk_add_f32 v[16:17], v[16:17], v[{16+2*w}:{17+2*w}]')
        A('v_cvt_pk_bf16_f32 v18, v16, v17')
        unpack(['v16', 'v17'], ['v18'])
        A('v_add_f32 v16, s38, v16\nv_add_f32 v17, s38, v17\nv_cvt_pk_bf16_f32 v18, v16, v17')
        unpack(['v16', 'v17'], ['v18'])
        A(f'v_mul_f32 v18, {f2h(-LOG2E)}, v16\nv_mul_f32 v19, {f2h(-LOG2E)}, v17')
    def ep2():
        A('v_exp_f32 v18, v18\nv_exp_f32 v19, v19\nv_add_f32 v18, 1.0, v18\nv_add_f32 v19, 1.0, v19\nv_rcp_f32 v18, v18\nv_rcp_f32 v19, v19')
        A('v_mul_f32 v16, v16, v18\nv_mul_f32 v17, v17, v19\nv_cvt_pk_bf16_f32 v18, v16, v17')
        unpack(['v30', 'v31'], ['v18'])
        unpack(['v8', 'v10'], ['v9'])
    ps = opt.get('ps', 0)
    if not ps: ep1(); ep2()
    A('s_barrier                    ; B4\ns_barrier                    ; B5')
    STAMP(10)
    if opt.get('b6'): spin('L_sp6', 20, opt['b6'])
    if not ps:
        def chk2():
            A('s_waitcnt vmcnt(0)\nv_cmp_ne_u32 vcc, s33, v19\nv_cmp_ne_u32 s[54:55], s33, v23\ns_or_b64 vcc, vcc, s[54:55]')
        poll('L_polls', [(16, 'v14', 0), (20, 'v14', 1024)], chk2)
        A('v_pk_add_f32 v[16:17], v[16:17], v[20:21]')
    else:
        def sld(r): A(f'global_load_dwordx4 v[{r}:{r+3}], v14, s[28:29] sc1\nglobal_load_dwordx4 v[{r+4}:{r+7}], v14, s[28:29] offset:1024 sc1')
        sld(32); ep1(); sld(40); ep2(); sld(48)
        A(f's_movk_i32 s43, {SPIN}\nL_polls:')
        for r in (32, 40, 48):
            A(f's_waitcnt vmcnt(4)\nv_cmp_ne_u32 vcc, s33, v{r+3}\nv_cmp_ne_u32 s[54:55], s33, v{r+7}\nv_pk_add_f32 v[16:17], v[{r}:{r+1}], v[{r+4}:{r+5}]\ns_or_b64 vcc, vcc, s[54:55]')
            A('s_cbranch_vccz L_polls_done')
            sld(r)
        A('s_sub_u32 s43, s43, 1\ns_cbranch_scc0 L_polls\nL_polls_done:')
    STAMP(11)
    for m in ('row_ror:4', 'row_ror:8'):
        A(f'v_add_f32 v16, v16, v16 {m}\nv_add_f32 v17, v17, v17 {m}')
    xrow([('v16', 'v18'), ('v17', 'v19')], 'v_add_f32')
    A('v_cvt_pk_bf16_f32 v18, v16, v17')
    unpack(['v16', 'v17'], ['v18'])
    A('v_pk_mul_f32 v[16:17], v[16:17], v[30:31]\nv_cvt_pk_bf16_f32 v18, v16, v17')
    unpack(['v16', 'v17'], ['v18'])
    A('v_add_f32 v16, v16, v8\nv_add_f32 v17, v17, v10\nv_cvt_pk_bf16_f32 v18, v16, v17')
    A('s_mov_b64 exec, 15')
    A('global_store_dword v7, v18, s[24:25]')
    A('s_cmp_lg_u32 s2, 0\ns_cbranch_scc1 L_fin8')
    A('s_mov_b64 exec, 1\nv_mov_b32 v20, 0\nv_mov_b32 v21, s33')
    A('global_store_dword v20, v21, s[28:29]')
    A('L_fin8:')
    STAMP(12)
    DUMP(); DIAG('L_dg8')
    A('L_cend:')
    A('s_endpgm')
    A.raw(f'''.section .rodata,"a"
.p2align 6
.amdhsa_kernel {NAME}_kernel
  .amdhsa_next_free_vgpr 128
  .amdhsa_next_free_sgpr 96
  .amdhsa_accum_offset 128
  .amdhsa_group_segment_fixed_size 0
  .amdhsa_kernarg_size 104
  .amdhsa_user_sgpr_count 2
  .amdhsa_user_sgpr_kernarg_segment_ptr 1
  .amdhsa_system_sgpr_workgroup_id_x 1
.end_amdhsa_kernel''')
    return A.text()
if __name__ == '__main__':
    out = sys.argv[1]; stamps = 'stamps' in sys.argv[2:]
    opt = {}
    for k in sys.argv[2:]:
        if k.startswith('diag='): opt['diag'] = tuple(int(x) for x in k[5:].split(','))
        elif '=' in k: opt[k.split('=')[0]] = int(k.split('=')[1])
        else: opt[k] = True
    open(out, 'w').write(gen(stamps, opt))
```

```python
import sys, struct, math
from asmlib import Asm
NAME = 'recurrent_scan__sliding_block_cached__mixer_token_mlp__decode'
def f2h(x): return '0x%08x' % struct.unpack('<I', struct.pack('<f', x))[0]
LOG2E = 1.4426950408889634
def gen(stamps=False, opt=None):
    opt = opt or {}
    NT = '' if opt.get('nont') else ' nt'
    A = Asm()
    WQ, KS, VS, WO = 0, 16384, 49152, 81920
    XN = 98304; QL = XN + 4352; SC = QL + 1280; OL = SC + 2048; HB = OL + 1280; FL = HB + 32; MX = FL + 32; GY = MX + 32
    LDS = GY + 256
    QR, OR_, SR, TS = 0x180000, 0x20000, 0x100000, 0x200000
    SPIN = 20000
    D = opt.get('D', 40); V0 = opt.get('V0', 0); wop = opt.get('wo', 7)
    diag = opt.get('diag'); cur = {'w8': False}
    def STAMP(n):
        if stamps and (not opt.get('lite') or n in (0, 12)): A('s_memrealtime s[%d:%d]' % (64 + 2 * n, 65 + 2 * n))
        if diag and diag[1] == n and ((diag[0] == 8) == cur['w8'] or n == 0): A('s_memrealtime s[92:93]')
    def DIAG(lbl):
        if diag and ((diag[0] == 8) == cur['w8']):
            A(f's_cmp_lg_u32 s30, {diag[0]}\ns_cbranch_scc1 {lbl}_x')
            if not opt.get('dall'): A(f's_cmp_lg_u32 s2, 0\ns_cbranch_scc1 {lbl}_x')
            A(f'{lbl}:\ns_memrealtime s[94:95]\ns_waitcnt lgkmcnt(0)\ns_sub_u32 s94, s94, s92\ns_cmp_lt_u32 s94, 4000\ns_cbranch_scc1 {lbl}\n{lbl}_x:')
    def LG(n): A(f's_waitcnt lgkmcnt({0 if ((stamps and not opt.get("lite")) or diag) else n})')
    def DUMP():
        if stamps:
            A('s_waitcnt lgkmcnt(0)\ns_getreg_b32 s62, hwreg(HW_REG_XCC_ID)\ns_mov_b64 exec, -1\nv_mov_b32 v100, 0')
            for n in range(14): A('v_writelane_b32 v100, s%d, %d' % (64 + 2 * n, n))
            A('v_writelane_b32 v100, s62, 14')
            A('s_lshl_b32 s60, s2, 4\ns_add_u32 s60, s60, s30\ns_lshl_b32 s60, s60, 6\ns_add_u32 s60, s60, %d' % TS)
            A('v_lshl_add_u32 v101, v0, 2, s60\ns_mov_b64 exec, 0xffff\nglobal_store_dword v101, v100, s[28:29]')
    def xrow(pairs, op):
        for sw in ('v_permlane16_swap_b32', 'v_permlane32_swap_b32'):
            for v, t in pairs: A(f'v_mov_b32 {t}, {v}')
            for v, t in pairs: A(f'{sw} {v}, {t}')
            for v, t in pairs: A(f'{op} {v}, {v}, {t}')
    def rnd(d, s): A(f'v_cvt_pk_bf16_f32 {d}, {s}, {s}\nv_lshlrev_b32 {d}, 16, {d}')
    def unpack(dst, src):
        for j, s_ in enumerate(src): A(f'v_lshlrev_b32 {dst[2*j]}, 16, {s_}\nv_and_b32 {dst[2*j+1]}, 0xffff0000, {s_}')
    def poll(lbl, loads, check, st=None, nowait=False, post=None):
        A(f's_movk_i32 s43, {SPIN}')
        if not nowait: A('s_waitcnt vmcnt(0)')
        if st is not None: STAMP(st)
        A(f'{lbl}:')
        for r, addr, off in loads: A(f'global_load_dwordx4 v[{r}:{r+3}], {addr}, s[28:29] offset:{off} sc1')
        if post: post()
        A(f's_sub_u32 s43, s43, 1\ns_cbranch_scc1 {lbl}_done')
        check()
        A(f's_cbranch_vccnz {lbl}')
        A(f'{lbl}_done:\ns_waitcnt vmcnt(0)')
    def spin(lbl, off, cnt):
        A(f'v_mov_b32 v46, {FL}\ns_movk_i32 s43, {SPIN}\n{lbl}:\nds_read_b32 v47, v46 offset:{off}\ns_sub_u32 s43, s43, 1\ns_cbranch_scc1 {lbl}_d\ns_waitcnt lgkmcnt(0)')
        A(f'v_cmp_gt_u32 vcc, {cnt}, v47\ns_cbranch_vccnz {lbl}\n{lbl}_d:')
    def signal(off): A(f's_mov_b64 exec, 1\nds_add_u32 v51, v52 offset:{off}\ns_mov_b64 exec, -1')
    A.raw(f'; @launch grid=(256,1,1) block=(576,1,1) lds={opt.get("lds", LDS)}')
    A.raw('.amdgcn_target "amdgcn-amd-amdhsa--gfx950"\n.text')
    A.raw(f'.globl {NAME}_kernel\n.p2align 8\n.type {NAME}_kernel,@function\n{NAME}_kernel:')
    KQ = {0: 's_xor_b32 s58, s31, 1', 1: 's_lshl1_add_u32 s58, s34, 1\ns_xor_b32 s58, s58, s31', 2: 's_lshl1_add_u32 s58, s34, 1\ns_and_b32 s58, s58, 5\ns_xor_b32 s58, s58, s31'}[opt.get('kq', 0)]
    ROT = {0: 's_lshl_b32 s37, s37, 15', 1: 's_lshl3_add_u32 s37, s37, s35\ns_lshl_b32 s37, s37, 12', 2: 's_lshl3_add_u32 s37, s37, s31\ns_lshl_b32 s37, s37, 12'}[opt.get('rot', 1)]
    def kload():
        for a_ in range(4): A(f'global_load_lds_dwordx4 v{7+a_}, s[6:7] offset:{1024*a_}{NT}')
    def params():
        A('global_load_dwordx2 v[16:17], v6, s[16:17]\nglobal_load_dwordx2 v[18:19], v6, s[18:19]\ns_waitcnt lgkmcnt(0)\nglobal_load_dwordx2 v[20:21], v6, s[20:21]')
    A(f'''
    s_load_dwordx16 s[4:19], s[0:1], 0
    v_lshrrev_b32 v1, 6, v0
    s_lshr_b32 s34, s2, 6
    v_readfirstlane_b32 s30, v1
    s_cmp_ge_u32 s34, 4
    s_cbranch_scc1 L_end
    s_cmp_eq_u32 s30, 8
    s_cbranch_scc0 L_main
    s_getpc_b64 s[56:57]
    L_pc:
    v_and_b32 v0, 63, v0
    v_lshlrev_b32 v4, 7, v0
    v_min_u32 v4, L_cend-L_pc, v4
    global_load_dword v59, v4, s[56:57]     ; code prefetch into L2
    s_branch L_stub
    L_main:
    ''')
    STAMP(0)
    A(f'''
    {'' if opt.get('ka') else 's_load_dwordx8 s[20:27], s[0:1], 64'}
    v_lshlrev_b32 v4, 4, v0        ; tid*16
    s_and_b32 s31, s2, 7           ; x
    s_bfe_u32 s35, s2, 0x30003
    {KQ}
    s_cmp_ge_u32 s30, 4
    s_cbranch_scc1 L_wq
    s_waitcnt lgkmcnt(0)
    global_load_dwordx4 v[12:15], v4, s[4:5]
    s_branch L_kk
    L_wq:
    v_lshrrev_b32 v6, 3, v0
    s_lshl3_add_u32 s36, s58, s35
    v_lshl_add_u32 v7, s34, 7, v6
    v_and_b32 v6, 2, v6
    v_lshl_or_b32 v6, v1, 2, v6
    v_xor_b32 v6, v6, v0
    v_and_b32 v6, 7, v6
    v_lshl_add_u32 v6, s36, 3, v6
    v_lshl_add_u32 v7, v7, 9, v6
    v_lshlrev_b32 v7, 4, v7
    s_lshl_b32 m0, s30, 10
    s_waitcnt lgkmcnt(0)
    global_load_lds_dwordx4 v7, s[10:11]{NT}
    s_addk_i32 m0, 4096
    v_add_u32 v7, 0x40000, v7
    global_load_lds_dwordx4 v7, s[10:11]{NT}
    s_addk_i32 m0, 4096
    v_add_u32 v7, 0x40000, v7
    global_load_lds_dwordx4 v7, s[10:11]{NT}
    s_addk_i32 m0, -12288
    v_add_u32 v7, 0xfff40000, v7
    global_load_lds_dwordx4 v7, s[10:11]{NT}
    L_kk:
    ''')
    STAMP(1)
    A(f'''
    {'s_load_dwordx8 s[20:27], s[0:1], 64' if opt.get('ka') else ''}
    s_lshl3_add_u32 s37, s34, s31
    s_lshl2_add_u32 s37, s37, 3
    s_lshl3_add_u32 s37, s37, s35
    s_lshl_b32 s38, s30, 12        ; w*4096
    v_and_b32 v0, 63, v0
    v_lshrrev_b32 v2, 4, v0        ; g
    v_xor_b32 v7, v2, v0
    {ROT}
    s_xor_b32 s40, s37, s38
    v_lshl_add_u32 v7, v7, 4, s40
    s_add_u32 m0, s38, {KS}
    v_xor_b32 v8, 64, v7
    v_xor_b32 v9, 128, v7
    v_xor_b32 v10, 64, v9
    v_lshrrev_b32 v6, 1, v4        ; w*512 + l*8
    s_cmp_eq_u32 s30, 7
    s_barrier
    s_cbranch_scc1 {'L_go' if opt.get('kh', 7) == 8 else 'L_k7'}
    global_load_dwordx2 v[16:17], v6, s[16:17]
    global_load_dwordx2 v[18:19], v6, s[18:19]
    {'s_waitcnt lgkmcnt(0)' if opt.get('ka') else ''}
    global_load_dwordx2 v[20:21], v6, s[20:21]
    s_cmp_lt_u32 s30, {opt.get('kh', 7)}
    s_cbranch_scc1 L_go
    L_k7:
    ''')
    kload()
    A(f'''
    s_branch L_go
    L_stub:
    v_lshlrev_b32 v46, 2, v0
    v_bfe_i32 v48, v0, 3, 1
    v_add_u32 v46, {FL}, v46
    v_lshlrev_b32 v48, 23, v48
    ds_write_b32 v46, v48
    s_waitcnt lgkmcnt(0)
    s_barrier                    ; B0
    s_load_dwordx2 s[28:29], s[0:1], 96
    s_load_dwordx8 s[20:27], s[0:1], 64
    s_waitcnt lgkmcnt(0)
    s_load_dword s33, s[28:29], 0
    s_branch L_w8
    L_go:
    ''')
    STAMP(2)
    A(f'''
    s_load_dwordx2 s[28:29], s[0:1], 96
    v_and_b32 v3, 15, v0           ; n
    v_and_b32 v4, 0x3ff, v4        ; l*16
    v_and_b32 v50, 3, v0
    v_mov_b32 v51, {FL}
    v_mov_b32 v52, 1
    s_lshr_b32 s32, s2, 3
    s_lshl_b32 s59, s31, 5
    s_add_u32 s59, s59, s32
    s_cmp_ge_u32 s30, 4
    s_cbranch_scc1 L_noln
    s_waitcnt vmcnt(3)
    ''')
    STAMP(3)
    a = ['v%d' % (24 + j) for j in range(8)]
    def ln_stats():
        A('v_readfirstlane_b32 s44, v24')
        for j in range(0, 8, 2): A(f'v_pk_add_f32 v[{32+j}:{33+j}], v[{24+j}:{25+j}], s[44:45] op_sel_hi:[1,0] neg_lo:[0,1] neg_hi:[0,1]')
        A('v_pk_add_f32 v[40:41], v[32:33], v[34:35]\nv_pk_mul_f32 v[42:43], v[32:33], v[32:33]\nv_pk_add_f32 v[44:45], v[36:37], v[38:39]\nv_pk_fma_f32 v[42:43], v[34:35], v[34:35], v[42:43]')
        A('v_pk_add_f32 v[40:41], v[40:41], v[44:45]\nv_pk_fma_f32 v[42:43], v[36:37], v[36:37], v[42:43]\nv_add_f32 v40, v40, v41\nv_pk_fma_f32 v[42:43], v[38:39], v[38:39], v[42:43]\nv_add_f32 v41, v42, v43')
        for m in ('quad_perm:[1,0,3,2]', 'quad_perm:[2,3,0,1]', 'row_ror:4', 'row_ror:8'):
            A(f'v_add_f32 v40, v40, v40 {m}\nv_add_f32 v41, v41, v41 {m}')
        xrow([('v40', 'v42'), ('v41', 'v43')], 'v_add_f32')
        A(f'v_mul_f32 v40, {f2h(1/512)}, v40\nv_mul_f32 v41, {f2h(1/512)}, v41')
        A('v_fma_f32 v41, -v40, v40, v41\nv_add_f32 v40, s44, v40\nv_max_f32 v41, 0, v41')
        A('v_cvt_pk_bf16_f32 v42, v40, v41\nv_and_b32 v41, 0xffff0000, v42\nv_lshlrev_b32 v40, 16, v42')
        A(f'v_add_f32 v41, {f2h(1e-5)}, v41')
        rnd('v41', 'v41')
        A('v_sqrt_f32 v41, v41')
    unpack(a, ['v12', 'v13', 'v14', 'v15'])
    ln_stats()
    for j in range(0, 8, 2): A(f'v_pk_add_f32 v[{24+j}:{25+j}], v[{24+j}:{25+j}], v[40:41] op_sel_hi:[1,0] neg_lo:[0,1] neg_hi:[0,1]')
    rnd('v41', 'v41')
    A('v_rcp_f32 v41, v41')
    for j in range(4): A(f'v_cvt_pk_bf16_f32 v{12+j}, {a[2*j]}, {a[2*j+1]}')
    unpack(a, ['v12', 'v13', 'v14', 'v15'])
    for j in range(0, 8, 2): A(f'v_pk_mul_f32 v[{24+j}:{25+j}], v[{24+j}:{25+j}], v[40:41] op_sel:[0,1] op_sel_hi:[1,1]')
    A(f's_mul_i32 s42, s30, 1088\ns_add_u32 s42, s42, {XN}')
    A('v_add_u32 v45, s42, v4')
    for j in range(4): A(f'v_cvt_pk_bf16_f32 v{12+j}, {a[2*j]}, {a[2*j+1]}')
    A('ds_write_b128 v45, v[12:15]')
    kl = opt.get('kl', 2)
    signal(0)
    if kl > 0:
        if kl < 4: A(f's_cmp_ge_u32 s30, {kl}\ns_cbranch_scc1 L_k3')
        kload()
        A('L_k3:')
    A('s_lshl_b32 s43, s59, 2\ns_add_u32 s43, s43, s42\nv_mov_b32 v46, s43')
    A('ds_read_b32 v47, v46')
    unpack(a, ['v12', 'v13', 'v14', 'v15'])
    ln_stats()
    rnd('v41', 'v41')
    A('v_rcp_f32 v41, v41')
    A('s_waitcnt lgkmcnt(0)')
    unpack(['v48', 'v49'], ['v47'])
    A('v_sub_f32 v48, v48, v40\nv_sub_f32 v49, v49, v40\nv_cvt_pk_bf16_f32 v47, v48, v49')
    unpack(['v48', 'v49'], ['v47'])
    A('v_mul_f32 v48, v48, v41\nv_mul_f32 v49, v49, v41\nv_cvt_pk_bf16_f32 v47, v48, v49')
    unpack(['v48', 'v49'], ['v47'])
    A(f's_lshl_b32 s43, s30, 3\ns_add_u32 s43, s43, {HB}\nv_mov_b32 v46, s43')
    A('s_mov_b64 exec, 1\nds_write_b64 v46, v[48:49]\nds_add_u32 v51, v52 offset:4\ns_mov_b64 exec, -1')
    if kl < 4:
        if kl > 0: A(f's_cmp_lt_u32 s30, {kl}\ns_cbranch_scc1 L_gelu')
        spin('L_spk', 12, 1)
        kload()
    A('s_branch L_gelu')
    A('L_noln:')
    A('s_cmp_eq_u32 s30, 7\ns_cbranch_scc1 L_loader')
    kh = opt.get('kh', 7)
    if kh < 7:
        A(f's_cmp_lt_u32 s30, {kh}\ns_cbranch_scc1 L_kh\ns_waitcnt vmcnt(7)')
        signal(0)
        A('s_branch L_gelu\nL_kh:')
    A('s_waitcnt vmcnt(3)')
    signal(0)
    STAMP(2)
    if opt.get('kw'):
        A(f's_cmp_ge_u32 s30, {4 + opt["kw"]}\ns_cbranch_scc1 L_spw4_d')
        spin('L_spw4', 12, 1)
    kload()
    A('L_gelu:')
    A('s_waitcnt lgkmcnt(0)\ns_load_dword s33, s[28:29], 0')
    STAMP(4)
    spin('L_spg', 4, 4)
    A(f'v_mov_b32 v46, {HB}')
    A('ds_read_b128 v[24:27], v46\nds_read_b128 v[28:31], v46 offset:16')
    A('s_waitcnt vmcnt(4)')
    unpack(['v32', 'v33', 'v34', 'v35'], ['v16', 'v17'])
    unpack(['v36', 'v37', 'v38', 'v39'], ['v18', 'v19'])
    unpack(['v40', 'v41', 'v42', 'v43'], ['v20', 'v21'])
    c0 = math.sqrt(2 / math.pi)
    A(f'v_mov_b32 v44, {f2h(-2 * c0 * 0.044715 * LOG2E)}\nv_mov_b32 v45, {f2h(-2 * c0 * LOG2E)}')
    A('s_waitcnt lgkmcnt(0)')
    for o in range(8):
        hp = 24 + (o & ~1); sel = o & 1
        acc = 72 + 2 * o
        for j in (0, 2): A(f'v_pk_fma_f32 v[{56+j}:{57+j}], v[{32+j}:{33+j}], v[{hp}:{hp+1}], v[{36+j}:{37+j}] op_sel:[0,{sel},0] op_sel_hi:[1,{sel},1]')
        for j in (0, 2): A(f'v_pk_mul_f32 v[{52+j}:{53+j}], v[{56+j}:{57+j}], v[{56+j}:{57+j}]')
        for j in (0, 2): A(f'v_pk_fma_f32 v[{52+j}:{53+j}], v[{52+j}:{53+j}], v[44:45], v[44:45] op_sel:[0,0,1] op_sel_hi:[1,0,1]')
        for j in (0, 2): A(f'v_pk_mul_f32 v[{52+j}:{53+j}], v[{52+j}:{53+j}], v[{56+j}:{57+j}]')
        for j in range(4): A(f'v_exp_f32 v{52+j}, v{52+j}')
        for j in (0, 2): A(f'v_pk_mul_f32 v[{56+j}:{57+j}], v[{56+j}:{57+j}], v[{40+j}:{41+j}]')
        for j in (0, 2): A(f'v_pk_add_f32 v[{52+j}:{53+j}], v[{52+j}:{53+j}], 1.0 op_sel_hi:[1,0]')
        for j in range(4): A(f'v_rcp_f32 v{52+j}, v{52+j}')
        A(f'v_pk_mul_f32 v[{acc}:{acc+1}], v[56:57], v[52:53]')
        A(f'v_pk_fma_f32 v[{acc}:{acc+1}], v[58:59], v[54:55], v[{acc}:{acc+1}]')
    for o in range(8): A(f'v_add_f32 v{64+o}, v{72+2*o}, v{73+2*o}')
    for o in range(4): A(f'v_permlane32_swap_b32 v{64+o}, v{68+o}')
    for o in range(4): A(f'v_add_f32 v{64+o}, v{64+o}, v{68+o}')
    for o in range(2): A(f'v_permlane16_swap_b32 v{64+o}, v{66+o}')
    for o in range(2): A(f'v_add_f32 v{64+o}, v{64+o}, v{66+o}')
    for m in ('quad_perm:[1,0,3,2]', 'quad_perm:[2,3,0,1]', 'row_ror:4', 'row_ror:8'):
        for o in range(2): A(f'v_add_f32 v{64+o}, v{64+o}, v{64+o} {m}')
    A(f's_lshl_b32 s43, s30, 5\ns_add_u32 s43, s43, {GY}')
    A('v_lshl_add_u32 v46, v2, 3, s43')
    A('s_mov_b32 exec_lo, 0x00010001\ns_mov_b32 exec_hi, 0x00010001')
    A('ds_write_b64 v46, v[64:65]')
    A('s_mov_b64 exec, -1')
    STAMP(5)
    A('s_waitcnt vmcnt(0)')
    A('s_branch L_nogelu')
    A('L_loader:')
    if opt.get('tw'): A('s_load_dword s60, s[8:9], s37\ns_lshl_b32 s36, s58, 19\ns_load_dword s61, s[12:13], s36\ns_load_dword s62, s[24:25], 0')
    A('s_setprio 2\ns_waitcnt vmcnt(%d)' % (0 if kh == 8 else 4))
    signal(0)
    if kh == 8: kload()
    A('s_waitcnt lgkmcnt(0)\ns_load_dword s33, s[28:29], 0')
    A(f'''
    v_lshlrev_b32 v8, 1, v2
    v_xor_b32 v8, v3, v8
    v_lshlrev_b32 v8, 4, v8
    v_lshl_add_u32 v8, v2, 8, v8
    v_add_u32 v8, s37, v8
    v_xor_b32 v9, 128, v8
    s_mov_b32 m0, {VS}''')
    A(f's_waitcnt vmcnt({V0})')
    STAMP(4)
    V1 = opt.get('V1', 2)
    vg = [0]
    def vgrp():
        for a_ in range(4): A(f'global_load_lds_dwordx4 v{8+(a_&1)}, s[8:9] offset:{1024*a_}{NT}')
        j = vg[0]; vg[0] += 1
        if j < 7: A(f's_addk_i32 m0, 4096\nv_xor_b32 v8, {(j ^ (j + 1)) << 12}, v8\nv_xor_b32 v9, {(j ^ (j + 1)) << 12}, v9')
    for _ in range(V1): vgrp()
    A('L_nogelu:')
    A(f's_add_u32 s43, s38, {KS}')
    A('v_xor_b32 v46, v2, v3\nv_lshlrev_b32 v46, 4, v46\nv_lshl_add_u32 v46, v3, 8, v46\nv_add_u32 v46, s43, v46')
    A('v_xor_b32 v47, 64, v46\nv_xor_b32 v48, 128, v46\nv_xor_b32 v49, 192, v46')
    for i in range(4): A(f'ds_read_b128 v[{16+4*i}:{19+4*i}], v{46+i}')
    A('''s_xor_b32 s39, s31, 2
    s_xor_b32 s58, s31, 1
    s_xor_b32 s61, s31, 3
    s_cmp_eq_u32 s35, s31
    s_cselect_b32 s39, s39, s58
    s_cselect_b32 s61, s61, s35    ; c_o
    s_lshl_b32 s39, s39, 2
    s_add_u32 s39, s39, s34        ; h_o = k_o*4 + hl''')
    A(f'v_mul_u32_u24 v51, 320, v50\nv_lshl_add_u32 v51, v2, 4, v51\nv_add_u32 v66, {OL}, v51\nv_add_u32 v51, {QL}, v51')
    A(f's_lshl_b32 s43, s30, 8\ns_add_u32 s43, s43, {SC}')
    A('v_lshl_add_u32 v52, v2, 2, v50\nv_lshlrev_b32 v52, 4, v52       ; (g*4+h)*16')
    A('v_add_u32 v53, s43, v52')
    A(f'v_lshrrev_b32 v54, 2, v3\nv_lshl_add_u32 v54, v54, 9, v52\nv_add_u32 v54, {SC}, v54')
    A('v_lshrrev_b32 v60, 2, v0      ; 4g+r')
    A('v_and_b32 v61, 7, v60\nv_xor_b32 v61, s30, v61\nv_lshlrev_b32 v61, 5, v61')
    A('v_lshl_add_u32 v61, v60, 8, v61\nv_lshl_add_u32 v61, v50, 3, v61')
    A(f'v_add_u32 v61, {VS}, v61')
    A(f's_lshl_b32 s43, s31, 16\ns_lshl_b32 s45, s32, 9\ns_add_u32 s43, s43, s45\ns_lshl_b32 s45, s30, 6\ns_add_u32 s43, s43, s45\ns_add_u32 s43, s43, {OR_}')
    A('v_lshlrev_b32 v62, 14, v50\nv_lshl_add_u32 v62, v2, 4, v62\nv_add_u32 v62, s43, v62')
    A(f's_lshl_b32 s43, s39, 14\ns_add_u32 s43, s43, s38\ns_add_u32 s43, s43, {OR_}')
    A('v_add_u32 v63, s43, v4')
    A(f's_mul_i32 s43, s30, 320\ns_add_u32 s43, s43, {OL}\nv_and_b32 v64, 31, v0\nv_lshl_add_u32 v64, v64, 3, s43\nv_lshrrev_b32 v33, 5, v0\nv_lshl_add_u32 v64, v33, 2, v64')
    A(f's_lshl_b32 s43, s30, 5\ns_add_u32 s43, s43, {WO - 128}')
    A('v_lshl_add_u32 v65, v2, 2, v60\nv_lshlrev_b32 v65, 7, v65\nv_lshl_add_u32 v65, v50, 3, v65\nv_add_u32 v65, s43, v65')
    A(f's_lshl_b32 s43, s61, 16\ns_lshl_b32 s45, s30, 14\ns_add_u32 s43, s43, s45\ns_lshl_b32 s45, s39, 6\ns_add_u32 s43, s43, s45\ns_add_u32 s43, s43, {SR - 4*16384}')
    A('v_bfe_u32 v67, v0, 2, 1\nv_lshl_add_u32 v67, v2, 1, v67\nv_lshlrev_b32 v67, 11, v67\nv_lshl_add_u32 v67, v50, 4, v67\nv_add_u32 v67, s43, v67')
    A(f'''s_lshl_b32 s40, s39, 17
    s_lshl_b32 s41, s61, 7
    s_add_u32 s40, s40, s41
    s_and_b32 s41, s30, 3
    s_lshl_b32 s41, s41, 15
    s_add_u32 s40, s40, s41
    v_lshrrev_b32 v10, 3, v0
    v_lshlrev_b32 v10, 10, v10
    v_and_b32 v11, 7, v0
    v_lshl_add_u32 v10, v11, 4, v10
    v_add_u32 v10, s40, v10
    v_add_u32 v11, 7168, v10
    v_add_u32 v12, 14336, v10
    v_add_u32 v13, 21504, v10
    s_lshr_b32 s41, s41, 3
    v_lshlrev_b32 v14, 2, v50
    v_add_u32 v14, {MX}, v14''')
    def woload(lbl):
        A(f's_cmp_lt_u32 s30, 4\ns_cbranch_scc1 {lbl}')
        for a_ in range(4): A(f'global_load_lds_dwordx4 v{10+a_}, s[12:13] offset:{1024*a_}{NT}')
        A(f'{lbl}:')
    A('s_mov_b32 s46, 0x000f000f\ns_mov_b32 s47, 0x000f000f\ns_mov_b32 s48, 0x00ff00ff\ns_mov_b32 s49, 0x00ff00ff')
    A('s_waitcnt lgkmcnt(0)')
    A('s_mul_i32 s33, s33, 1664525\ns_add_u32 s33, s33, 1013904223')
    A(f's_mov_b32 s44, {f2h(128 ** -0.5)}\ns_mov_b32 s45, {f2h(LOG2E)}')
    A('v_mov_b32 v71, s33')
    A('s_cmp_lg_u32 s30, 7\ns_cbranch_scc1 L_b2')
    VA = opt.get('VA', 4)
    spin('L_spv', 8, 1)
    STAMP(3)
    for _ in range(VA): vgrp()
    if V1 + VA < 8:
        spin('L_spv2', 8, 2)
        for _ in range(8 - V1 - VA): vgrp()
    A('s_setprio 0')
    STAMP(5)
    A('L_b2:')
    A(f's_add_u32 m0, s41, {WO}')
    STAMP(6)
    A('s_barrier                    ; B2')
    STAMP(7)
    for i in range(4): A(f'ds_read_b128 v[{32+4*i}:{35+4*i}], v51 offset:{64*i}')
    if wop == 2: woload('L_wo2')
    for i in range(4):
        LG(3 - i)
        A(f'v_mfma_f32_16x16x32_bf16 v[56:59], v[{16+4*i}:{19+4*i}], v[{32+4*i}:{35+4*i}], ' + ('0' if i == 0 else 'v[56:59]'))
    A('s_mov_b64 exec, s[46:47]')
    A('v_cvt_pk_bf16_f32 v68, v56, v57\nv_cvt_pk_bf16_f32 v69, v58, v59')
    unpack(['v56', 'v57', 'v58', 'v59'], ['v68', 'v69'])
    for j in (0, 2): A(f'v_pk_mul_f32 v[{56+j}:{57+j}], v[{56+j}:{57+j}], s[44:45] op_sel_hi:[1,0]')
    A('v_cvt_pk_bf16_f32 v68, v56, v57\nv_cvt_pk_bf16_f32 v69, v58, v59')
    unpack(['v56', 'v57', 'v58', 'v59'], ['v68', 'v69'])
    A('ds_write_b128 v53, v[56:59]')
    A('v_max3_f32 v24, v56, v57, v58\nv_max_f32 v24, v24, v59')
    A('ds_max_f32 v14, v24')
    A('s_mov_b64 exec, -1')
    A('s_waitcnt lgkmcnt(0)')
    A('s_barrier                    ; B3')
    A('ds_read_b32 v24, v14\nds_read_b128 v[16:19], v54\nds_read_b128 v[20:23], v54 offset:256')
    if wop == 6: woload('L_wo6')
    LG(2)
    A('v_mul_f32 v24, s45, v24')
    LG(1)
    for j in range(0, 8, 2):
        if j == 4: A('s_waitcnt lgkmcnt(0)')
        A(f'v_pk_fma_f32 v[{16+j}:{17+j}], v[{16+j}:{17+j}], s[44:45], v[24:25] op_sel:[0,1,0] op_sel_hi:[1,1,0] neg_lo:[0,0,1] neg_hi:[0,0,1]')
    for j in range(8): A(f'v_exp_f32 v{16+j}, v{16+j}')
    for j in range(4): A(f'v_cvt_pk_bf16_f32 v{32+j}, v{16+2*j}, v{17+2*j}')
    sp = opt.get('sp', 1)
    def rot():
        for k in range(1, 4):
            for j in range(4): A(f'v_mov_b32 v{32+4*k+j}, v{32+j} row_ror:{16-4*k}')
    tree = ['v_pk_add_f32 v[26:27], v[16:17], v[18:19]\nv_pk_add_f32 v[28:29], v[20:21], v[22:23]',
            'v_pk_add_f32 v[26:27], v[26:27], v[28:29]\nv_add_f32 v26, v26, v27',
            'v_add_f32 v26, v26, v26 row_ror:4\nv_add_f32 v26, v26, v26 row_ror:8',
            'v_mov_b32 v25, v26\nv_permlane16_swap_b32 v26, v25\nv_add_f32 v26, v26, v25',
            'v_mov_b32 v25, v26\nv_permlane32_swap_b32 v26, v25\nv_add_f32 v26, v26, v25\nv_rcp_f32 v27, v26\nv_log_f32 v26, v26']
    if sp >= 1:
        for t_ in tree: A(t_)
    if sp >= 2: rot()
    if wop == 3: woload('L_wo3')
    STAMP(8)
    A('s_waitcnt vmcnt(%d)' % (4 if wop in (2, 3, 6) else 0))
    STAMP(9)
    A('s_barrier                    ; B4')
    for e in range(8): A(f'ds_read_b64_tr_b16 v[{72+2*e}:{73+2*e}], v61 offset:{4096*e}')
    if wop == 4: woload('L_wo4')
    if sp < 2: rot()
    for k in range(4):
        if sp == 0: A(tree[k])
        LG(6 - 2 * k)
        A(f'v_mfma_f32_16x16x32_bf16 v[56:59], v[{72+4*k}:{75+4*k}], v[{32+4*k}:{35+4*k}], ' + ('0' if k == 0 else 'v[56:59]'))
    if sp == 0: A(tree[4])
    A('s_mov_b64 exec, s[46:47]')
    for j in (0, 2): A(f'v_pk_mul_f32 v[{56+j}:{57+j}], v[{56+j}:{57+j}], v[26:27] op_sel:[0,1] op_sel_hi:[1,1]')
    A('v_add_f32 v70, v24, v26')
    A('v_cvt_pk_bf16_f32 v68, v56, v57\nv_cvt_pk_bf16_f32 v69, v58, v59')
    A('global_store_dwordx4 v62, v[68:71], s[28:29] sc1')
    A('s_mov_b64 exec, -1')
    STAMP(10)
    A('s_cmp_ge_u32 s30, 4\ns_cbranch_scc1 L_oproj')
    def chk4():
        A('s_waitcnt vmcnt(0)')
        A('v_xor_b32 v19, s33, v19\nv_xor_b32 v23, s33, v23\nv_xor_b32 v27, s33, v27\nv_xor_b32 v31, s33, v31')
        A('v_or3_b32 v19, v19, v23, v27\nv_or_b32 v19, v19, v31\nv_cmp_ne_u32 vcc, 0, v19')
    poll('L_pollo', [(16 + 4 * e, 'v63', 1024 * e) for e in range(4)], chk4)
    if stamps: A('s_mov_b32 s90, s43')
    STAMP(11)
    A('v_max3_f32 v32, v18, v22, v26\nv_max_f32 v32, v32, v30\nv_mov_b32 v33, v32\nv_permlane32_swap_b32 v32, v33\nv_max_f32 v32, v32, v33')
    for e in range(4): A(f'v_sub_f32 v{18+4*e}, v{18+4*e}, v32')
    for e in range(4): A(f'v_exp_f32 v{18+4*e}, v{18+4*e}')
    for e in range(4): unpack([f'v{36+4*e+j}' for j in range(4)], [f'v{16+4*e}', f'v{17+4*e}'])
    A('v_add_f32 v32, v18, v22\nv_add_f32 v33, v26, v30')
    for j in (0, 2): A(f'v_pk_mul_f32 v[{36+j}:{37+j}], v[{36+j}:{37+j}], v[18:19] op_sel_hi:[1,0]')
    A('v_add_f32 v32, v32, v33')
    for e in range(1, 4):
        for j in (0, 2): A(f'v_pk_fma_f32 v[{36+j}:{37+j}], v[{36+4*e+j}:{37+4*e+j}], v[{18+4*e}:{19+4*e}], v[{36+j}:{37+j}] op_sel_hi:[1,0,1]')
    A('v_mov_b32 v33, v32\nv_permlane32_swap_b32 v32, v33\nv_add_f32 v32, v32, v33\nv_rcp_f32 v32, v32')
    A('v_permlane32_swap_b32 v36, v38\nv_permlane32_swap_b32 v37, v39')
    A('v_pk_add_f32 v[36:37], v[36:37], v[38:39]\nv_pk_mul_f32 v[36:37], v[36:37], v[32:33] op_sel_hi:[1,0]')
    A('v_cvt_pk_bf16_f32 v36, v36, v37')
    A('ds_write_b32 v64, v36')
    A('s_waitcnt lgkmcnt(0)')
    A('s_barrier                    ; B5')
    A('s_branch L_fin')
    A('L_oproj:')
    if wop == 5:
        for a_ in range(4): A(f'global_load_lds_dwordx4 v{10+a_}, s[12:13] offset:{1024*a_}{NT}')
    if wop < 7:
        A(f'v_mov_b32 v51, {FL}\nv_mov_b32 v52, 1\ns_waitcnt vmcnt(0)')
        signal(16)
    spin('L_spw', 16, 4 if wop < 7 else 1)
    STAMP(3)
    for c in range(4):
        for e in range(2): A(f'ds_read_b64_tr_b16 v[{72+4*c+2*e}:{73+4*c+2*e}], v65 offset:{4096*c + 512*e}')
    A('v_mov_b32 v70, s33')
    A('s_waitcnt lgkmcnt(0)')
    A('s_barrier                    ; B5')
    STAMP(11)
    for c in range(4): A(f'ds_read_b128 v[{16+4*c}:{19+4*c}], v66 offset:{64*c}')
    for c in range(4):
        LG(3 - c)
        A(f'v_mfma_f32_16x16x32_bf16 v[56:59], v[{72+4*c}:{75+4*c}], v[{16+4*c}:{19+4*c}], ' + ('0' if c == 0 else 'v[56:59]'))
    A('s_mov_b64 exec, s[48:49]')
    A('v_cndmask_b32 v68, v58, v56, s[46:47]\nv_cndmask_b32 v69, v59, v57, s[46:47]')
    A('global_store_dwordx4 v67, v[68:71], s[28:29] sc1')
    if opt.get('b6'):
        A('s_waitcnt vmcnt(0)')
        signal(20)
    A('L_fin:')
    STAMP(12)
    DUMP(); DIAG('L_dgm')
    A('L_end:')
    A('s_endpgm')
    cur['w8'] = True
    A(f'''
    L_w8:
    s_setprio 3
    s_and_b32 s31, s2, 7           ; x
    {KQ}
    v_lshrrev_b32 v2, 4, v0
    v_and_b32 v50, 3, v0
    s_lshr_b32 s32, s2, 3
    s_lshl_b32 s59, s31, 5
    s_add_u32 s59, s59, s32
    s_lshl_b32 s37, s59, 2
    v_lshl_add_u32 v7, v50, 10, s37
    ''')
    STAMP(0)
    STAMP(1)
    qc = opt.get('qc', 1)
    A('v_bfe_u32 v6, v0, 2, 2')
    A(f's_lshl_b32 s37, s34, 8\ns_add_u32 s37, s37, {XN}\nv_mul_u32_u24 v11, 1088, {"v6" if qc else "v50"}\nv_lshl_add_u32 v11, v2, 4, v11\nv_add_u32 v11, s37, v11')
    A('v_lshrrev_b32 v12, 2, v0\nv_lshl_add_u32 v12, v2, 2, v12\nv_lshlrev_b32 v12, 7, v12\nv_bfe_u32 v13, v0, 3, 2\nv_lshl_add_u32 v12, v13, 5, v12\nv_lshl_add_u32 v12, v50, 3, v12')
    A('v_xor_b32 v3, 32, v12\nv_xor_b32 v4, 64, v12\nv_xor_b32 v5, 96, v12')
    A(f's_lshl_b32 s36, s58, 15\ns_lshl_b32 s37, s32, 8\ns_add_u32 s37, s36, s37\ns_add_u32 s37, s37, {QR}')
    if qc: A('v_lshlrev_b32 v13, 13, v6\nv_lshl_add_u32 v14, v2, 2, v50\nv_lshl_add_u32 v13, v14, 4, v13\nv_add_u32 v13, s37, v13')
    else: A('v_lshlrev_b32 v13, 13, v50\nv_and_b32 v14, 12, v0\nv_add_u32 v14, v14, v2\nv_lshl_add_u32 v13, v14, 4, v13\nv_add_u32 v13, s37, v13')
    if opt.get('pre'): A('global_load_dword v58, v13, s[28:29]' + (' sc1' if opt['pre'] == 2 else ''))
    A(f's_lshl_b32 s36, s31, 15\ns_lshl_b32 s37, s34, 13\ns_add_u32 s37, s36, s37\ns_add_u32 s37, s37, {QR + 4096}')
    A('v_lshl_add_u32 v14, v0, 4, s37')
    if qc:
        A(f'v_lshrrev_b32 v15, 5, v0\nv_lshlrev_b32 v15, 6, v15\nv_lshl_add_u32 v15, v2, 7, v15\nv_lshl_add_u32 v15, v50, 5, v15\nv_lshl_add_u32 v15, v6, 3, v15\nv_add_u32 v15, {QL}, v15')
        A('s_mov_b32 s46, 0x11111111\ns_mov_b32 s47, 0x11111111\ns_lshl_b64 s[48:49], s[46:47], 1\ns_lshl_b64 s[50:51], s[46:47], 2\ns_lshl_b64 s[52:53], s[46:47], 3')
    else:
        A(f'v_lshrrev_b32 v15, 5, v0\nv_lshlrev_b32 v15, 6, v15\nv_lshl_add_u32 v15, v0, 3, v15\nv_add_u32 v15, {QL}, v15')
        A('s_mov_b32 s46, 0x000f000f\ns_mov_b32 s47, 0x000f000f\ns_lshl_b64 s[48:49], s[46:47], 4\ns_lshl_b64 s[50:51], s[46:47], 8\ns_lshl_b64 s[52:53], s[46:47], 12')
    A('s_waitcnt lgkmcnt(0)')
    A('s_mul_i32 s33, s33, 1664525\ns_add_u32 s33, s33, 1013904223')
    NB = opt.get('nb', 5)
    for j in range(4): A(f'v_bfe_u32 v{60+j}, s33, {NB*j}, {NB}')
    A(f's_movk_i32 s44, {(1<<NB)-1}')
    A(f'v_mov_b32 v54, {FL}\nv_mov_b32 v55, 1')
    STAMP(2)
    spin('L_sp8', 0, 8)
    STAMP(4)
    for c in range(4): A(f'ds_read_b128 v[{16+4*c}:{19+4*c}], v11 offset:{64*c}')
    ad = ['v12', 'v3', 'v4', 'v5']
    def sel(t):
        A(f's_mov_b64 exec, s[{46+2*t}:{47+2*t}]')
        for j in range(4): A(f'v_add_u32 v{(48,49,52,53)[j]}, {1<<(NB-1)}, v{32+4*t+j}')
        if t != 2: A('s_mov_b64 exec, -1')
    for t in range(4):
        for c in range(4):
            for e in range(2):
                r = 64 + 16 * t + 4 * c + 2 * e
                A(f'ds_read_b64_tr_b16 v[{r}:{r+1}], {ad[t]} offset:{WQ + 4096*c + 512*e}')
        if t >= 1:
            if t >= 2: sel(t - 2)
            LG(8)
            for c in range(4):
                r = 64 + 16 * (t - 1) + 4 * c
                A(f'v_mfma_f32_16x16x32_bf16 v[{32+4*(t-1)}:{35+4*(t-1)}], v[{r}:{r+3}], v[{16+4*c}:{19+4*c}], ' + ('0' if c == 0 else f'v[{32+4*(t-1)}:{35+4*(t-1)}]'))
    for c in range(4):
        LG(6 - 2 * c)
        r = 64 + 48 + 4 * c
        A(f'v_mfma_f32_16x16x32_bf16 v[44:47], v[{r}:{r+3}], v[{16+4*c}:{19+4*c}], ' + ('0' if c == 0 else 'v[44:47]'))
    sel(2); sel(3)
    for j in range(4): A(f'v_bfi_b32 v{24+j}, s44, v{60+j}, v{(48,49,52,53)[j]}')
    A('global_store_dwordx4 v13, v[24:27], s[28:29] ' + {0: 'sc1', 1: 'sc0 sc1', 2: 'sc1 nt', 3: 'sc0 sc1 nt'}[opt.get('qst', 0)])
    A('ds_write_b32 v54, v55 offset:12')
    A('global_load_dword v9, v7, s[4:5]\ns_load_dword s38, s[22:23], 0')
    if wop >= 7:
        A(f'''s_bfe_u32 s35, s2, 0x30003
        s_xor_b32 s39, s31, 2
        s_xor_b32 s58, s31, 1
        s_xor_b32 s61, s31, 3
        s_cmp_eq_u32 s35, s31
        s_cselect_b32 s39, s39, s58
        s_cselect_b32 s61, s61, s35
        s_lshl2_add_u32 s39, s39, s34
        s_lshl_b32 s40, s39, 17
        s_lshl_b32 s41, s61, 7
        s_add_u32 s40, s40, s41
        v_lshrrev_b32 v64, 3, v0
        v_lshlrev_b32 v64, 10, v64
        v_and_b32 v65, 7, v0
        v_lshl_add_u32 v64, v65, 4, v64
        v_add_u32 v64, s40, v64
        v_add_u32 v65, 7168, v64
        v_add_u32 v66, 14336, v64
        v_add_u32 v67, 21504, v64
        s_mov_b32 m0, {WO}''')
    def wo8():
        for w_ in range(4):
            for a_ in range(4): A(f'global_load_lds_dwordx4 v{64+a_}, s[12:13] offset:{1024*a_}{NT}')
            if w_ < 3: A('s_addk_i32 m0, 4096\ns_add_u32 s12, s12, 32768\ns_addc_u32 s13, s13, 0')
    STAMP(7)
    def chkq():
        for e in range(8):
            r = 16 + 4 * e
            A(f's_waitcnt vmcnt({7-e})')
            if e == 0: STAMP(6)
            for j in range(4): A(f'v_xor_b32 v{r+j}, v{60+j}, v{r+j}')
            if e == 0: A(f'v_or_b32 v57, v{r}, v{r+1}')
            else: A(f'v_or3_b32 v57, v57, v{r}, v{r+1}')
            A(f'v_or3_b32 v57, v57, v{r+2}, v{r+3}')
            if e >= 2:
                for j in (0, 2): A(f'v_pk_add_f32 v[{16+4*(e&1)+j}:{17+4*(e&1)+j}], v[{16+4*(e&1)+j}:{17+4*(e&1)+j}], v[{r+j}:{r+j+1}]')
        A('v_and_b32 v57, s44, v57')
        A('v_cmp_ne_u32 vcc, 0, v57')
    poll('L_pollq', [(16 + 4 * e, 'v14', 1024 * e - 4096) for e in range(8)], chkq, st=5, nowait=opt.get('qnw'), post=lambda: A('ds_write_b32 v54, v55 offset:8\nv_mov_b32 v55, 2'))
    A('ds_write_b32 v54, v55 offset:8')
    if stamps: A('s_mov_b32 s90, s43')
    A('v_cvt_pk_bf16_f32 v16, v16, v17\nv_cvt_pk_bf16_f32 v17, v18, v19\nv_cvt_pk_bf16_f32 v20, v20, v21\nv_cvt_pk_bf16_f32 v21, v22, v23')
    A('ds_write_b64 v15, v[16:17]\nds_write_b64 v15, v[20:21] offset:640')
    STAMP(8)
    A('s_waitcnt lgkmcnt(0)')
    A('s_barrier                    ; B2')
    A(f'v_lshlrev_b32 v11, 3, v50\nv_add_u32 v11, {GY}, v11')
    for w in range(7): A(f'ds_read_b64 v[{16+2*w}:{17+2*w}], v11 offset:{32*w}')
    if wop == 8: wo8()
    A('s_barrier                    ; B3')
    if wop == 7: wo8()
    A('s_setprio 0')
    A(f's_lshl_b32 s37, s59, 11\ns_add_u32 s37, s37, {SR}')
    A('v_lshl_add_u32 v14, v0, 4, s37')
    A('s_waitcnt lgkmcnt(0)')
    A('s_lshl_b32 s38, s38, 16')
    def ep1():
        for w in range(1, 7): A(f'v_pk_add_f32 v[16:17], v[16:17], v[{16+2*w}:{17+2*w}]')
        A('v_cvt_pk_bf16_f32 v18, v16, v17')
        unpack(['v16', 'v17'], ['v18'])
        A('v_add_f32 v16, s38, v16\nv_add_f32 v17, s38, v17\nv_cvt_pk_bf16_f32 v18, v16, v17')
        unpack(['v16', 'v17'], ['v18'])
        A(f'v_mul_f32 v18, {f2h(-LOG2E)}, v16\nv_mul_f32 v19, {f2h(-LOG2E)}, v17')
    def ep2():
        A('v_exp_f32 v18, v18\nv_exp_f32 v19, v19\nv_add_f32 v18, 1.0, v18\nv_add_f32 v19, 1.0, v19\nv_rcp_f32 v18, v18\nv_rcp_f32 v19, v19')
        A('v_mul_f32 v16, v16, v18\nv_mul_f32 v17, v17, v19\nv_cvt_pk_bf16_f32 v18, v16, v17')
        unpack(['v30', 'v31'], ['v18'])
        unpack(['v8', 'v10'], ['v9'])
    ps = opt.get('ps', 0)
    if not ps: ep1(); ep2()
    A('s_barrier                    ; B4')
    if wop >= 7: A('s_waitcnt vmcnt(0)\nds_write_b32 v54, v55 offset:16')
    A('s_barrier                    ; B5')
    STAMP(10)
    if opt.get('b6'): spin('L_sp6', 20, opt['b6'])
    if not ps:
        def chk2():
            A('s_waitcnt vmcnt(0)\nv_cmp_ne_u32 vcc, s33, v19\nv_cmp_ne_u32 s[54:55], s33, v23\ns_or_b64 vcc, vcc, s[54:55]')
        poll('L_polls', [(16, 'v14', 0), (20, 'v14', 1024)], chk2)
        A('v_pk_add_f32 v[16:17], v[16:17], v[20:21]')
    else:
        def sld(r): A(f'global_load_dwordx4 v[{r}:{r+3}], v14, s[28:29] sc1\nglobal_load_dwordx4 v[{r+4}:{r+7}], v14, s[28:29] offset:1024 sc1')
        sld(32); ep1(); sld(40); ep2(); sld(48)
        A(f's_movk_i32 s43, {SPIN}\nL_polls:')
        for r in (32, 40, 48):
            A(f's_waitcnt vmcnt(4)\nv_cmp_ne_u32 vcc, s33, v{r+3}\nv_cmp_ne_u32 s[54:55], s33, v{r+7}\nv_pk_add_f32 v[16:17], v[{r}:{r+1}], v[{r+4}:{r+5}]\ns_or_b64 vcc, vcc, s[54:55]')
            A('s_cbranch_vccz L_polls_done')
            sld(r)
        A('s_sub_u32 s43, s43, 1\ns_cbranch_scc0 L_polls\nL_polls_done:')
    STAMP(11)
    for m in ('row_ror:4', 'row_ror:8'):
        A(f'v_add_f32 v16, v16, v16 {m}\nv_add_f32 v17, v17, v17 {m}')
    xrow([('v16', 'v18'), ('v17', 'v19')], 'v_add_f32')
    A('v_cvt_pk_bf16_f32 v18, v16, v17')
    unpack(['v16', 'v17'], ['v18'])
    A('v_pk_mul_f32 v[16:17], v[16:17], v[30:31]\nv_cvt_pk_bf16_f32 v18, v16, v17')
    unpack(['v16', 'v17'], ['v18'])
    A('v_add_f32 v16, v16, v8\nv_add_f32 v17, v17, v10\nv_cvt_pk_bf16_f32 v18, v16, v17')
    A('s_mov_b64 exec, 15')
    A('global_store_dword v7, v18, s[24:25]')
    A('s_cmp_lg_u32 s2, 0\ns_cbranch_scc1 L_fin8')
    A('s_mov_b64 exec, 1\nv_mov_b32 v20, 0\nv_mov_b32 v21, s33')
    A('global_store_dword v20, v21, s[28:29]')
    A('L_fin8:')
    STAMP(12)
    DUMP(); DIAG('L_dg8')
    A('L_cend:')
    A('s_endpgm')
    A.raw(f'''.section .rodata,"a"
.p2align 6
.amdhsa_kernel {NAME}_kernel
  .amdhsa_next_free_vgpr 128
  .amdhsa_next_free_sgpr 96
  .amdhsa_accum_offset 128
  .amdhsa_group_segment_fixed_size 0
  .amdhsa_kernarg_size 104
  .amdhsa_user_sgpr_count 2
  .amdhsa_user_sgpr_kernarg_segment_ptr 1
  .amdhsa_system_sgpr_workgroup_id_x 1
.end_amdhsa_kernel''')
    return A.text()
if __name__ == '__main__':
    out = sys.argv[1]; stamps = 'stamps' in sys.argv[2:]
    opt = {}
    for k in sys.argv[2:]:
        if k.startswith('diag='): opt['diag'] = tuple(int(x) for x in k[5:].split(','))
        elif '=' in k: opt[k.split('=')[0]] = int(k.split('=')[1])
        else: opt[k] = True
    open(out, 'w').write(gen(stamps, opt))
```

```python
import sys, struct, math
from asmlib import Asm
NAME = 'recurrent_scan__sliding_block_cached__mixer_token_mlp__decode'
def f2h(x): return '0x%08x' % struct.unpack('<I', struct.pack('<f', x))[0]
LOG2E = 1.4426950408889634
def gen(stamps=False, opt=None):
    opt = opt or {}
    NT = '' if opt.get('nont') else ' nt'
    A = Asm()
    small = opt.get('small')
    WQ, KS, VS, WO = (0, 32768, 0, 32768) if small else (0, 16384, 49152, 81920)
    XN = 65536 if small else 98304; QL = XN + 4352; SC = QL + 1280; OL = SC + 2048; HB = OL + 1280; FL = HB + 32; MX = FL + 32; GY = MX + 32
    LDS = GY + 256
    QR, OR_, SR, TS = 0x180000, 0x20000, 0x100000, 0x200000
    SPIN = 20000
    D = opt.get('D', 40); V0 = opt.get('V0', 0); wop = opt.get('wo', 7)
    diag = opt.get('diag'); cur = {'w8': False}
    def STAMP(n):
        if stamps and (not opt.get('lite') or n in (0, 12)): A('s_memrealtime s[%d:%d]' % (64 + 2 * n, 65 + 2 * n))
        if diag and diag[1] == n and ((diag[0] == 8) == cur['w8'] or n == 0): A('s_memrealtime s[92:93]')
    def DIAG(lbl):
        if diag and ((diag[0] == 8) == cur['w8']):
            A(f's_cmp_lg_u32 s30, {diag[0]}\ns_cbranch_scc1 {lbl}_x')
            if not opt.get('dall'): A(f's_cmp_lg_u32 s2, 0\ns_cbranch_scc1 {lbl}_x')
            A(f'{lbl}:\ns_memrealtime s[94:95]\ns_waitcnt lgkmcnt(0)\ns_sub_u32 s94, s94, s92\ns_cmp_lt_u32 s94, 4000\ns_cbranch_scc1 {lbl}\n{lbl}_x:')
    def LG(n): A(f's_waitcnt lgkmcnt({0 if ((stamps and not opt.get("lite")) or diag) else n})')
    def DUMP():
        if stamps:
            A('s_waitcnt lgkmcnt(0)\ns_getreg_b32 s62, hwreg(HW_REG_XCC_ID)\ns_mov_b64 exec, -1\nv_mov_b32 v100, 0')
            for n in range(14): A('v_writelane_b32 v100, s%d, %d' % (64 + 2 * n, n))
            A('v_writelane_b32 v100, s62, 14')
            A('s_lshl_b32 s60, s2, 4\ns_add_u32 s60, s60, s30\ns_lshl_b32 s60, s60, 6\ns_add_u32 s60, s60, %d' % TS)
            A('v_lshl_add_u32 v101, v0, 2, s60\ns_mov_b64 exec, 0xffff\nglobal_store_dword v101, v100, s[28:29]')
    def xrow(pairs, op):
        for sw in ('v_permlane16_swap_b32', 'v_permlane32_swap_b32'):
            for v, t in pairs: A(f'v_mov_b32 {t}, {v}')
            for v, t in pairs: A(f'{sw} {v}, {t}')
            for v, t in pairs: A(f'{op} {v}, {v}, {t}')
    def rnd(d, s): A(f'v_cvt_pk_bf16_f32 {d}, {s}, {s}\nv_lshlrev_b32 {d}, 16, {d}')
    def unpack(dst, src):
        for j, s_ in enumerate(src): A(f'v_lshlrev_b32 {dst[2*j]}, 16, {s_}\nv_and_b32 {dst[2*j+1]}, 0xffff0000, {s_}')
    def poll(lbl, loads, check, st=None, nowait=False, post=None):
        A(f's_movk_i32 s43, {SPIN}')
        if not nowait: A('s_waitcnt vmcnt(0)')
        if st is not None: STAMP(st)
        A(f'{lbl}:')
        for r, addr, off in loads: A(f'global_load_dwordx4 v[{r}:{r+3}], {addr}, s[28:29] offset:{off} sc1')
        if post: post()
        A(f's_sub_u32 s43, s43, 1\ns_cbranch_scc1 {lbl}_done')
        check()
        A(f's_cbranch_vccnz {lbl}')
        A(f'{lbl}_done:\ns_waitcnt vmcnt(0)')
    def spin(lbl, off, cnt):
        A(f'v_mov_b32 v46, {FL}\ns_movk_i32 s43, {SPIN}\n{lbl}:\nds_read_b32 v47, v46 offset:{off}\ns_sub_u32 s43, s43, 1\ns_cbranch_scc1 {lbl}_d\ns_waitcnt lgkmcnt(0)')
        A(f'v_cmp_gt_u32 vcc, {cnt}, v47\ns_cbranch_vccnz {lbl}\n{lbl}_d:')
    def signal(off): A(f's_mov_b64 exec, 1\nds_add_u32 v51, v52 offset:{off}\ns_mov_b64 exec, -1')
    A.raw(f'; @launch grid=(256,1,1) block=(576,1,1) lds={opt.get("lds", LDS)}')
    A.raw('.amdgcn_target "amdgcn-amd-amdhsa--gfx950"\n.text')
    A.raw(f'.globl {NAME}_kernel\n.p2align 8\n.type {NAME}_kernel,@function\n{NAME}_kernel:')
    KQ = {0: 's_xor_b32 s58, s31, 1', 1: 's_lshl1_add_u32 s58, s34, 1\ns_xor_b32 s58, s58, s31', 2: 's_lshl1_add_u32 s58, s34, 1\ns_and_b32 s58, s58, 5\ns_xor_b32 s58, s58, s31'}[opt.get('kq', 0)]
    ROT = {0: 's_lshl_b32 s37, s37, 15', 1: 's_lshl3_add_u32 s37, s37, s35\ns_lshl_b32 s37, s37, 12', 2: 's_lshl3_add_u32 s37, s37, s31\ns_lshl_b32 s37, s37, 12'}[opt.get('rot', 1)]
    def kload():
        for a_ in range(4): A(f'global_load_lds_dwordx4 v{7+a_}, s[6:7] offset:{1024*a_}{NT}')
    def params():
        A('global_load_dwordx2 v[16:17], v6, s[16:17]\nglobal_load_dwordx2 v[18:19], v6, s[18:19]\ns_waitcnt lgkmcnt(0)\nglobal_load_dwordx2 v[20:21], v6, s[20:21]')
    A(f'''
    s_load_dwordx16 s[4:19], s[0:1], 0
    v_lshrrev_b32 v1, 6, v0
    s_lshr_b32 s34, s2, 6
    v_readfirstlane_b32 s30, v1
    s_cmp_ge_u32 s34, 4
    s_cbranch_scc1 L_end
    s_cmp_eq_u32 s30, 8
    s_cbranch_scc0 L_main
    s_getpc_b64 s[56:57]
    L_pc:
    v_and_b32 v0, 63, v0
    v_lshlrev_b32 v4, 7, v0
    v_min_u32 v4, L_cend-L_pc, v4
    global_load_dword v59, v4, s[56:57]     ; code prefetch into L2
    s_branch L_stub
    L_main:
    ''')
    STAMP(0)
    A(f'''
    {'' if opt.get('ka') else 's_load_dwordx8 s[20:27], s[0:1], 64'}
    v_lshlrev_b32 v4, 4, v0        ; tid*16
    s_and_b32 s31, s2, 7           ; x
    s_bfe_u32 s35, s2, 0x30003
    {KQ}
    s_cmp_ge_u32 s30, 4
    s_cbranch_scc1 L_wq
    s_waitcnt lgkmcnt(0)
    global_load_dwordx4 v[12:15], v4, s[4:5]
    s_branch L_kk
    L_wq:
    v_lshrrev_b32 v6, 3, v0
    s_lshl3_add_u32 s36, s58, s35
    v_lshl_add_u32 v7, s34, 7, v6
    v_and_b32 v6, 2, v6
    v_lshl_or_b32 v6, v1, 2, v6
    v_xor_b32 v6, v6, v0
    v_and_b32 v6, 7, v6
    v_lshl_add_u32 v6, s36, 3, v6
    v_lshl_add_u32 v7, v7, 9, v6
    v_lshlrev_b32 v7, 4, v7
    s_lshl_b32 m0, s30, 10
    s_waitcnt lgkmcnt(0)
    global_load_lds_dwordx4 v7, s[10:11]{NT}
    s_addk_i32 m0, 4096
    v_add_u32 v7, 0x40000, v7
    global_load_lds_dwordx4 v7, s[10:11]{NT}
    s_addk_i32 m0, 4096
    v_add_u32 v7, 0x40000, v7
    global_load_lds_dwordx4 v7, s[10:11]{NT}
    s_addk_i32 m0, -12288
    v_add_u32 v7, 0xfff40000, v7
    global_load_lds_dwordx4 v7, s[10:11]{NT}
    L_kk:
    ''')
    STAMP(1)
    A(f'''
    {'s_load_dwordx8 s[20:27], s[0:1], 64' if opt.get('ka') else ''}
    s_lshl3_add_u32 s37, s34, s31
    s_lshl2_add_u32 s37, s37, 3
    s_lshl3_add_u32 s37, s37, s35
    s_lshl_b32 s38, s30, 12        ; w*4096
    v_and_b32 v0, 63, v0
    v_lshrrev_b32 v2, 4, v0        ; g
    v_xor_b32 v7, v2, v0
    {ROT}
    s_xor_b32 s40, s37, s38
    v_lshl_add_u32 v7, v7, 4, s40
    s_add_u32 m0, s38, {KS}
    v_xor_b32 v8, 64, v7
    v_xor_b32 v9, 128, v7
    v_xor_b32 v10, 64, v9
    v_lshrrev_b32 v6, 1, v4        ; w*512 + l*8
    s_cmp_eq_u32 s30, 7
    s_barrier
    s_cbranch_scc1 {'L_go' if opt.get('kh', 7) == 8 else 'L_k7'}
    global_load_dwordx2 v[16:17], v6, s[16:17]
    global_load_dwordx2 v[18:19], v6, s[18:19]
    {'s_waitcnt lgkmcnt(0)' if opt.get('ka') else ''}
    global_load_dwordx2 v[20:21], v6, s[20:21]
    s_cmp_lt_u32 s30, {opt.get('kh', 7)}
    s_cbranch_scc1 L_go
    L_k7:
    ''')
    kload()
    A(f'''
    s_branch L_go
    L_stub:
    v_lshlrev_b32 v46, 2, v0
    v_bfe_i32 v48, v0, 3, 1
    v_add_u32 v46, {FL}, v46
    v_lshlrev_b32 v48, 23, v48
    ds_write_b32 v46, v48
    s_waitcnt lgkmcnt(0)
    s_barrier                    ; B0
    s_load_dwordx2 s[28:29], s[0:1], 96
    s_load_dwordx8 s[20:27], s[0:1], 64
    s_waitcnt lgkmcnt(0)
    s_load_dword s33, s[28:29], 0
    s_branch L_w8
    L_go:
    ''')
    STAMP(2)
    A(f'''
    s_load_dwordx2 s[28:29], s[0:1], 96
    v_and_b32 v3, 15, v0           ; n
    v_and_b32 v4, 0x3ff, v4        ; l*16
    v_and_b32 v50, 3, v0
    v_mov_b32 v51, {FL}
    v_mov_b32 v52, 1
    s_lshr_b32 s32, s2, 3
    s_lshl_b32 s59, s31, 5
    s_add_u32 s59, s59, s32
    s_cmp_ge_u32 s30, 4
    s_cbranch_scc1 L_noln
    s_waitcnt vmcnt(3)
    ''')
    STAMP(3)
    a = ['v%d' % (24 + j) for j in range(8)]
    def ln_stats():
        A('v_readfirstlane_b32 s44, v24')
        for j in range(0, 8, 2): A(f'v_pk_add_f32 v[{32+j}:{33+j}], v[{24+j}:{25+j}], s[44:45] op_sel_hi:[1,0] neg_lo:[0,1] neg_hi:[0,1]')
        A('v_pk_add_f32 v[40:41], v[32:33], v[34:35]\nv_pk_mul_f32 v[42:43], v[32:33], v[32:33]\nv_pk_add_f32 v[44:45], v[36:37], v[38:39]\nv_pk_fma_f32 v[42:43], v[34:35], v[34:35], v[42:43]')
        A('v_pk_add_f32 v[40:41], v[40:41], v[44:45]\nv_pk_fma_f32 v[42:43], v[36:37], v[36:37], v[42:43]\nv_add_f32 v40, v40, v41\nv_pk_fma_f32 v[42:43], v[38:39], v[38:39], v[42:43]\nv_add_f32 v41, v42, v43')
        for m in ('quad_perm:[1,0,3,2]', 'quad_perm:[2,3,0,1]', 'row_ror:4', 'row_ror:8'):
            A(f'v_add_f32 v40, v40, v40 {m}\nv_add_f32 v41, v41, v41 {m}')
        xrow([('v40', 'v42'), ('v41', 'v43')], 'v_add_f32')
        A(f'v_mul_f32 v40, {f2h(1/512)}, v40\nv_mul_f32 v41, {f2h(1/512)}, v41')
        A('v_fma_f32 v41, -v40, v40, v41\nv_add_f32 v40, s44, v40\nv_max_f32 v41, 0, v41')
        A('v_cvt_pk_bf16_f32 v42, v40, v41\nv_and_b32 v41, 0xffff0000, v42\nv_lshlrev_b32 v40, 16, v42')
        A(f'v_add_f32 v41, {f2h(1e-5)}, v41')
        rnd('v41', 'v41')
        A('v_sqrt_f32 v41, v41')
    unpack(a, ['v12', 'v13', 'v14', 'v15'])
    ln_stats()
    for j in range(0, 8, 2): A(f'v_pk_add_f32 v[{24+j}:{25+j}], v[{24+j}:{25+j}], v[40:41] op_sel_hi:[1,0] neg_lo:[0,1] neg_hi:[0,1]')
    rnd('v41', 'v41')
    A('v_rcp_f32 v41, v41')
    for j in range(4): A(f'v_cvt_pk_bf16_f32 v{12+j}, {a[2*j]}, {a[2*j+1]}')
    unpack(a, ['v12', 'v13', 'v14', 'v15'])
    for j in range(0, 8, 2): A(f'v_pk_mul_f32 v[{24+j}:{25+j}], v[{24+j}:{25+j}], v[40:41] op_sel:[0,1] op_sel_hi:[1,1]')
    A(f's_mul_i32 s42, s30, 1088\ns_add_u32 s42, s42, {XN}')
    A('v_add_u32 v45, s42, v4')
    for j in range(4): A(f'v_cvt_pk_bf16_f32 v{12+j}, {a[2*j]}, {a[2*j+1]}')
    A('ds_write_b128 v45, v[12:15]')
    kl = opt.get('kl', 2)
    signal(0)
    if kl > 0:
        if kl < 4: A(f's_cmp_ge_u32 s30, {kl}\ns_cbranch_scc1 L_k3')
        kload()
        A('L_k3:')
    A('s_lshl_b32 s43, s59, 2\ns_add_u32 s43, s43, s42\nv_mov_b32 v46, s43')
    A('ds_read_b32 v47, v46')
    unpack(a, ['v12', 'v13', 'v14', 'v15'])
    ln_stats()
    rnd('v41', 'v41')
    A('v_rcp_f32 v41, v41')
    A('s_waitcnt lgkmcnt(0)')
    unpack(['v48', 'v49'], ['v47'])
    A('v_sub_f32 v48, v48, v40\nv_sub_f32 v49, v49, v40\nv_cvt_pk_bf16_f32 v47, v48, v49')
    unpack(['v48', 'v49'], ['v47'])
    A('v_mul_f32 v48, v48, v41\nv_mul_f32 v49, v49, v41\nv_cvt_pk_bf16_f32 v47, v48, v49')
    unpack(['v48', 'v49'], ['v47'])
    A(f's_lshl_b32 s43, s30, 3\ns_add_u32 s43, s43, {HB}\nv_mov_b32 v46, s43')
    A('s_mov_b64 exec, 1\nds_write_b64 v46, v[48:49]\nds_add_u32 v51, v52 offset:4\ns_mov_b64 exec, -1')
    if kl < 4:
        if kl > 0: A(f's_cmp_lt_u32 s30, {kl}\ns_cbranch_scc1 L_gelu')
        spin('L_spk', 12, 1)
        kload()
    A('s_branch L_gelu')
    A('L_noln:')
    A('s_cmp_eq_u32 s30, 7\ns_cbranch_scc1 L_loader')
    kh = opt.get('kh', 7)
    if kh < 7:
        A(f's_cmp_lt_u32 s30, {kh}\ns_cbranch_scc1 L_kh\ns_waitcnt vmcnt(7)')
        signal(0)
        A('s_branch L_gelu\nL_kh:')
    A('s_waitcnt vmcnt(3)')
    signal(0)
    STAMP(2)
    if opt.get('kw'):
        A(f's_cmp_ge_u32 s30, {4 + opt["kw"]}\ns_cbranch_scc1 L_spw4_d')
        spin('L_spw4', 12, 1)
    kload()
    A('L_gelu:')
    A('s_waitcnt lgkmcnt(0)\ns_load_dword s33, s[28:29], 0')
    STAMP(4)
    spin('L_spg', 4, 4)
    A(f'v_mov_b32 v46, {HB}')
    A('ds_read_b128 v[24:27], v46\nds_read_b128 v[28:31], v46 offset:16')
    A('s_waitcnt vmcnt(4)')
    unpack(['v32', 'v33', 'v34', 'v35'], ['v16', 'v17'])
    unpack(['v36', 'v37', 'v38', 'v39'], ['v18', 'v19'])
    unpack(['v40', 'v41', 'v42', 'v43'], ['v20', 'v21'])
    c0 = math.sqrt(2 / math.pi)
    A(f'v_mov_b32 v44, {f2h(-2 * c0 * 0.044715 * LOG2E)}\nv_mov_b32 v45, {f2h(-2 * c0 * LOG2E)}')
    A('s_waitcnt lgkmcnt(0)')
    for o in range(8):
        hp = 24 + (o & ~1); sel = o & 1
        acc = 72 + 2 * o
        for j in (0, 2): A(f'v_pk_fma_f32 v[{56+j}:{57+j}], v[{32+j}:{33+j}], v[{hp}:{hp+1}], v[{36+j}:{37+j}] op_sel:[0,{sel},0] op_sel_hi:[1,{sel},1]')
        for j in (0, 2): A(f'v_pk_mul_f32 v[{52+j}:{53+j}], v[{56+j}:{57+j}], v[{56+j}:{57+j}]')
        for j in (0, 2): A(f'v_pk_fma_f32 v[{52+j}:{53+j}], v[{52+j}:{53+j}], v[44:45], v[44:45] op_sel:[0,0,1] op_sel_hi:[1,0,1]')
        for j in (0, 2): A(f'v_pk_mul_f32 v[{52+j}:{53+j}], v[{52+j}:{53+j}], v[{56+j}:{57+j}]')
        for j in range(4): A(f'v_exp_f32 v{52+j}, v{52+j}')
        for j in (0, 2): A(f'v_pk_mul_f32 v[{56+j}:{57+j}], v[{56+j}:{57+j}], v[{40+j}:{41+j}]')
        for j in (0, 2): A(f'v_pk_add_f32 v[{52+j}:{53+j}], v[{52+j}:{53+j}], 1.0 op_sel_hi:[1,0]')
        for j in range(4): A(f'v_rcp_f32 v{52+j}, v{52+j}')
        A(f'v_pk_mul_f32 v[{acc}:{acc+1}], v[56:57], v[52:53]')
        A(f'v_pk_fma_f32 v[{acc}:{acc+1}], v[58:59], v[54:55], v[{acc}:{acc+1}]')
    for o in range(8): A(f'v_add_f32 v{64+o}, v{72+2*o}, v{73+2*o}')
    for o in range(4): A(f'v_permlane32_swap_b32 v{64+o}, v{68+o}')
    for o in range(4): A(f'v_add_f32 v{64+o}, v{64+o}, v{68+o}')
    for o in range(2): A(f'v_permlane16_swap_b32 v{64+o}, v{66+o}')
    for o in range(2): A(f'v_add_f32 v{64+o}, v{64+o}, v{66+o}')
    for m in ('quad_perm:[1,0,3,2]', 'quad_perm:[2,3,0,1]', 'row_ror:4', 'row_ror:8'):
        for o in range(2): A(f'v_add_f32 v{64+o}, v{64+o}, v{64+o} {m}')
    A(f's_lshl_b32 s43, s30, 5\ns_add_u32 s43, s43, {GY}')
    A('v_lshl_add_u32 v46, v2, 3, s43')
    A('s_mov_b32 exec_lo, 0x00010001\ns_mov_b32 exec_hi, 0x00010001')
    A('ds_write_b64 v46, v[64:65]')
    A('s_mov_b64 exec, -1')
    STAMP(5)
    A('s_waitcnt vmcnt(0)')
    A('s_branch L_nogelu')
    A('L_loader:')
    if opt.get('tw'): A('s_load_dword s60, s[8:9], s37\ns_lshl_b32 s36, s58, 19\ns_load_dword s61, s[12:13], s36\ns_load_dword s62, s[24:25], 0')
    A('s_setprio 2\ns_waitcnt vmcnt(%d)' % (0 if kh == 8 else 4))
    signal(0)
    if kh == 8: kload()
    A('s_waitcnt lgkmcnt(0)\ns_load_dword s33, s[28:29], 0')
    A(f'''
    v_lshlrev_b32 v8, 1, v2
    v_xor_b32 v8, v3, v8
    v_lshlrev_b32 v8, 4, v8
    v_lshl_add_u32 v8, v2, 8, v8
    v_add_u32 v8, s37, v8
    {'v_xor_b32 v8, 16384, v8' if small else ''}
    v_xor_b32 v9, 128, v8
    s_mov_b32 m0, {VS + (16384 if small else 0)}''')
    A(f's_waitcnt vmcnt({V0})')
    STAMP(4)
    V1 = opt.get('V1', 2)
    vg = [0]
    def vgrp():
        for a_ in range(4): A(f'global_load_lds_dwordx4 v{8+(a_&1)}, s[8:9] offset:{1024*a_}{NT}')
        j = vg[0]; vg[0] += 1
        if j < 7: A(f's_addk_i32 m0, {-28672 if (small and j == 3) else 4096}\nv_xor_b32 v8, {(j ^ (j + 1)) << 12}, v8\nv_xor_b32 v9, {(j ^ (j + 1)) << 12}, v9')
    for _ in range(V1): vgrp()
    A('L_nogelu:')
    A(f's_add_u32 s43, s38, {KS}')
    A('v_xor_b32 v46, v2, v3\nv_lshlrev_b32 v46, 4, v46\nv_lshl_add_u32 v46, v3, 8, v46\nv_add_u32 v46, s43, v46')
    A('v_xor_b32 v47, 64, v46\nv_xor_b32 v48, 128, v46\nv_xor_b32 v49, 192, v46')
    for i in range(4): A(f'ds_read_b128 v[{16+4*i}:{19+4*i}], v{46+i}')
    A('''s_xor_b32 s39, s31, 2
    s_xor_b32 s58, s31, 1
    s_xor_b32 s61, s31, 3
    s_cmp_eq_u32 s35, s31
    s_cselect_b32 s39, s39, s58
    s_cselect_b32 s61, s61, s35    ; c_o
    s_lshl_b32 s39, s39, 2
    s_add_u32 s39, s39, s34        ; h_o = k_o*4 + hl''')
    A(f'v_mul_u32_u24 v51, 320, v50\nv_lshl_add_u32 v51, v2, 4, v51\nv_add_u32 v66, {OL}, v51\nv_add_u32 v51, {QL}, v51')
    A(f's_lshl_b32 s43, s30, 8\ns_add_u32 s43, s43, {SC}')
    A('v_lshl_add_u32 v52, v2, 2, v50\nv_lshlrev_b32 v52, 4, v52       ; (g*4+h)*16')
    A('v_add_u32 v53, s43, v52')
    A(f'v_lshrrev_b32 v54, 2, v3\nv_lshl_add_u32 v54, v54, 9, v52\nv_add_u32 v54, {SC}, v54')
    A('v_lshrrev_b32 v60, 2, v0      ; 4g+r')
    A('v_and_b32 v61, 7, v60\nv_xor_b32 v61, s30, v61\nv_lshlrev_b32 v61, 5, v61')
    A('v_lshl_add_u32 v61, v60, 8, v61\nv_lshl_add_u32 v61, v50, 3, v61')
    A(f'v_add_u32 v61, {VS}, v61')
    A(f's_lshl_b32 s43, s31, 16\ns_lshl_b32 s45, s32, 9\ns_add_u32 s43, s43, s45\ns_lshl_b32 s45, s30, 6\ns_add_u32 s43, s43, s45\ns_add_u32 s43, s43, {OR_}')
    A('v_lshlrev_b32 v62, 14, v50\nv_lshl_add_u32 v62, v2, 4, v62\nv_add_u32 v62, s43, v62')
    A(f's_lshl_b32 s43, s39, 14\ns_add_u32 s43, s43, s38\ns_add_u32 s43, s43, {OR_}')
    A('v_add_u32 v63, s43, v4')
    A(f's_mul_i32 s43, s30, 320\ns_add_u32 s43, s43, {OL}\nv_and_b32 v64, 31, v0\nv_lshl_add_u32 v64, v64, 3, s43\nv_lshrrev_b32 v33, 5, v0\nv_lshl_add_u32 v64, v33, 2, v64')
    A(f's_lshl_b32 s43, s30, 5\ns_add_u32 s43, s43, {WO - 128}')
    A('v_lshl_add_u32 v65, v2, 2, v60\nv_lshlrev_b32 v65, 7, v65\nv_lshl_add_u32 v65, v50, 3, v65\nv_add_u32 v65, s43, v65')
    A(f's_lshl_b32 s43, s61, 16\ns_lshl_b32 s45, s30, 14\ns_add_u32 s43, s43, s45\ns_lshl_b32 s45, s39, 6\ns_add_u32 s43, s43, s45\ns_add_u32 s43, s43, {SR - 4*16384}')
    A('v_bfe_u32 v67, v0, 2, 1\nv_lshl_add_u32 v67, v2, 1, v67\nv_lshlrev_b32 v67, 11, v67\nv_lshl_add_u32 v67, v50, 4, v67\nv_add_u32 v67, s43, v67')
    A(f'''s_lshl_b32 s40, s39, 17
    s_lshl_b32 s41, s61, 7
    s_add_u32 s40, s40, s41
    s_and_b32 s41, s30, 3
    s_lshl_b32 s41, s41, 15
    s_add_u32 s40, s40, s41
    v_lshrrev_b32 v10, 3, v0
    v_lshlrev_b32 v10, 10, v10
    v_and_b32 v11, 7, v0
    v_lshl_add_u32 v10, v11, 4, v10
    v_add_u32 v10, s40, v10
    v_add_u32 v11, 7168, v10
    v_add_u32 v12, 14336, v10
    v_add_u32 v13, 21504, v10
    s_lshr_b32 s41, s41, 3
    v_lshlrev_b32 v14, 2, v50
    v_add_u32 v14, {MX}, v14''')
    def woload(lbl):
        A(f's_cmp_lt_u32 s30, 4\ns_cbranch_scc1 {lbl}')
        for a_ in range(4): A(f'global_load_lds_dwordx4 v{10+a_}, s[12:13] offset:{1024*a_}{NT}')
        A(f'{lbl}:')
    A('s_mov_b32 s46, 0x000f000f\ns_mov_b32 s47, 0x000f000f\ns_mov_b32 s48, 0x00ff00ff\ns_mov_b32 s49, 0x00ff00ff')
    A('s_waitcnt lgkmcnt(0)')
    A('s_mul_i32 s33, s33, 1664525\ns_add_u32 s33, s33, 1013904223')
    A(f's_mov_b32 s44, {f2h(128 ** -0.5)}\ns_mov_b32 s45, {f2h(LOG2E)}')
    A('v_mov_b32 v71, s33')
    A('s_cmp_lg_u32 s30, 7\ns_cbranch_scc1 L_b2')
    VA = opt.get('VA', 4)
    spin('L_spv', 8, 1)
    STAMP(3)
    for _ in range(VA): vgrp()
    if V1 + VA < 8:
        spin('L_spv2', 8, 2)
        for _ in range(8 - V1 - VA): vgrp()
    A('s_setprio 0')
    STAMP(5)
    A('L_b2:')
    A(f's_add_u32 m0, s41, {WO}')
    STAMP(6)
    A('s_barrier                    ; B2')
    STAMP(7)
    for i in range(4): A(f'ds_read_b128 v[{32+4*i}:{35+4*i}], v51 offset:{64*i}')
    if wop == 2: woload('L_wo2')
    for i in range(4):
        LG(3 - i)
        A(f'v_mfma_f32_16x16x32_bf16 v[56:59], v[{16+4*i}:{19+4*i}], v[{32+4*i}:{35+4*i}], ' + ('0' if i == 0 else 'v[56:59]'))
    A('s_mov_b64 exec, s[46:47]')
    A('v_cvt_pk_bf16_f32 v68, v56, v57\nv_cvt_pk_bf16_f32 v69, v58, v59')
    unpack(['v56', 'v57', 'v58', 'v59'], ['v68', 'v69'])
    for j in (0, 2): A(f'v_pk_mul_f32 v[{56+j}:{57+j}], v[{56+j}:{57+j}], s[44:45] op_sel_hi:[1,0]')
    A('v_cvt_pk_bf16_f32 v68, v56, v57\nv_cvt_pk_bf16_f32 v69, v58, v59')
    unpack(['v56', 'v57', 'v58', 'v59'], ['v68', 'v69'])
    A('ds_write_b128 v53, v[56:59]')
    A('v_max3_f32 v24, v56, v57, v58\nv_max_f32 v24, v24, v59')
    A('ds_max_f32 v14, v24')
    A('s_mov_b64 exec, -1')
    A('s_waitcnt lgkmcnt(0)')
    A('s_barrier                    ; B3')
    A('ds_read_b32 v24, v14\nds_read_b128 v[16:19], v54\nds_read_b128 v[20:23], v54 offset:256')
    if wop == 6: woload('L_wo6')
    LG(2)
    A('v_mul_f32 v24, s45, v24')
    LG(1)
    for j in range(0, 8, 2):
        if j == 4: A('s_waitcnt lgkmcnt(0)')
        A(f'v_pk_fma_f32 v[{16+j}:{17+j}], v[{16+j}:{17+j}], s[44:45], v[24:25] op_sel:[0,1,0] op_sel_hi:[1,1,0] neg_lo:[0,0,1] neg_hi:[0,0,1]')
    for j in range(8): A(f'v_exp_f32 v{16+j}, v{16+j}')
    for j in range(4): A(f'v_cvt_pk_bf16_f32 v{32+j}, v{16+2*j}, v{17+2*j}')
    sp = opt.get('sp', 1)
    def rot():
        for k in range(1, 4):
            for j in range(4): A(f'v_mov_b32 v{32+4*k+j}, v{32+j} row_ror:{16-4*k}')
    tree = ['v_pk_add_f32 v[26:27], v[16:17], v[18:19]\nv_pk_add_f32 v[28:29], v[20:21], v[22:23]',
            'v_pk_add_f32 v[26:27], v[26:27], v[28:29]\nv_add_f32 v26, v26, v27',
            'v_add_f32 v26, v26, v26 row_ror:4\nv_add_f32 v26, v26, v26 row_ror:8',
            'v_mov_b32 v25, v26\nv_permlane16_swap_b32 v26, v25\nv_add_f32 v26, v26, v25',
            'v_mov_b32 v25, v26\nv_permlane32_swap_b32 v26, v25\nv_add_f32 v26, v26, v25\nv_rcp_f32 v27, v26\nv_log_f32 v26, v26']
    if sp >= 1:
        for t_ in tree: A(t_)
    if sp >= 2: rot()
    if wop == 3: woload('L_wo3')
    STAMP(8)
    A('s_waitcnt vmcnt(%d)' % (4 if wop in (2, 3, 6) else 0))
    STAMP(9)
    A('s_barrier                    ; B4')
    for e in range(8): A(f'ds_read_b64_tr_b16 v[{72+2*e}:{73+2*e}], v61 offset:{4096*e}')
    if wop == 4: woload('L_wo4')
    if sp < 2: rot()
    for k in range(4):
        if sp == 0: A(tree[k])
        LG(6 - 2 * k)
        A(f'v_mfma_f32_16x16x32_bf16 v[56:59], v[{72+4*k}:{75+4*k}], v[{32+4*k}:{35+4*k}], ' + ('0' if k == 0 else 'v[56:59]'))
    if sp == 0: A(tree[4])
    A('s_mov_b64 exec, s[46:47]')
    for j in (0, 2): A(f'v_pk_mul_f32 v[{56+j}:{57+j}], v[{56+j}:{57+j}], v[26:27] op_sel:[0,1] op_sel_hi:[1,1]')
    A('v_add_f32 v70, v24, v26')
    A('v_cvt_pk_bf16_f32 v68, v56, v57\nv_cvt_pk_bf16_f32 v69, v58, v59')
    A('global_store_dwordx4 v62, v[68:71], s[28:29] sc1')
    A('s_mov_b64 exec, -1')
    STAMP(10)
    A('s_cmp_ge_u32 s30, 4\ns_cbranch_scc1 L_oproj')
    def chk4():
        A('s_waitcnt vmcnt(0)')
        A('v_xor_b32 v19, s33, v19\nv_xor_b32 v23, s33, v23\nv_xor_b32 v27, s33, v27\nv_xor_b32 v31, s33, v31')
        A('v_or3_b32 v19, v19, v23, v27\nv_or_b32 v19, v19, v31\nv_cmp_ne_u32 vcc, 0, v19')
    poll('L_pollo', [(16 + 4 * e, 'v63', 1024 * e) for e in range(4)], chk4)
    if stamps: A('s_mov_b32 s90, s43')
    STAMP(11)
    A('v_max3_f32 v32, v18, v22, v26\nv_max_f32 v32, v32, v30\nv_mov_b32 v33, v32\nv_permlane32_swap_b32 v32, v33\nv_max_f32 v32, v32, v33')
    for e in range(4): A(f'v_sub_f32 v{18+4*e}, v{18+4*e}, v32')
    for e in range(4): A(f'v_exp_f32 v{18+4*e}, v{18+4*e}')
    for e in range(4): unpack([f'v{36+4*e+j}' for j in range(4)], [f'v{16+4*e}', f'v{17+4*e}'])
    A('v_add_f32 v32, v18, v22\nv_add_f32 v33, v26, v30')
    for j in (0, 2): A(f'v_pk_mul_f32 v[{36+j}:{37+j}], v[{36+j}:{37+j}], v[18:19] op_sel_hi:[1,0]')
    A('v_add_f32 v32, v32, v33')
    for e in range(1, 4):
        for j in (0, 2): A(f'v_pk_fma_f32 v[{36+j}:{37+j}], v[{36+4*e+j}:{37+4*e+j}], v[{18+4*e}:{19+4*e}], v[{36+j}:{37+j}] op_sel_hi:[1,0,1]')
    A('v_mov_b32 v33, v32\nv_permlane32_swap_b32 v32, v33\nv_add_f32 v32, v32, v33\nv_rcp_f32 v32, v32')
    A('v_permlane32_swap_b32 v36, v38\nv_permlane32_swap_b32 v37, v39')
    A('v_pk_add_f32 v[36:37], v[36:37], v[38:39]\nv_pk_mul_f32 v[36:37], v[36:37], v[32:33] op_sel_hi:[1,0]')
    A('v_cvt_pk_bf16_f32 v36, v36, v37')
    A('ds_write_b32 v64, v36')
    A('s_waitcnt lgkmcnt(0)')
    A('s_barrier                    ; B5')
    A('s_branch L_fin')
    A('L_oproj:')
    if wop == 5:
        for a_ in range(4): A(f'global_load_lds_dwordx4 v{10+a_}, s[12:13] offset:{1024*a_}{NT}')
    if wop < 7:
        A(f'v_mov_b32 v51, {FL}\nv_mov_b32 v52, 1\ns_waitcnt vmcnt(0)')
        signal(16)
    spin('L_spw', 16, 4 if wop < 7 else 1)
    STAMP(3)
    for c in range(4):
        for e in range(2): A(f'ds_read_b64_tr_b16 v[{72+4*c+2*e}:{73+4*c+2*e}], v65 offset:{4096*c + 512*e}')
    A('v_mov_b32 v70, s33')
    A('s_waitcnt lgkmcnt(0)')
    A('s_barrier                    ; B5')
    STAMP(11)
    for c in range(4): A(f'ds_read_b128 v[{16+4*c}:{19+4*c}], v66 offset:{64*c}')
    for c in range(4):
        LG(3 - c)
        A(f'v_mfma_f32_16x16x32_bf16 v[56:59], v[{72+4*c}:{75+4*c}], v[{16+4*c}:{19+4*c}], ' + ('0' if c == 0 else 'v[56:59]'))
    A('s_mov_b64 exec, s[48:49]')
    A('v_cndmask_b32 v68, v58, v56, s[46:47]\nv_cndmask_b32 v69, v59, v57, s[46:47]')
    A('global_store_dwordx4 v67, v[68:71], s[28:29] sc1')
    if opt.get('b6'):
        A('s_waitcnt vmcnt(0)')
        signal(20)
    A('L_fin:')
    STAMP(12)
    DUMP(); DIAG('L_dgm')
    A('L_end:')
    A('s_endpgm')
    cur['w8'] = True
    A(f'''
    L_w8:
    s_setprio 3
    s_and_b32 s31, s2, 7           ; x
    {KQ}
    v_lshrrev_b32 v2, 4, v0
    v_and_b32 v50, 3, v0
    s_lshr_b32 s32, s2, 3
    s_lshl_b32 s59, s31, 5
    s_add_u32 s59, s59, s32
    s_lshl_b32 s37, s59, 2
    v_lshl_add_u32 v7, v50, 10, s37
    ''')
    STAMP(0)
    STAMP(1)
    qc = opt.get('qc', 1)
    A('v_bfe_u32 v6, v0, 2, 2')
    A(f's_lshl_b32 s37, s34, 8\ns_add_u32 s37, s37, {XN}\nv_mul_u32_u24 v11, 1088, {"v6" if qc else "v50"}\nv_lshl_add_u32 v11, v2, 4, v11\nv_add_u32 v11, s37, v11')
    A('v_lshrrev_b32 v12, 2, v0\nv_lshl_add_u32 v12, v2, 2, v12\nv_lshlrev_b32 v12, 7, v12\nv_bfe_u32 v13, v0, 3, 2\nv_lshl_add_u32 v12, v13, 5, v12\nv_lshl_add_u32 v12, v50, 3, v12')
    A('v_xor_b32 v3, 32, v12\nv_xor_b32 v4, 64, v12\nv_xor_b32 v5, 96, v12')
    A(f's_lshl_b32 s36, s58, 15\ns_lshl_b32 s37, s32, 8\ns_add_u32 s37, s36, s37\ns_add_u32 s37, s37, {QR}')
    if qc: A('v_lshlrev_b32 v13, 13, v6\nv_lshl_add_u32 v14, v2, 2, v50\nv_lshl_add_u32 v13, v14, 4, v13\nv_add_u32 v13, s37, v13')
    else: A('v_lshlrev_b32 v13, 13, v50\nv_and_b32 v14, 12, v0\nv_add_u32 v14, v14, v2\nv_lshl_add_u32 v13, v14, 4, v13\nv_add_u32 v13, s37, v13')
    if opt.get('pre'): A('global_load_dword v58, v13, s[28:29]' + (' sc1' if opt['pre'] == 2 else ''))
    A(f's_lshl_b32 s36, s31, 15\ns_lshl_b32 s37, s34, 13\ns_add_u32 s37, s36, s37\ns_add_u32 s37, s37, {QR + 4096}')
    A('v_lshl_add_u32 v14, v0, 4, s37')
    if qc:
        A(f'v_lshrrev_b32 v15, 5, v0\nv_lshlrev_b32 v15, 6, v15\nv_lshl_add_u32 v15, v2, 7, v15\nv_lshl_add_u32 v15, v50, 5, v15\nv_lshl_add_u32 v15, v6, 3, v15\nv_add_u32 v15, {QL}, v15')
        A('s_mov_b32 s46, 0x11111111\ns_mov_b32 s47, 0x11111111\ns_lshl_b64 s[48:49], s[46:47], 1\ns_lshl_b64 s[50:51], s[46:47], 2\ns_lshl_b64 s[52:53], s[46:47], 3')
    else:
        A(f'v_lshrrev_b32 v15, 5, v0\nv_lshlrev_b32 v15, 6, v15\nv_lshl_add_u32 v15, v0, 3, v15\nv_add_u32 v15, {QL}, v15')
        A('s_mov_b32 s46, 0x000f000f\ns_mov_b32 s47, 0x000f000f\ns_lshl_b64 s[48:49], s[46:47], 4\ns_lshl_b64 s[50:51], s[46:47], 8\ns_lshl_b64 s[52:53], s[46:47], 12')
    A('s_waitcnt lgkmcnt(0)')
    A('s_mul_i32 s33, s33, 1664525\ns_add_u32 s33, s33, 1013904223')
    NB = opt.get('nb', 5)
    for j in range(4): A(f'v_bfe_u32 v{60+j}, s33, {NB*j}, {NB}')
    A(f's_movk_i32 s44, {(1<<NB)-1}')
    A(f'v_mov_b32 v54, {FL}\nv_mov_b32 v55, 1')
    STAMP(2)
    spin('L_sp8', 0, 8)
    STAMP(4)
    for c in range(4): A(f'ds_read_b128 v[{16+4*c}:{19+4*c}], v11 offset:{64*c}')
    ad = ['v12', 'v3', 'v4', 'v5']
    def sel(t):
        A(f's_mov_b64 exec, s[{46+2*t}:{47+2*t}]')
        for j in range(4): A(f'v_add_u32 v{(48,49,52,53)[j]}, {1<<(NB-1)}, v{32+4*t+j}')
        if t != 2: A('s_mov_b64 exec, -1')
    for t in range(4):
        for c in range(4):
            for e in range(2):
                r = 64 + 16 * t + 4 * c + 2 * e
                A(f'ds_read_b64_tr_b16 v[{r}:{r+1}], {ad[t]} offset:{WQ + 4096*c + 512*e}')
        if t >= 1:
            if t >= 2: sel(t - 2)
            LG(8)
            for c in range(4):
                r = 64 + 16 * (t - 1) + 4 * c
                A(f'v_mfma_f32_16x16x32_bf16 v[{32+4*(t-1)}:{35+4*(t-1)}], v[{r}:{r+3}], v[{16+4*c}:{19+4*c}], ' + ('0' if c == 0 else f'v[{32+4*(t-1)}:{35+4*(t-1)}]'))
    for c in range(4):
        LG(6 - 2 * c)
        r = 64 + 48 + 4 * c
        A(f'v_mfma_f32_16x16x32_bf16 v[44:47], v[{r}:{r+3}], v[{16+4*c}:{19+4*c}], ' + ('0' if c == 0 else 'v[44:47]'))
    sel(2); sel(3)
    for j in range(4): A(f'v_bfi_b32 v{24+j}, s44, v{60+j}, v{(48,49,52,53)[j]}')
    A('global_store_dwordx4 v13, v[24:27], s[28:29] ' + {0: 'sc1', 1: 'sc0 sc1', 2: 'sc1 nt', 3: 'sc0 sc1 nt'}[opt.get('qst', 0)])
    A('ds_write_b32 v54, v55 offset:12')
    A('global_load_dword v9, v7, s[4:5]\ns_load_dword s38, s[22:23], 0')
    if wop >= 7:
        A(f'''s_bfe_u32 s35, s2, 0x30003
        s_xor_b32 s39, s31, 2
        s_xor_b32 s58, s31, 1
        s_xor_b32 s61, s31, 3
        s_cmp_eq_u32 s35, s31
        s_cselect_b32 s39, s39, s58
        s_cselect_b32 s61, s61, s35
        s_lshl2_add_u32 s39, s39, s34
        s_lshl_b32 s40, s39, 17
        s_lshl_b32 s41, s61, 7
        s_add_u32 s40, s40, s41
        v_lshrrev_b32 v64, 3, v0
        v_lshlrev_b32 v64, 10, v64
        v_and_b32 v65, 7, v0
        v_lshl_add_u32 v64, v65, 4, v64
        v_add_u32 v64, s40, v64
        v_add_u32 v65, 7168, v64
        v_add_u32 v66, 14336, v64
        v_add_u32 v67, 21504, v64
        s_mov_b32 m0, {WO}''')
    def wo8():
        for w_ in range(4):
            for a_ in range(4): A(f'global_load_lds_dwordx4 v{64+a_}, s[12:13] offset:{1024*a_}{NT}')
            if w_ < 3: A('s_addk_i32 m0, 4096\ns_add_u32 s12, s12, 32768\ns_addc_u32 s13, s13, 0')
    STAMP(7)
    def chkq():
        for e in range(8):
            r = 16 + 4 * e
            A(f's_waitcnt vmcnt({7-e})')
            if e == 0: STAMP(6)
            for j in range(4): A(f'v_xor_b32 v{r+j}, v{60+j}, v{r+j}')
            if e == 0: A(f'v_or_b32 v57, v{r}, v{r+1}')
            else: A(f'v_or3_b32 v57, v57, v{r}, v{r+1}')
            A(f'v_or3_b32 v57, v57, v{r+2}, v{r+3}')
            if e >= 2:
                for j in (0, 2): A(f'v_pk_add_f32 v[{16+4*(e&1)+j}:{17+4*(e&1)+j}], v[{16+4*(e&1)+j}:{17+4*(e&1)+j}], v[{r+j}:{r+j+1}]')
        A('v_and_b32 v57, s44, v57')
        A('v_cmp_ne_u32 vcc, 0, v57')
    poll('L_pollq', [(16 + 4 * e, 'v14', 1024 * e - 4096) for e in range(8)], chkq, st=5, nowait=opt.get('qnw'), post=lambda: A('ds_write_b32 v54, v55 offset:8\nv_mov_b32 v55, 2'))
    A('ds_write_b32 v54, v55 offset:8')
    if stamps: A('s_mov_b32 s90, s43')
    A('v_cvt_pk_bf16_f32 v16, v16, v17\nv_cvt_pk_bf16_f32 v17, v18, v19\nv_cvt_pk_bf16_f32 v20, v20, v21\nv_cvt_pk_bf16_f32 v21, v22, v23')
    A('ds_write_b64 v15, v[16:17]\nds_write_b64 v15, v[20:21] offset:640')
    STAMP(8)
    A('s_waitcnt lgkmcnt(0)')
    A('s_barrier                    ; B2')
    A(f'v_lshlrev_b32 v11, 3, v50\nv_add_u32 v11, {GY}, v11')
    for w in range(7): A(f'ds_read_b64 v[{16+2*w}:{17+2*w}], v11 offset:{32*w}')
    if wop == 8: wo8()
    A('s_barrier                    ; B3')
    if wop == 7: wo8()
    A('s_setprio 0')
    A(f's_lshl_b32 s37, s59, 11\ns_add_u32 s37, s37, {SR}')
    A('v_lshl_add_u32 v14, v0, 4, s37')
    A('s_waitcnt lgkmcnt(0)')
    A('s_lshl_b32 s38, s38, 16')
    def ep1():
        for w in range(1, 7): A(f'v_pk_add_f32 v[16:17], v[16:17], v[{16+2*w}:{17+2*w}]')
        A('v_cvt_pk_bf16_f32 v18, v16, v17')
        unpack(['v16', 'v17'], ['v18'])
        A('v_add_f32 v16, s38, v16\nv_add_f32 v17, s38, v17\nv_cvt_pk_bf16_f32 v18, v16, v17')
        unpack(['v16', 'v17'], ['v18'])
        A(f'v_mul_f32 v18, {f2h(-LOG2E)}, v16\nv_mul_f32 v19, {f2h(-LOG2E)}, v17')
    def ep2():
        A('v_exp_f32 v18, v18\nv_exp_f32 v19, v19\nv_add_f32 v18, 1.0, v18\nv_add_f32 v19, 1.0, v19\nv_rcp_f32 v18, v18\nv_rcp_f32 v19, v19')
        A('v_mul_f32 v16, v16, v18\nv_mul_f32 v17, v17, v19\nv_cvt_pk_bf16_f32 v18, v16, v17')
        unpack(['v30', 'v31'], ['v18'])
        unpack(['v8', 'v10'], ['v9'])
    ps = opt.get('ps', 0)
    if not ps: ep1(); ep2()
    A('s_barrier                    ; B4')
    if wop >= 7: A('s_waitcnt vmcnt(0)\nds_write_b32 v54, v55 offset:16')
    A('s_barrier                    ; B5')
    STAMP(10)
    if opt.get('b6'): spin('L_sp6', 20, opt['b6'])
    if not ps:
        def chk2():
            A('s_waitcnt vmcnt(0)\nv_cmp_ne_u32 vcc, s33, v19\nv_cmp_ne_u32 s[54:55], s33, v23\ns_or_b64 vcc, vcc, s[54:55]')
        poll('L_polls', [(16, 'v14', 0), (20, 'v14', 1024)], chk2)
        A('v_pk_add_f32 v[16:17], v[16:17], v[20:21]')
    else:
        def sld(r): A(f'global_load_dwordx4 v[{r}:{r+3}], v14, s[28:29] sc1\nglobal_load_dwordx4 v[{r+4}:{r+7}], v14, s[28:29] offset:1024 sc1')
        sld(32); ep1(); sld(40); ep2(); sld(48)
        A(f's_movk_i32 s43, {SPIN}\nL_polls:')
        for r in (32, 40, 48):
            A(f's_waitcnt vmcnt(4)\nv_cmp_ne_u32 vcc, s33, v{r+3}\nv_cmp_ne_u32 s[54:55], s33, v{r+7}\nv_pk_add_f32 v[16:17], v[{r}:{r+1}], v[{r+4}:{r+5}]\ns_or_b64 vcc, vcc, s[54:55]')
            A('s_cbranch_vccz L_polls_done')
            sld(r)
        A('s_sub_u32 s43, s43, 1\ns_cbranch_scc0 L_polls\nL_polls_done:')
    STAMP(11)
    for m in ('row_ror:4', 'row_ror:8'):
        A(f'v_add_f32 v16, v16, v16 {m}\nv_add_f32 v17, v17, v17 {m}')
    xrow([('v16', 'v18'), ('v17', 'v19')], 'v_add_f32')
    A('v_cvt_pk_bf16_f32 v18, v16, v17')
    unpack(['v16', 'v17'], ['v18'])
    A('v_pk_mul_f32 v[16:17], v[16:17], v[30:31]\nv_cvt_pk_bf16_f32 v18, v16, v17')
    unpack(['v16', 'v17'], ['v18'])
    A('v_add_f32 v16, v16, v8\nv_add_f32 v17, v17, v10\nv_cvt_pk_bf16_f32 v18, v16, v17')
    A('s_mov_b64 exec, 15')
    A('global_store_dword v7, v18, s[24:25]')
    A('s_cmp_lg_u32 s2, 0\ns_cbranch_scc1 L_fin8')
    A('s_mov_b64 exec, 1\nv_mov_b32 v20, 0\nv_mov_b32 v21, s33')
    A('global_store_dword v20, v21, s[28:29]')
    A('L_fin8:')
    STAMP(12)
    DUMP(); DIAG('L_dg8')
    A('L_cend:')
    A('s_endpgm')
    A.raw(f'''.section .rodata,"a"
.p2align 6
.amdhsa_kernel {NAME}_kernel
  .amdhsa_next_free_vgpr 128
  .amdhsa_next_free_sgpr 96
  .amdhsa_accum_offset 128
  .amdhsa_group_segment_fixed_size 0
  .amdhsa_kernarg_size 104
  .amdhsa_user_sgpr_count 2
  .amdhsa_user_sgpr_kernarg_segment_ptr 1
  .amdhsa_system_sgpr_workgroup_id_x 1
.end_amdhsa_kernel''')
    return A.text()
if __name__ == '__main__':
    out = sys.argv[1]; stamps = 'stamps' in sys.argv[2:]
    opt = {}
    for k in sys.argv[2:]:
        if k.startswith('diag='): opt['diag'] = tuple(int(x) for x in k[5:].split(','))
        elif '=' in k: opt[k.split('=')[0]] = int(k.split('=')[1])
        else: opt[k] = True
    open(out, 'w').write(gen(stamps, opt))
```

```python
import sys, struct, math
from asmlib import Asm
NAME = 'recurrent_scan__sliding_block_cached__mixer_token_mlp__decode'
def f2h(x): return '0x%08x' % struct.unpack('<I', struct.pack('<f', x))[0]
LOG2E = 1.4426950408889634
def gen(stamps=False, opt=None):
    opt = opt or {}
    NT = '' if opt.get('nont') else ' nt'
    A = Asm()
    small = opt.get('small')
    WQ, KS, VS, WO = (0, 32768, 0, 32768) if small else (0, 16384, 49152, 81920)
    XN = 65536 if small else 98304; QL = XN + 4352; SC = QL + 1280; OL = SC + 2048; HB = OL + 1280; FL = HB + 32; MX = FL + 32; GY = MX + 32
    LDS = GY + 256
    QR, OR_, SR, TS = 0x180000, 0x20000, 0x100000, 0x200000
    SPIN = 20000
    FB = 0x400000; NF = opt.get('NF', 24); lq = opt.get('lq', 1); lo = opt.get('lo', 1)
    D = opt.get('D', 40); V0 = opt.get('V0', 0); wop = opt.get('wo', 7)
    diag = opt.get('diag'); cur = {'w8': False}
    def STAMP(n):
        if stamps and (not opt.get('lite') or n in (0, 12)): A('s_memrealtime s[%d:%d]' % (64 + 2 * n, 65 + 2 * n))
        if diag and diag[1] == n and ((diag[0] == 8) == cur['w8'] or n == 0): A('s_memrealtime s[92:93]')
    def DIAG(lbl):
        if diag and ((diag[0] == 8) == cur['w8']):
            A(f's_cmp_lg_u32 s30, {diag[0]}\ns_cbranch_scc1 {lbl}_x')
            if not opt.get('dall'): A(f's_cmp_lg_u32 s2, 0\ns_cbranch_scc1 {lbl}_x')
            A(f'{lbl}:\ns_memrealtime s[94:95]\ns_waitcnt lgkmcnt(0)\ns_sub_u32 s94, s94, s92\ns_cmp_lt_u32 s94, 4000\ns_cbranch_scc1 {lbl}\n{lbl}_x:')
    def LG(n): A(f's_waitcnt lgkmcnt({0 if ((stamps and not opt.get("lite")) or diag) else n})')
    def DUMP():
        if stamps:
            A('s_waitcnt lgkmcnt(0)\ns_getreg_b32 s62, hwreg(HW_REG_XCC_ID)\ns_mov_b64 exec, -1\nv_mov_b32 v100, 0')
            for n in range(14): A('v_writelane_b32 v100, s%d, %d' % (64 + 2 * n, n))
            A('v_writelane_b32 v100, s62, 14')
            A('s_lshl_b32 s60, s2, 4\ns_add_u32 s60, s60, s30\ns_lshl_b32 s60, s60, 6\ns_add_u32 s60, s60, %d' % TS)
            A('v_lshl_add_u32 v101, v0, 2, s60\ns_mov_b64 exec, 0xffff\nglobal_store_dword v101, v100, s[28:29]')
    def xrow(pairs, op):
        for sw in ('v_permlane16_swap_b32', 'v_permlane32_swap_b32'):
            for v, t in pairs: A(f'v_mov_b32 {t}, {v}')
            for v, t in pairs: A(f'{sw} {v}, {t}')
            for v, t in pairs: A(f'{op} {v}, {v}, {t}')
    def rnd(d, s): A(f'v_cvt_pk_bf16_f32 {d}, {s}, {s}\nv_lshlrev_b32 {d}, 16, {d}')
    def unpack(dst, src):
        for j, s_ in enumerate(src): A(f'v_lshlrev_b32 {dst[2*j]}, 16, {s_}\nv_and_b32 {dst[2*j+1]}, 0xffff0000, {s_}')
    def poll(lbl, loads, check, st=None, nowait=False, post=None, fb=None):
        A(f's_movk_i32 s43, {SPIN}')
        if not nowait: A('s_waitcnt vmcnt(0)')
        if st is not None: STAMP(st)
        A(f'{lbl}:')
        for r, addr, off in loads: A(f'global_load_dwordx4 v[{r}:{r+3}], {addr}, s[28:29] offset:{off} sc1')
        if post: post()
        A(f's_sub_u32 s43, s43, 1\ns_cbranch_scc1 {lbl}_done')
        check()
        if fb is None: A(f's_cbranch_vccnz {lbl}')
        else:
            A(f's_cbranch_vccz {lbl}_done\ns_cmp_lg_u32 s43, {SPIN - NF}\ns_cbranch_scc1 {lbl}\nv_add_u32 {loads[0][1]}, {FB}, {loads[0][1]}')
            fb()
            A(f's_branch {lbl}')
        A(f'{lbl}_done:\ns_waitcnt vmcnt(0)')
    def spin(lbl, off, cnt, bound=SPIN):
        A(f'v_mov_b32 v46, {FL}\ns_movk_i32 s43, {bound}\n{lbl}:\nds_read_b32 v47, v46 offset:{off}\ns_sub_u32 s43, s43, 1\ns_cbranch_scc1 {lbl}_d\ns_waitcnt lgkmcnt(0)')
        A(f'v_cmp_gt_u32 vcc, {cnt}, v47\ns_cbranch_vccnz {lbl}\n{lbl}_d:')
    def signal(off): A(f's_mov_b64 exec, 1\nds_add_u32 v51, v52 offset:{off}\ns_mov_b64 exec, -1')
    A.raw(f'; @launch grid=(256,1,1) block=(576,1,1) lds={opt.get("lds", LDS)}')
    A.raw('.amdgcn_target "amdgcn-amd-amdhsa--gfx950"\n.text')
    A.raw(f'.globl {NAME}_kernel\n.p2align 8\n.type {NAME}_kernel,@function\n{NAME}_kernel:')
    KQ = {0: 's_mov_b32 s58, s31' if lq else 's_xor_b32 s58, s31, 1', 1: 's_lshl1_add_u32 s58, s34, 1\ns_xor_b32 s58, s58, s31', 2: 's_lshl1_add_u32 s58, s34, 1\ns_and_b32 s58, s58, 5\ns_xor_b32 s58, s58, s31'}[opt.get('kq', 0)]
    PERM = {0: '', 1: 's_lshr_b32 s3, s2, 3\ns_and_b32 s3, s3, 7\ns_xor_b32 s2, s2, s3', 2: 's_cmp_lt_u32 s2, 2\ns_cselect_b32 s3, 1, 0\ns_xor_b32 s2, s2, s3', 3: 's_bfe_u32 s3, s2, 0x10007\ns_xor_b32 s2, s2, s3', 4: 's_bfe_u32 s3, s2, 0x20004\ns_cmp_eq_u32 s3, 3\ns_cselect_b32 s3, 6, 0\ns_xor_b32 s2, s2, s3'}[opt.get('perm', 0)]
    ROT = {0: 's_lshl_b32 s37, s37, 15', 1: 's_lshl3_add_u32 s37, s37, s35\ns_lshl_b32 s37, s37, 12', 2: 's_lshl3_add_u32 s37, s37, s31\ns_lshl_b32 s37, s37, 12'}[opt.get('rot', 1)]
    def kload():
        for a_ in range(4): A(f'global_load_lds_dwordx4 v{7+a_}, s[6:7] offset:{1024*a_}{NT}')
    def params():
        A('global_load_dwordx2 v[16:17], v6, s[16:17]\nglobal_load_dwordx2 v[18:19], v6, s[18:19]\ns_waitcnt lgkmcnt(0)\nglobal_load_dwordx2 v[20:21], v6, s[20:21]')
    A(f'''
    s_load_dwordx16 s[4:19], s[0:1], 0
    {PERM}
    v_lshrrev_b32 v1, 6, v0
    s_lshr_b32 s34, s2, 6
    v_readfirstlane_b32 s30, v1
    s_cmp_ge_u32 s34, 4
    s_cbranch_scc1 L_end
    s_cmp_eq_u32 s30, 8
    s_cbranch_scc0 L_main
    s_getpc_b64 s[56:57]
    L_pc:
    v_and_b32 v0, 63, v0
    v_lshlrev_b32 v4, 7, v0
    v_min_u32 v4, L_cend-L_pc, v4
    global_load_dword v59, v4, s[56:57]     ; code prefetch into L2
    s_branch L_stub
    L_main:
    ''')
    STAMP(0)
    A(f'''
    {'' if opt.get('ka') else 's_load_dwordx8 s[20:27], s[0:1], 64'}
    v_lshlrev_b32 v4, 4, v0        ; tid*16
    s_and_b32 s31, s2, 7           ; x
    s_bfe_u32 s35, s2, 0x30003
    {KQ}
    s_cmp_ge_u32 s30, 4
    s_cbranch_scc1 L_wq
    s_waitcnt lgkmcnt(0)
    global_load_dwordx4 v[12:15], v4, s[4:5]
    s_branch L_kk
    L_wq:
    v_lshrrev_b32 v6, 3, v0
    s_lshl3_add_u32 s36, s58, s35
    v_lshl_add_u32 v7, s34, 7, v6
    v_and_b32 v6, 2, v6
    v_lshl_or_b32 v6, v1, 2, v6
    v_xor_b32 v6, v6, v0
    v_and_b32 v6, 7, v6
    v_lshl_add_u32 v6, s36, 3, v6
    v_lshl_add_u32 v7, v7, 9, v6
    v_lshlrev_b32 v7, 4, v7
    s_lshl_b32 m0, s30, 10
    s_waitcnt lgkmcnt(0)
    global_load_lds_dwordx4 v7, s[10:11]{NT}
    s_addk_i32 m0, 4096
    v_add_u32 v7, 0x40000, v7
    global_load_lds_dwordx4 v7, s[10:11]{NT}
    s_addk_i32 m0, 4096
    v_add_u32 v7, 0x40000, v7
    global_load_lds_dwordx4 v7, s[10:11]{NT}
    s_addk_i32 m0, -12288
    v_add_u32 v7, 0xfff40000, v7
    global_load_lds_dwordx4 v7, s[10:11]{NT}
    L_kk:
    ''')
    STAMP(1)
    A(f'''
    {'s_load_dwordx8 s[20:27], s[0:1], 64' if opt.get('ka') else ''}
    s_lshl3_add_u32 s37, s34, s31
    s_lshl2_add_u32 s37, s37, 3
    s_lshl3_add_u32 s37, s37, s35
    s_lshl_b32 s38, s30, 12        ; w*4096
    v_and_b32 v0, 63, v0
    v_lshrrev_b32 v2, 4, v0        ; g
    v_xor_b32 v7, v2, v0
    {ROT}
    s_xor_b32 s40, s37, s38
    v_lshl_add_u32 v7, v7, 4, s40
    s_add_u32 m0, s38, {KS}
    v_xor_b32 v8, 64, v7
    v_xor_b32 v9, 128, v7
    v_xor_b32 v10, 64, v9
    v_lshrrev_b32 v6, 1, v4        ; w*512 + l*8
    s_cmp_eq_u32 s30, 7
    s_barrier
    s_cbranch_scc1 {'L_go' if opt.get('kh', 7) == 8 else 'L_k7'}
    global_load_dwordx2 v[16:17], v6, s[16:17]
    global_load_dwordx2 v[18:19], v6, s[18:19]
    {'s_waitcnt lgkmcnt(0)' if opt.get('ka') else ''}
    global_load_dwordx2 v[20:21], v6, s[20:21]
    s_cmp_lt_u32 s30, {opt.get('kh', 7)}
    s_cbranch_scc1 L_go
    L_k7:
    ''')
    kload()
    A(f'''
    s_branch L_go
    L_stub:
    v_lshlrev_b32 v46, 2, v0
    v_bfe_i32 v48, v0, 3, 1
    v_add_u32 v46, {FL}, v46
    v_lshlrev_b32 v48, 23, v48
    ds_write_b32 v46, v48
    s_waitcnt lgkmcnt(0)
    s_barrier                    ; B0
    s_load_dwordx2 s[28:29], s[0:1], 96
    s_load_dwordx8 s[20:27], s[0:1], 64
    s_waitcnt lgkmcnt(0)
    s_load_dword s33, s[28:29], 0
    s_branch L_w8
    L_go:
    ''')
    STAMP(2)
    A(f'''
    s_load_dwordx2 s[28:29], s[0:1], 96
    v_and_b32 v3, 15, v0           ; n
    v_and_b32 v4, 0x3ff, v4        ; l*16
    v_and_b32 v50, 3, v0
    v_mov_b32 v51, {FL}
    v_mov_b32 v52, 1
    s_lshr_b32 s32, s2, 3
    s_lshl_b32 s59, s31, 5
    s_add_u32 s59, s59, s32
    s_cmp_ge_u32 s30, 4
    s_cbranch_scc1 L_noln
    s_waitcnt vmcnt(3)
    ''')
    STAMP(3)
    a = ['v%d' % (24 + j) for j in range(8)]
    def ln_stats():
        A('v_readfirstlane_b32 s44, v24')
        for j in range(0, 8, 2): A(f'v_pk_add_f32 v[{32+j}:{33+j}], v[{24+j}:{25+j}], s[44:45] op_sel_hi:[1,0] neg_lo:[0,1] neg_hi:[0,1]')
        A('v_pk_add_f32 v[40:41], v[32:33], v[34:35]\nv_pk_mul_f32 v[42:43], v[32:33], v[32:33]\nv_pk_add_f32 v[44:45], v[36:37], v[38:39]\nv_pk_fma_f32 v[42:43], v[34:35], v[34:35], v[42:43]')
        A('v_pk_add_f32 v[40:41], v[40:41], v[44:45]\nv_pk_fma_f32 v[42:43], v[36:37], v[36:37], v[42:43]\nv_add_f32 v40, v40, v41\nv_pk_fma_f32 v[42:43], v[38:39], v[38:39], v[42:43]\nv_add_f32 v41, v42, v43')
        for m in ('quad_perm:[1,0,3,2]', 'quad_perm:[2,3,0,1]', 'row_ror:4', 'row_ror:8'):
            A(f'v_add_f32 v40, v40, v40 {m}\nv_add_f32 v41, v41, v41 {m}')
        xrow([('v40', 'v42'), ('v41', 'v43')], 'v_add_f32')
        A(f'v_mul_f32 v40, {f2h(1/512)}, v40\nv_mul_f32 v41, {f2h(1/512)}, v41')
        A('v_fma_f32 v41, -v40, v40, v41\nv_add_f32 v40, s44, v40\nv_max_f32 v41, 0, v41')
        A('v_cvt_pk_bf16_f32 v42, v40, v41\nv_and_b32 v41, 0xffff0000, v42\nv_lshlrev_b32 v40, 16, v42')
        A(f'v_add_f32 v41, {f2h(1e-5)}, v41')
        rnd('v41', 'v41')
        A('v_sqrt_f32 v41, v41')
    unpack(a, ['v12', 'v13', 'v14', 'v15'])
    ln_stats()
    for j in range(0, 8, 2): A(f'v_pk_add_f32 v[{24+j}:{25+j}], v[{24+j}:{25+j}], v[40:41] op_sel_hi:[1,0] neg_lo:[0,1] neg_hi:[0,1]')
    rnd('v41', 'v41')
    A('v_rcp_f32 v41, v41')
    for j in range(4): A(f'v_cvt_pk_bf16_f32 v{12+j}, {a[2*j]}, {a[2*j+1]}')
    unpack(a, ['v12', 'v13', 'v14', 'v15'])
    for j in range(0, 8, 2): A(f'v_pk_mul_f32 v[{24+j}:{25+j}], v[{24+j}:{25+j}], v[40:41] op_sel:[0,1] op_sel_hi:[1,1]')
    A(f's_mul_i32 s42, s30, 1088\ns_add_u32 s42, s42, {XN}')
    A('v_add_u32 v45, s42, v4')
    for j in range(4): A(f'v_cvt_pk_bf16_f32 v{12+j}, {a[2*j]}, {a[2*j+1]}')
    A('ds_write_b128 v45, v[12:15]')
    kl = opt.get('kl', 2)
    signal(0)
    if kl > 0:
        if kl < 4: A(f's_cmp_ge_u32 s30, {kl}\ns_cbranch_scc1 L_k3')
        kload()
        A('L_k3:')
    A('s_lshl_b32 s43, s59, 2\ns_add_u32 s43, s43, s42\nv_mov_b32 v46, s43')
    A('ds_read_b32 v47, v46')
    unpack(a, ['v12', 'v13', 'v14', 'v15'])
    ln_stats()
    rnd('v41', 'v41')
    A('v_rcp_f32 v41, v41')
    A('s_waitcnt lgkmcnt(0)')
    unpack(['v48', 'v49'], ['v47'])
    A('v_sub_f32 v48, v48, v40\nv_sub_f32 v49, v49, v40\nv_cvt_pk_bf16_f32 v47, v48, v49')
    unpack(['v48', 'v49'], ['v47'])
    A('v_mul_f32 v48, v48, v41\nv_mul_f32 v49, v49, v41\nv_cvt_pk_bf16_f32 v47, v48, v49')
    unpack(['v48', 'v49'], ['v47'])
    A(f's_lshl_b32 s43, s30, 3\ns_add_u32 s43, s43, {HB}\nv_mov_b32 v46, s43')
    A('s_mov_b64 exec, 1\nds_write_b64 v46, v[48:49]\nds_add_u32 v51, v52 offset:4\ns_mov_b64 exec, -1')
    if kl < 4:
        if kl > 0: A(f's_cmp_lt_u32 s30, {kl}\ns_cbranch_scc1 L_gelu')
        spin('L_spk', 12, 1)
        kload()
    A('s_branch L_gelu')
    A('L_noln:')
    A('s_cmp_eq_u32 s30, 7\ns_cbranch_scc1 L_loader')
    kh = opt.get('kh', 7)
    if kh < 7:
        A(f's_cmp_lt_u32 s30, {kh}\ns_cbranch_scc1 L_kh\ns_waitcnt vmcnt(7)')
        signal(0)
        A('s_branch L_gelu\nL_kh:')
    A('s_waitcnt vmcnt(3)')
    signal(0)
    STAMP(2)
    if opt.get('kw', 1):
        A(f's_cmp_ge_u32 s30, {4 + opt.get("kw", 1)}\ns_cbranch_scc1 L_spw4_d')
        spin('L_spw4', 12, 1)
    kload()
    A('L_gelu:')
    A('s_waitcnt lgkmcnt(0)\ns_load_dword s33, s[28:29], 0')
    STAMP(4)
    spin('L_spg', 4, 4)
    A(f'v_mov_b32 v46, {HB}')
    A('ds_read_b128 v[24:27], v46\nds_read_b128 v[28:31], v46 offset:16')
    A('s_waitcnt vmcnt(4)')
    unpack(['v32', 'v33', 'v34', 'v35'], ['v16', 'v17'])
    unpack(['v36', 'v37', 'v38', 'v39'], ['v18', 'v19'])
    unpack(['v40', 'v41', 'v42', 'v43'], ['v20', 'v21'])
    c0 = math.sqrt(2 / math.pi)
    A(f'v_mov_b32 v44, {f2h(-2 * c0 * 0.044715 * LOG2E)}\nv_mov_b32 v45, {f2h(-2 * c0 * LOG2E)}')
    A('s_waitcnt lgkmcnt(0)')
    for o in range(8):
        hp = 24 + (o & ~1); sel = o & 1
        acc = 72 + 2 * o
        for j in (0, 2): A(f'v_pk_fma_f32 v[{56+j}:{57+j}], v[{32+j}:{33+j}], v[{hp}:{hp+1}], v[{36+j}:{37+j}] op_sel:[0,{sel},0] op_sel_hi:[1,{sel},1]')
        for j in (0, 2): A(f'v_pk_mul_f32 v[{52+j}:{53+j}], v[{56+j}:{57+j}], v[{56+j}:{57+j}]')
        for j in (0, 2): A(f'v_pk_fma_f32 v[{52+j}:{53+j}], v[{52+j}:{53+j}], v[44:45], v[44:45] op_sel:[0,0,1] op_sel_hi:[1,0,1]')
        for j in (0, 2): A(f'v_pk_mul_f32 v[{52+j}:{53+j}], v[{52+j}:{53+j}], v[{56+j}:{57+j}]')
        for j in range(4): A(f'v_exp_f32 v{52+j}, v{52+j}')
        for j in (0, 2): A(f'v_pk_mul_f32 v[{56+j}:{57+j}], v[{56+j}:{57+j}], v[{40+j}:{41+j}]')
        for j in (0, 2): A(f'v_pk_add_f32 v[{52+j}:{53+j}], v[{52+j}:{53+j}], 1.0 op_sel_hi:[1,0]')
        for j in range(4): A(f'v_rcp_f32 v{52+j}, v{52+j}')
        A(f'v_pk_mul_f32 v[{acc}:{acc+1}], v[56:57], v[52:53]')
        A(f'v_pk_fma_f32 v[{acc}:{acc+1}], v[58:59], v[54:55], v[{acc}:{acc+1}]')
    for o in range(8): A(f'v_add_f32 v{64+o}, v{72+2*o}, v{73+2*o}')
    for o in range(4): A(f'v_permlane32_swap_b32 v{64+o}, v{68+o}')
    for o in range(4): A(f'v_add_f32 v{64+o}, v{64+o}, v{68+o}')
    for o in range(2): A(f'v_permlane16_swap_b32 v{64+o}, v{66+o}')
    for o in range(2): A(f'v_add_f32 v{64+o}, v{64+o}, v{66+o}')
    for m in ('quad_perm:[1,0,3,2]', 'quad_perm:[2,3,0,1]', 'row_ror:4', 'row_ror:8'):
        for o in range(2): A(f'v_add_f32 v{64+o}, v{64+o}, v{64+o} {m}')
    A(f's_lshl_b32 s43, s30, 5\ns_add_u32 s43, s43, {GY}')
    A('v_lshl_add_u32 v46, v2, 3, s43')
    A('s_mov_b32 exec_lo, 0x00010001\ns_mov_b32 exec_hi, 0x00010001')
    A('ds_write_b64 v46, v[64:65]')
    A('s_mov_b64 exec, -1')
    STAMP(5)
    A('s_waitcnt vmcnt(0)')
    A('s_branch L_nogelu')
    A('L_loader:')
    if opt.get('tw', 1): A('s_load_dword s60, s[8:9], s37\ns_lshl_b32 s36, s58, 19\ns_load_dword s61, s[12:13], s36\ns_load_dword s62, s[24:25], 0')
    A('s_setprio 2\ns_waitcnt vmcnt(%d)' % (0 if kh == 8 else 4))
    signal(0)
    if kh == 8: kload()
    A('s_waitcnt lgkmcnt(0)\ns_load_dword s33, s[28:29], 0')
    A(f's_mov_b32 s36, {FB}\ns_load_dword s63, s[28:29], s36')
    if lo and not opt.get('nopre'):
        A(f's_lshl_b32 s43, s31, 16\ns_lshl_b32 s45, s32, 9\ns_add_u32 s43, s43, s45\ns_add_u32 s43, s43, {OR_}')
        A('v_lshlrev_b32 v11, 14, v50\nv_lshl_add_u32 v11, v2, 7, v11\nv_add_u32 v11, s43, v11\nglobal_load_dword v99, v11, s[28:29]')
        V0 += 1
    A(f'''
    v_lshlrev_b32 v8, 1, v2
    v_xor_b32 v8, v3, v8
    v_lshlrev_b32 v8, 4, v8
    v_lshl_add_u32 v8, v2, 8, v8
    v_add_u32 v8, s37, v8
    {'v_xor_b32 v8, 16384, v8' if small else ''}
    v_xor_b32 v9, 128, v8
    s_mov_b32 m0, {VS + (16384 if small else 0)}''')
    A(f's_waitcnt vmcnt({V0})')
    STAMP(4)
    V1 = opt.get('V1', 2)
    vg = [0]
    def vgrp():
        for a_ in range(4): A(f'global_load_lds_dwordx4 v{8+(a_&1)}, s[8:9] offset:{1024*a_}{NT}')
        j = vg[0]; vg[0] += 1
        if j < 7: A(f's_addk_i32 m0, {-28672 if (small and j == 3) else 4096}\nv_xor_b32 v8, {(j ^ (j + 1)) << 12}, v8\nv_xor_b32 v9, {(j ^ (j + 1)) << 12}, v9')
    for _ in range(V1): vgrp()
    A('L_nogelu:')
    A(f's_add_u32 s43, s38, {KS}')
    A('v_xor_b32 v46, v2, v3\nv_lshlrev_b32 v46, 4, v46\nv_lshl_add_u32 v46, v3, 8, v46\nv_add_u32 v46, s43, v46')
    A('v_xor_b32 v47, 64, v46\nv_xor_b32 v48, 128, v46\nv_xor_b32 v49, 192, v46')
    for i in range(4): A(f'ds_read_b128 v[{16+4*i}:{19+4*i}], v{46+i}')
    ROLE = 's_mov_b32 s61, s35\ns_lshl2_add_u32 s39, s31, s34' if lo else 's_xor_b32 s39, s31, 2\ns_xor_b32 s58, s31, 1\ns_xor_b32 s61, s31, 3\ns_cmp_eq_u32 s35, s31\ns_cselect_b32 s39, s39, s58\ns_cselect_b32 s61, s61, s35\ns_lshl2_add_u32 s39, s39, s34'
    A(ROLE)
    A(f'v_mul_u32_u24 v51, 320, v50\nv_lshl_add_u32 v51, v2, 4, v51\nv_add_u32 v66, {OL}, v51\nv_add_u32 v51, {QL}, v51')
    A(f's_lshl_b32 s43, s30, 8\ns_add_u32 s43, s43, {SC}')
    A('v_lshl_add_u32 v52, v2, 2, v50\nv_lshlrev_b32 v52, 4, v52       ; (g*4+h)*16')
    A('v_add_u32 v53, s43, v52')
    A(f'v_lshrrev_b32 v54, 2, v3\nv_lshl_add_u32 v54, v54, 9, v52\nv_add_u32 v54, {SC}, v54')
    A('v_lshrrev_b32 v60, 2, v0      ; 4g+r')
    A('v_and_b32 v61, 7, v60\nv_xor_b32 v61, s30, v61\nv_lshlrev_b32 v61, 5, v61')
    A('v_lshl_add_u32 v61, v60, 8, v61\nv_lshl_add_u32 v61, v50, 3, v61')
    A(f'v_add_u32 v61, {VS}, v61')
    A(f's_lshl_b32 s43, s31, 16\ns_lshl_b32 s45, s32, 9\ns_add_u32 s43, s43, s45\ns_lshl_b32 s45, s30, 6\ns_add_u32 s43, s43, s45\ns_add_u32 s43, s43, {OR_}')
    A('v_lshlrev_b32 v62, 14, v50\nv_lshl_add_u32 v62, v2, 4, v62\nv_add_u32 v62, s43, v62')
    A(f's_lshl_b32 s43, s39, 14\ns_add_u32 s43, s43, s38\ns_add_u32 s43, s43, {OR_}')
    A('v_add_u32 v63, s43, v4')
    A(f's_mul_i32 s43, s30, 320\ns_add_u32 s43, s43, {OL}\nv_and_b32 v64, 31, v0\nv_lshl_add_u32 v64, v64, 3, s43\nv_lshrrev_b32 v33, 5, v0\nv_lshl_add_u32 v64, v33, 2, v64')
    A(f's_lshl_b32 s43, s30, 5\ns_add_u32 s43, s43, {WO - 128}')
    A('v_lshl_add_u32 v65, v2, 2, v60\nv_lshlrev_b32 v65, 7, v65\nv_lshl_add_u32 v65, v50, 3, v65\nv_add_u32 v65, s43, v65')
    A(f's_lshl_b32 s43, s61, 16\ns_lshl_b32 s45, s30, 14\ns_add_u32 s43, s43, s45\ns_lshl_b32 s45, s39, 6\ns_add_u32 s43, s43, s45\ns_add_u32 s43, s43, {SR - 4*16384}')
    A('v_bfe_u32 v67, v0, 2, 1\nv_lshl_add_u32 v67, v2, 1, v67\nv_lshlrev_b32 v67, 11, v67\nv_lshl_add_u32 v67, v50, 4, v67\nv_add_u32 v67, s43, v67')
    A(f'''s_lshl_b32 s40, s39, 17
    s_lshl_b32 s41, s61, 7
    s_add_u32 s40, s40, s41
    s_and_b32 s41, s30, 3
    s_lshl_b32 s41, s41, 15
    s_add_u32 s40, s40, s41
    v_lshrrev_b32 v10, 3, v0
    v_lshlrev_b32 v10, 10, v10
    v_and_b32 v11, 7, v0
    v_lshl_add_u32 v10, v11, 4, v10
    v_add_u32 v10, s40, v10
    v_add_u32 v11, 7168, v10
    v_add_u32 v12, 14336, v10
    v_add_u32 v13, 21504, v10
    s_lshr_b32 s41, s41, 3
    v_lshlrev_b32 v14, 2, v50
    v_add_u32 v14, {MX}, v14''')
    def woload(lbl):
        A(f's_cmp_lt_u32 s30, 4\ns_cbranch_scc1 {lbl}')
        for a_ in range(4): A(f'global_load_lds_dwordx4 v{10+a_}, s[12:13] offset:{1024*a_}{NT}')
        A(f'{lbl}:')
    A('s_mov_b32 s46, 0x000f000f\ns_mov_b32 s47, 0x000f000f\ns_mov_b32 s48, 0x00ff00ff\ns_mov_b32 s49, 0x00ff00ff')
    A('s_waitcnt lgkmcnt(0)')
    A('s_mul_i32 s33, s33, 1664525\ns_add_u32 s33, s33, 1013904223')
    A(f's_mov_b32 s44, {f2h(128 ** -0.5)}\ns_mov_b32 s45, {f2h(LOG2E)}')
    A('v_mov_b32 v71, s33')
    A('s_cmp_lg_u32 s30, 7\ns_cbranch_scc1 L_b2')
    VA = opt.get('VA', 4)
    spin('L_spv', 8, 1)
    STAMP(3)
    for _ in range(VA): vgrp()
    if V1 + VA < 8:
        spin('L_spv2', 8, 2)
        for _ in range(8 - V1 - VA): vgrp()
    A('s_setprio 0')
    STAMP(5)
    A('L_b2:')
    A(f's_add_u32 m0, s41, {WO}')
    STAMP(6)
    A('s_barrier                    ; B2')
    STAMP(7)
    for i in range(4): A(f'ds_read_b128 v[{32+4*i}:{35+4*i}], v51 offset:{64*i}')
    if wop == 2: woload('L_wo2')
    for i in range(4):
        LG(3 - i)
        A(f'v_mfma_f32_16x16x32_bf16 v[56:59], v[{16+4*i}:{19+4*i}], v[{32+4*i}:{35+4*i}], ' + ('0' if i == 0 else 'v[56:59]'))
    A('s_mov_b64 exec, s[46:47]')
    A('v_cvt_pk_bf16_f32 v68, v56, v57\nv_cvt_pk_bf16_f32 v69, v58, v59')
    unpack(['v56', 'v57', 'v58', 'v59'], ['v68', 'v69'])
    for j in (0, 2): A(f'v_pk_mul_f32 v[{56+j}:{57+j}], v[{56+j}:{57+j}], s[44:45] op_sel_hi:[1,0]')
    A('v_cvt_pk_bf16_f32 v68, v56, v57\nv_cvt_pk_bf16_f32 v69, v58, v59')
    unpack(['v56', 'v57', 'v58', 'v59'], ['v68', 'v69'])
    A('ds_write_b128 v53, v[56:59]')
    A('v_max3_f32 v24, v56, v57, v58\nv_max_f32 v24, v24, v59')
    A('ds_max_f32 v14, v24')
    A('s_mov_b64 exec, -1')
    A('s_waitcnt lgkmcnt(0)')
    A('s_barrier                    ; B3')
    A('ds_read_b32 v24, v14\nds_read_b128 v[16:19], v54\nds_read_b128 v[20:23], v54 offset:256')
    if wop == 6: woload('L_wo6')
    LG(2)
    A('v_mul_f32 v24, s45, v24')
    LG(1)
    for j in range(0, 8, 2):
        if j == 4: A('s_waitcnt lgkmcnt(0)')
        A(f'v_pk_fma_f32 v[{16+j}:{17+j}], v[{16+j}:{17+j}], s[44:45], v[24:25] op_sel:[0,1,0] op_sel_hi:[1,1,0] neg_lo:[0,0,1] neg_hi:[0,0,1]')
    for j in range(8): A(f'v_exp_f32 v{16+j}, v{16+j}')
    for j in range(4): A(f'v_cvt_pk_bf16_f32 v{32+j}, v{16+2*j}, v{17+2*j}')
    sp = opt.get('sp', 1)
    def rot():
        for k in range(1, 4):
            for j in range(4): A(f'v_mov_b32 v{32+4*k+j}, v{32+j} row_ror:{16-4*k}')
    tree = ['v_pk_add_f32 v[26:27], v[16:17], v[18:19]\nv_pk_add_f32 v[28:29], v[20:21], v[22:23]',
            'v_pk_add_f32 v[26:27], v[26:27], v[28:29]\nv_add_f32 v26, v26, v27',
            'v_add_f32 v26, v26, v26 row_ror:4\nv_add_f32 v26, v26, v26 row_ror:8',
            'v_mov_b32 v25, v26\nv_permlane16_swap_b32 v26, v25\nv_add_f32 v26, v26, v25',
            'v_mov_b32 v25, v26\nv_permlane32_swap_b32 v26, v25\nv_add_f32 v26, v26, v25\nv_rcp_f32 v27, v26\nv_log_f32 v26, v26']
    if sp >= 1:
        for t_ in tree: A(t_)
    if sp >= 2: rot()
    if wop == 3: woload('L_wo3')
    STAMP(8)
    A('s_waitcnt vmcnt(%d)' % (4 if wop in (2, 3, 6) else 0))
    STAMP(9)
    A('s_barrier                    ; B4')
    for e in range(8): A(f'ds_read_b64_tr_b16 v[{72+2*e}:{73+2*e}], v61 offset:{4096*e}')
    if wop == 4: woload('L_wo4')
    if sp < 2: rot()
    for k in range(4):
        if sp == 0: A(tree[k])
        LG(6 - 2 * k)
        A(f'v_mfma_f32_16x16x32_bf16 v[56:59], v[{72+4*k}:{75+4*k}], v[{32+4*k}:{35+4*k}], ' + ('0' if k == 0 else 'v[56:59]'))
    if sp == 0: A(tree[4])
    A('s_mov_b64 exec, s[46:47]')
    for j in (0, 2): A(f'v_pk_mul_f32 v[{56+j}:{57+j}], v[{56+j}:{57+j}], v[26:27] op_sel:[0,1] op_sel_hi:[1,1]')
    A('v_add_f32 v70, v24, v26')
    A('v_cvt_pk_bf16_f32 v68, v56, v57\nv_cvt_pk_bf16_f32 v69, v58, v59')
    A('global_store_dwordx4 v62, v[68:71], s[28:29]' + ('' if lo else ' sc1'))
    A('s_mov_b64 exec, -1')
    def ofb(): A(f's_mov_b64 exec, s[46:47]\nglobal_store_dwordx4 v62, v[68:71], s[28:29] sc1\ns_mov_b64 exec, -1')
    if lo: A(f'v_add_u32 v62, {FB}, v62\nv_mov_b32 v51, {FL}\nv_mov_b32 v52, 1')
    STAMP(10)
    A('s_cmp_ge_u32 s30, 4\ns_cbranch_scc1 L_oproj')
    def chk4():
        A('s_waitcnt vmcnt(0)')
        A('v_xor_b32 v19, s33, v19\nv_xor_b32 v23, s33, v23\nv_xor_b32 v27, s33, v27\nv_xor_b32 v31, s33, v31')
        A('v_or3_b32 v19, v19, v23, v27\nv_or_b32 v19, v19, v31\nv_cmp_ne_u32 vcc, 0, v19')
    poll('L_pollo', [(16 + 4 * e, 'v63', 1024 * e) for e in range(4)], chk4, fb=ofb if lo else None)
    if lo: signal(24)
    if stamps: A('s_mov_b32 s90, s43')
    A(f's_movk_i32 s43, 200\nv_mov_b32 v54, {FL}')
    STAMP(11)
    A('v_max3_f32 v32, v18, v22, v26\nv_max_f32 v32, v32, v30\nv_mov_b32 v33, v32\nv_permlane32_swap_b32 v32, v33\nv_max_f32 v32, v32, v33')
    for e in range(4): A(f'v_sub_f32 v{18+4*e}, v{18+4*e}, v32')
    for e in range(4): A(f'v_exp_f32 v{18+4*e}, v{18+4*e}')
    for e in range(4): unpack([f'v{36+4*e+j}' for j in range(4)], [f'v{16+4*e}', f'v{17+4*e}'])
    A('v_add_f32 v32, v18, v22\nv_add_f32 v33, v26, v30')
    for j in (0, 2): A(f'v_pk_mul_f32 v[{36+j}:{37+j}], v[{36+j}:{37+j}], v[18:19] op_sel_hi:[1,0]')
    A('v_add_f32 v32, v32, v33')
    for e in range(1, 4):
        for j in (0, 2): A(f'v_pk_fma_f32 v[{36+j}:{37+j}], v[{36+4*e+j}:{37+4*e+j}], v[{18+4*e}:{19+4*e}], v[{36+j}:{37+j}] op_sel_hi:[1,0,1]')
    A('v_mov_b32 v33, v32\nv_permlane32_swap_b32 v32, v33\nv_add_f32 v32, v32, v33\nv_rcp_f32 v32, v32')
    A('v_permlane32_swap_b32 v36, v38\nv_permlane32_swap_b32 v37, v39')
    A('v_pk_add_f32 v[36:37], v[36:37], v[38:39]\nv_pk_mul_f32 v[36:37], v[36:37], v[32:33] op_sel_hi:[1,0]')
    A('v_cvt_pk_bf16_f32 v36, v36, v37')
    A('ds_write_b32 v64, v36')
    if lo:
        A('L_spc:\nds_read_b32 v53, v54 offset:24\ns_waitcnt lgkmcnt(0)\nv_cmp_gt_u32 vcc, 4, v53\ns_cbranch_vccz L_spc_d\ns_sub_u32 s43, s43, 1\ns_cbranch_scc0 L_spc')
        ofb()
        A('L_spc_d:')
    else: A('s_waitcnt lgkmcnt(0)')
    A('s_barrier                    ; B5')
    if lo: ofb()
    A('s_branch L_fin')
    A('L_oproj:')
    if wop == 5:
        for a_ in range(4): A(f'global_load_lds_dwordx4 v{10+a_}, s[12:13] offset:{1024*a_}{NT}')
    if wop < 7:
        A(f'v_mov_b32 v51, {FL}\nv_mov_b32 v52, 1\ns_waitcnt vmcnt(0)')
        signal(16)
    spin('L_spw', 16, 4 if wop < 7 else 1)
    STAMP(3)
    for c in range(4):
        for e in range(2): A(f'ds_read_b64_tr_b16 v[{72+4*c+2*e}:{73+4*c+2*e}], v65 offset:{4096*c + 512*e}')
    if lo:
        spin('L_spo', 24, 4, 200)
        ofb()
    A('v_mov_b32 v70, s33')
    A('s_cmp_eq_u32 s35, s31')
    A('s_waitcnt lgkmcnt(0)')
    A('s_barrier                    ; B5')
    STAMP(11)
    for c in range(4): A(f'ds_read_b128 v[{16+4*c}:{19+4*c}], v66 offset:{64*c}')
    for c in range(4):
        LG(3 - c)
        A(f'v_mfma_f32_16x16x32_bf16 v[56:59], v[{72+4*c}:{75+4*c}], v[{16+4*c}:{19+4*c}], ' + ('0' if c == 0 else 'v[56:59]'))
    A('s_mov_b64 exec, s[48:49]')
    A('v_cndmask_b32 v68, v58, v56, s[46:47]\nv_cndmask_b32 v69, v59, v57, s[46:47]')
    if lo:
        A('s_cbranch_scc1 L_sl\nglobal_store_dwordx4 v67, v[68:71], s[28:29] sc1\ns_branch L_sb\nL_sl:\nglobal_store_dwordx4 v67, v[68:71], s[28:29]\nL_sb:')
        A(f'v_add_u32 v67, {FB}, v67')
    A('global_store_dwordx4 v67, v[68:71], s[28:29] sc1')
    if opt.get('b6'):
        A('s_waitcnt vmcnt(0)')
        signal(20)
    A('L_fin:')
    STAMP(12)
    DUMP(); DIAG('L_dgm')
    A('L_end:')
    A('s_endpgm')
    cur['w8'] = True
    A(f'''
    L_w8:
    s_setprio 3
    s_and_b32 s31, s2, 7           ; x
    {KQ}
    v_lshrrev_b32 v2, 4, v0
    v_and_b32 v50, 3, v0
    s_lshr_b32 s32, s2, 3
    s_lshl_b32 s59, s31, 5
    s_add_u32 s59, s59, s32
    s_lshl_b32 s37, s59, 2
    v_lshl_add_u32 v7, v50, 10, s37
    ''')
    STAMP(0)
    STAMP(1)
    qc = opt.get('qc', 1)
    A('v_bfe_u32 v6, v0, 2, 2')
    A(f's_lshl_b32 s37, s34, 8\ns_add_u32 s37, s37, {XN}\nv_mul_u32_u24 v11, 1088, {"v6" if qc else "v50"}\nv_lshl_add_u32 v11, v2, 4, v11\nv_add_u32 v11, s37, v11')
    A('v_lshrrev_b32 v12, 2, v0\nv_lshl_add_u32 v12, v2, 2, v12\nv_lshlrev_b32 v12, 7, v12\nv_bfe_u32 v13, v0, 3, 2\nv_lshl_add_u32 v12, v13, 5, v12\nv_lshl_add_u32 v12, v50, 3, v12')
    A('v_xor_b32 v3, 32, v12\nv_xor_b32 v4, 64, v12\nv_xor_b32 v5, 96, v12')
    A(f's_lshl_b32 s36, s58, 15\ns_lshl_b32 s37, s32, 8\ns_add_u32 s37, s36, s37\ns_add_u32 s37, s37, {QR}')
    if qc: A('v_lshlrev_b32 v13, 13, v6\nv_lshl_add_u32 v14, v2, 2, v50\nv_lshl_add_u32 v13, v14, 4, v13\nv_add_u32 v13, s37, v13')
    else: A('v_lshlrev_b32 v13, 13, v50\nv_and_b32 v14, 12, v0\nv_add_u32 v14, v14, v2\nv_lshl_add_u32 v13, v14, 4, v13\nv_add_u32 v13, s37, v13')
    if opt.get('pre'): A('global_load_dword v58, v13, s[28:29]' + (' sc1' if opt['pre'] == 2 else ''))
    A(f's_lshl_b32 s36, s31, 15\ns_lshl_b32 s37, s34, 13\ns_add_u32 s37, s36, s37\ns_add_u32 s37, s37, {QR + 4096}')
    A('v_lshl_add_u32 v14, v0, 4, s37')
    if qc:
        A(f'v_lshrrev_b32 v15, 5, v0\nv_lshlrev_b32 v15, 6, v15\nv_lshl_add_u32 v15, v2, 7, v15\nv_lshl_add_u32 v15, v50, 5, v15\nv_lshl_add_u32 v15, v6, 3, v15\nv_add_u32 v15, {QL}, v15')
        A('s_mov_b32 s46, 0x11111111\ns_mov_b32 s47, 0x11111111\ns_lshl_b64 s[48:49], s[46:47], 1\ns_lshl_b64 s[50:51], s[46:47], 2\ns_lshl_b64 s[52:53], s[46:47], 3')
    else:
        A(f'v_lshrrev_b32 v15, 5, v0\nv_lshlrev_b32 v15, 6, v15\nv_lshl_add_u32 v15, v0, 3, v15\nv_add_u32 v15, {QL}, v15')
        A('s_mov_b32 s46, 0x000f000f\ns_mov_b32 s47, 0x000f000f\ns_lshl_b64 s[48:49], s[46:47], 4\ns_lshl_b64 s[50:51], s[46:47], 8\ns_lshl_b64 s[52:53], s[46:47], 12')
    A('s_waitcnt lgkmcnt(0)')
    A('s_mul_i32 s33, s33, 1664525\ns_add_u32 s33, s33, 1013904223')
    NB = opt.get('nb', 5)
    for j in range(4): A(f'v_bfe_u32 v{60+j}, s33, {NB*j}, {NB}')
    A(f's_movk_i32 s44, {(1<<NB)-1}')
    A(f'v_mov_b32 v54, {FL}\nv_mov_b32 v55, 1')
    STAMP(2)
    spin('L_sp8', 0, 8)
    STAMP(4)
    for c in range(4): A(f'ds_read_b128 v[{16+4*c}:{19+4*c}], v11 offset:{64*c}')
    ad = ['v12', 'v3', 'v4', 'v5']
    def sel(t):
        A(f's_mov_b64 exec, s[{46+2*t}:{47+2*t}]')
        for j in range(4): A(f'v_add_u32 v{(48,49,52,53)[j]}, {1<<(NB-1)}, v{32+4*t+j}')
        if t != 2: A('s_mov_b64 exec, -1')
    for t in range(4):
        for c in range(4):
            for e in range(2):
                r = 64 + 16 * t + 4 * c + 2 * e
                A(f'ds_read_b64_tr_b16 v[{r}:{r+1}], {ad[t]} offset:{WQ + 4096*c + 512*e}')
        if t >= 1:
            if t >= 2: sel(t - 2)
            LG(8)
            for c in range(4):
                r = 64 + 16 * (t - 1) + 4 * c
                A(f'v_mfma_f32_16x16x32_bf16 v[{32+4*(t-1)}:{35+4*(t-1)}], v[{r}:{r+3}], v[{16+4*c}:{19+4*c}], ' + ('0' if c == 0 else f'v[{32+4*(t-1)}:{35+4*(t-1)}]'))
    for c in range(4):
        LG(6 - 2 * c)
        r = 64 + 48 + 4 * c
        A(f'v_mfma_f32_16x16x32_bf16 v[44:47], v[{r}:{r+3}], v[{16+4*c}:{19+4*c}], ' + ('0' if c == 0 else 'v[44:47]'))
    sel(2); sel(3)
    for j in range(4): A(f'v_bfi_b32 v{68+j}, s44, v{60+j}, v{(48,49,52,53)[j]}')
    A('global_store_dwordx4 v13, v[68:71], s[28:29]' + ('' if lq else ' sc1'))
    def qfb(): A('global_store_dwordx4 v13, v[68:71], s[28:29] sc1')
    A('ds_write_b32 v54, v55 offset:12')
    A('global_load_dword v9, v7, s[4:5]\ns_load_dword s38, s[22:23], 0')
    if lq: A(f'v_add_u32 v13, {FB}, v13')
    if wop >= 7:
        A(f'''s_bfe_u32 s35, s2, 0x30003
        {ROLE}
        s_lshl_b32 s40, s39, 17
        s_lshl_b32 s41, s61, 7
        s_add_u32 s40, s40, s41
        v_lshrrev_b32 v64, 3, v0
        v_lshlrev_b32 v64, 10, v64
        v_and_b32 v65, 7, v0
        v_lshl_add_u32 v64, v65, 4, v64
        v_add_u32 v64, s40, v64
        v_add_u32 v65, 7168, v64
        v_add_u32 v66, 14336, v64
        v_add_u32 v67, 21504, v64
        s_mov_b32 m0, {WO}''')
    def wo8():
        for w_ in range(4):
            for a_ in range(4): A(f'global_load_lds_dwordx4 v{64+a_}, s[12:13] offset:{1024*a_}{NT}')
            if w_ < 3: A('s_addk_i32 m0, 4096\ns_add_u32 s12, s12, 32768\ns_addc_u32 s13, s13, 0')
    STAMP(7)
    def chkq():
        for e in range(8):
            r = 16 + 4 * e
            A(f's_waitcnt vmcnt({7-e})')
            if e == 0: STAMP(6)
            for j in range(4): A(f'v_xor_b32 v{r+j}, v{60+j}, v{r+j}')
            if e == 0: A(f'v_or_b32 v57, v{r}, v{r+1}')
            else: A(f'v_or3_b32 v57, v57, v{r}, v{r+1}')
            A(f'v_or3_b32 v57, v57, v{r+2}, v{r+3}')
            if e >= 2:
                for j in (0, 2): A(f'v_pk_add_f32 v[{16+4*(e&1)+j}:{17+4*(e&1)+j}], v[{16+4*(e&1)+j}:{17+4*(e&1)+j}], v[{r+j}:{r+j+1}]')
        A('v_and_b32 v57, s44, v57')
        A('v_cmp_ne_u32 vcc, 0, v57')
    poll('L_pollq', [(16 + 4 * e, 'v14', 1024 * e - 4096) for e in range(8)], chkq, st=5, nowait=opt.get('qnw'), post=lambda: A('ds_write_b32 v54, v55 offset:8\nv_mov_b32 v55, 2'), fb=qfb if lq else None)
    A('ds_write_b32 v54, v55 offset:8')
    if stamps: A('s_mov_b32 s90, s43')
    A('v_cvt_pk_bf16_f32 v16, v16, v17\nv_cvt_pk_bf16_f32 v17, v18, v19\nv_cvt_pk_bf16_f32 v20, v20, v21\nv_cvt_pk_bf16_f32 v21, v22, v23')
    A('ds_write_b64 v15, v[16:17]\nds_write_b64 v15, v[20:21] offset:640')
    STAMP(8)
    A('s_waitcnt lgkmcnt(0)')
    A('s_barrier                    ; B2')
    if lq: qfb()
    A(f'v_lshlrev_b32 v11, 3, v50\nv_add_u32 v11, {GY}, v11')
    for w in range(7): A(f'ds_read_b64 v[{16+2*w}:{17+2*w}], v11 offset:{32*w}')
    if wop == 8: wo8()
    A('s_barrier                    ; B3')
    if wop == 7: wo8()
    A('s_setprio 0')
    A(f's_lshl_b32 s37, s59, 11\ns_add_u32 s37, s37, {SR}')
    A('v_lshl_add_u32 v14, v0, 4, s37')
    A('s_waitcnt lgkmcnt(0)')
    A('s_lshl_b32 s38, s38, 16')
    def ep1():
        for w in range(1, 7): A(f'v_pk_add_f32 v[16:17], v[16:17], v[{16+2*w}:{17+2*w}]')
        A('v_cvt_pk_bf16_f32 v18, v16, v17')
        unpack(['v16', 'v17'], ['v18'])
        A('v_add_f32 v16, s38, v16\nv_add_f32 v17, s38, v17\nv_cvt_pk_bf16_f32 v18, v16, v17')
        unpack(['v16', 'v17'], ['v18'])
        A(f'v_mul_f32 v18, {f2h(-LOG2E)}, v16\nv_mul_f32 v19, {f2h(-LOG2E)}, v17')
    def ep2():
        A('v_exp_f32 v18, v18\nv_exp_f32 v19, v19\nv_add_f32 v18, 1.0, v18\nv_add_f32 v19, 1.0, v19\nv_rcp_f32 v18, v18\nv_rcp_f32 v19, v19')
        A('v_mul_f32 v16, v16, v18\nv_mul_f32 v17, v17, v19\nv_cvt_pk_bf16_f32 v18, v16, v17')
        unpack(['v30', 'v31'], ['v18'])
        unpack(['v8', 'v10'], ['v9'])
    ps = opt.get('ps', 0)
    if not ps: ep1(); ep2()
    A('s_barrier                    ; B4')
    if wop >= 7: A('s_waitcnt vmcnt(0)\nds_write_b32 v54, v55 offset:16')
    A('s_barrier                    ; B5')
    STAMP(10)
    if opt.get('b6'): spin('L_sp6', 20, opt['b6'])
    if not ps:
        def chk2():
            A('s_waitcnt vmcnt(0)\nv_cmp_ne_u32 vcc, s33, v19\nv_cmp_ne_u32 s[54:55], s33, v23\ns_or_b64 vcc, vcc, s[54:55]')
        poll('L_polls', [(16, 'v14', 0), (20, 'v14', 1024)], chk2, fb=(lambda: None) if lo else None)
        A('v_pk_add_f32 v[16:17], v[16:17], v[20:21]')
    else:
        def sld(r): A(f'global_load_dwordx4 v[{r}:{r+3}], v14, s[28:29] sc1\nglobal_load_dwordx4 v[{r+4}:{r+7}], v14, s[28:29] offset:1024 sc1')
        sld(32); ep1(); sld(40); ep2(); sld(48)
        A(f's_movk_i32 s43, {SPIN}\nL_polls:')
        for r in (32, 40, 48):
            A(f's_waitcnt vmcnt(4)\nv_cmp_ne_u32 vcc, s33, v{r+3}\nv_cmp_ne_u32 s[54:55], s33, v{r+7}\nv_pk_add_f32 v[16:17], v[{r}:{r+1}], v[{r+4}:{r+5}]\ns_or_b64 vcc, vcc, s[54:55]')
            A('s_cbranch_vccz L_polls_done')
            sld(r)
        A('s_sub_u32 s43, s43, 1\ns_cbranch_scc0 L_polls\nL_polls_done:')
    STAMP(11)
    for m in ('row_ror:4', 'row_ror:8'):
        A(f'v_add_f32 v16, v16, v16 {m}\nv_add_f32 v17, v17, v17 {m}')
    xrow([('v16', 'v18'), ('v17', 'v19')], 'v_add_f32')
    A('v_cvt_pk_bf16_f32 v18, v16, v17')
    unpack(['v16', 'v17'], ['v18'])
    A('v_pk_mul_f32 v[16:17], v[16:17], v[30:31]\nv_cvt_pk_bf16_f32 v18, v16, v17')
    unpack(['v16', 'v17'], ['v18'])
    A('v_add_f32 v16, v16, v8\nv_add_f32 v17, v17, v10\nv_cvt_pk_bf16_f32 v18, v16, v17')
    A('s_mov_b64 exec, 15')
    A('global_store_dword v7, v18, s[24:25]')
    A('s_cmp_lg_u32 s2, 0\ns_cbranch_scc1 L_fin8')
    A('s_mov_b64 exec, 1\nv_mov_b32 v20, 0\nv_mov_b32 v21, s33')
    A('global_store_dword v20, v21, s[28:29]')
    A('L_fin8:')
    STAMP(12)
    DUMP(); DIAG('L_dg8')
    A('L_cend:')
    A('s_endpgm')
    A.raw(f'''.section .rodata,"a"
.p2align 6
.amdhsa_kernel {NAME}_kernel
  .amdhsa_next_free_vgpr 128
  .amdhsa_next_free_sgpr 96
  .amdhsa_accum_offset 128
  .amdhsa_group_segment_fixed_size 0
  .amdhsa_kernarg_size 104
  .amdhsa_user_sgpr_count 2
  .amdhsa_user_sgpr_kernarg_segment_ptr 1
  .amdhsa_system_sgpr_workgroup_id_x 1
.end_amdhsa_kernel''')
    return A.text()
if __name__ == '__main__':
    out = sys.argv[1]; stamps = 'stamps' in sys.argv[2:]
    opt = {}
    for k in sys.argv[2:]:
        if k.startswith('diag='): opt['diag'] = tuple(int(x) for x in k[5:].split(','))
        elif '=' in k: opt[k.split('=')[0]] = int(k.split('=')[1])
        else: opt[k] = True
    open(out, 'w').write(gen(stamps, opt))
```

```python
import sys, struct, math
from asmlib import Asm
NAME = 'recurrent_scan__sliding_block_cached__mixer_token_mlp__decode'
def f2h(x): return '0x%08x' % struct.unpack('<I', struct.pack('<f', x))[0]
LOG2E = 1.4426950408889634
def gen(stamps=False, opt=None):
    opt = opt or {}
    NT = {0: ' nt', 1: ' sc1 nt', 2: ' sc0 sc1 nt', 3: ' sc0 nt', 4: ' sc0 sc1', 5: ''}[opt.get('ld', 0)]
    A = Asm()
    small = opt.get('small')
    WQ, KS, VS, WO = (0, 32768, 0, 32768) if small else (0, 16384, 49152, 81920)
    XN = 65536 if small else 98304; QL = XN + 4352; SC = QL + 1280; OL = SC + 2048; HB = OL + 1280; FL = HB + 32; MX = FL + 32; GY = MX + 32
    LDS = GY + 256
    QR, OR_, SR, TS = 0x180000, 0x20000, 0x100000, 0x200000
    SPIN = 20000
    FB = 0x400000; NF = opt.get('NF', 24); lq = opt.get('lq', 1); lo = opt.get('lo', 1)
    D = opt.get('D', 40); V0 = opt.get('V0', 0); wop = opt.get('wo', 7)
    diag = opt.get('diag'); cur = {'w8': False}
    def STAMP(n):
        if stamps and (not opt.get('lite') or n in (0, 12)): A('s_memrealtime s[%d:%d]' % (64 + 2 * n, 65 + 2 * n))
        if diag and diag[1] == n and ((diag[0] == 8) == cur['w8'] or n == 0): A('s_memrealtime s[92:93]')
    def DIAG(lbl):
        if diag and ((diag[0] == 8) == cur['w8']):
            A(f's_cmp_lg_u32 s30, {diag[0]}\ns_cbranch_scc1 {lbl}_x')
            if not opt.get('dall'): A(f's_cmp_lg_u32 s2, 0\ns_cbranch_scc1 {lbl}_x')
            A(f'{lbl}:\ns_memrealtime s[94:95]\ns_waitcnt lgkmcnt(0)\ns_sub_u32 s94, s94, s92\ns_cmp_lt_u32 s94, 4000\ns_cbranch_scc1 {lbl}\n{lbl}_x:')
    def LG(n): A(f's_waitcnt lgkmcnt({0 if ((stamps and not opt.get("lite")) or diag) else n})')
    def DUMP():
        if stamps:
            A('s_waitcnt lgkmcnt(0)\ns_getreg_b32 s62, hwreg(HW_REG_XCC_ID)\ns_mov_b64 exec, -1\nv_mov_b32 v100, 0')
            for n in range(14): A('v_writelane_b32 v100, s%d, %d' % (64 + 2 * n, n))
            A('v_writelane_b32 v100, s62, 14')
            A('s_lshl_b32 s60, s2, 4\ns_add_u32 s60, s60, s30\ns_lshl_b32 s60, s60, 6\ns_add_u32 s60, s60, %d' % TS)
            A('v_lshl_add_u32 v101, v0, 2, s60\ns_mov_b64 exec, 0xffff\nglobal_store_dword v101, v100, s[28:29]')
    def xrow(pairs, op):
        for sw in ('v_permlane16_swap_b32', 'v_permlane32_swap_b32'):
            for v, t in pairs: A(f'v_mov_b32 {t}, {v}')
            for v, t in pairs: A(f'{sw} {v}, {t}')
            for v, t in pairs: A(f'{op} {v}, {v}, {t}')
    def rnd(d, s): A(f'v_cvt_pk_bf16_f32 {d}, {s}, {s}\nv_lshlrev_b32 {d}, 16, {d}')
    def unpack(dst, src):
        for j, s_ in enumerate(src): A(f'v_lshlrev_b32 {dst[2*j]}, 16, {s_}\nv_and_b32 {dst[2*j+1]}, 0xffff0000, {s_}')
    def poll(lbl, loads, check, st=None, nowait=False, post=None, fb=None):
        A(f's_movk_i32 s43, {SPIN}')
        if not nowait: A('s_waitcnt vmcnt(0)')
        if st is not None: STAMP(st)
        A(f'{lbl}:')
        for r, addr, off in loads: A(f'global_load_dwordx4 v[{r}:{r+3}], {addr}, s[28:29] offset:{off} sc1')
        if post: post()
        A(f's_sub_u32 s43, s43, 1\ns_cbranch_scc1 {lbl}_done')
        check()
        if fb is None: A(f's_cbranch_vccnz {lbl}')
        else:
            A(f's_cbranch_vccz {lbl}_done\ns_cmp_lg_u32 s43, {SPIN - NF}\ns_cbranch_scc1 {lbl}\nv_add_u32 {loads[0][1]}, {FB}, {loads[0][1]}')
            fb()
            A(f's_branch {lbl}')
        A(f'{lbl}_done:\ns_waitcnt vmcnt(0)')
    def spin(lbl, off, cnt, bound=SPIN):
        A(f'v_mov_b32 v46, {FL}\ns_movk_i32 s43, {bound}\n{lbl}:\nds_read_b32 v47, v46 offset:{off}\ns_sub_u32 s43, s43, 1\ns_cbranch_scc1 {lbl}_d\ns_waitcnt lgkmcnt(0)')
        A(f'v_cmp_gt_u32 vcc, {cnt}, v47\ns_cbranch_vccnz {lbl}\n{lbl}_d:')
    def signal(off): A(f's_mov_b64 exec, 1\nds_add_u32 v51, v52 offset:{off}\ns_mov_b64 exec, -1')
    A.raw(f'; @launch grid=(256,1,1) block=(576,1,1) lds={opt.get("lds", LDS)}')
    A.raw('.amdgcn_target "amdgcn-amd-amdhsa--gfx950"\n.text')
    A.raw(f'.globl {NAME}_kernel\n.p2align 8\n.type {NAME}_kernel,@function\n{NAME}_kernel:')
    KQ = {0: 's_mov_b32 s58, s31' if lq else 's_xor_b32 s58, s31, 1', 1: 's_lshl1_add_u32 s58, s34, 1\ns_xor_b32 s58, s58, s31', 2: 's_lshl1_add_u32 s58, s34, 1\ns_and_b32 s58, s58, 5\ns_xor_b32 s58, s58, s31'}[opt.get('kq', 0)]
    PERM = {0: '', 1: 's_lshr_b32 s3, s2, 3\ns_and_b32 s3, s3, 7\ns_xor_b32 s2, s2, s3', 2: 's_cmp_lt_u32 s2, 2\ns_cselect_b32 s3, 1, 0\ns_xor_b32 s2, s2, s3', 3: 's_bfe_u32 s3, s2, 0x10007\ns_xor_b32 s2, s2, s3', 4: 's_bfe_u32 s3, s2, 0x20004\ns_cmp_eq_u32 s3, 3\ns_cselect_b32 s3, 6, 0\ns_xor_b32 s2, s2, s3'}[opt.get('perm', 0)]
    WR = {0: 's_mov_b32 s36, 0', 1: 's_mov_b32 s36, s34', 2: 's_lshr_b32 s36, s35, 1', 3: 's_and_b32 s36, s31, 3'}[opt.get('wr', 1)]
    ROT = {0: 's_lshl_b32 s37, s37, 15', 1: 's_lshl3_add_u32 s37, s37, s35\ns_lshl_b32 s37, s37, 12', 2: 's_lshl3_add_u32 s37, s37, s31\ns_lshl_b32 s37, s37, 12', 3: 's_lshr_b32 s36, s2, 5\ns_lshl3_add_u32 s37, s37, s36\ns_lshl_b32 s37, s37, 12', 4: 's_bfe_u32 s36, s2, 0x30004\ns_lshl3_add_u32 s37, s37, s36\ns_lshl_b32 s37, s37, 12', 5: 's_xor_b32 s36, s35, s31\ns_lshl3_add_u32 s37, s37, s36\ns_lshl_b32 s37, s37, 12', 6: 's_lshl1_add_u32 s36, s34, s35\ns_and_b32 s36, s36, 7\ns_lshl3_add_u32 s37, s37, s36\ns_lshl_b32 s37, s37, 12', 7: 's_and_b32 s36, s31, 1\ns_lshl1_add_u32 s36, s34, s36\ns_lshl3_add_u32 s37, s37, s36\ns_lshl_b32 s37, s37, 12', 8: 's_and_b32 s36, s35, 4\ns_or_b32 s36, s34, s36\ns_lshl3_add_u32 s37, s37, s36\ns_lshl_b32 s37, s37, 12', 9: 's_and_b32 s36, s35, 1\ns_lshl1_add_u32 s36, s34, s36\ns_lshl3_add_u32 s37, s37, s36\ns_lshl_b32 s37, s37, 12', 10: 's_lshr_b32 s36, s2, 5\ns_xor_b32 s36, s36, s31\ns_lshl3_add_u32 s37, s37, s36\ns_lshl_b32 s37, s37, 12', 11: 's_lshl_b32 s36, s34, 1\ns_lshl3_add_u32 s37, s37, s36\ns_lshl_b32 s37, s37, 12'}[opt.get('rot', 3)]
    st_ = opt.get('str', 0); VSH = 15 if st_ else 12
    XK = 's_xor_b32 s40, s37, s38'
    if st_:
        ROT = {1: 's_lshl_b32 s36, s34, 1', 2: 's_mov_b32 s36, 0', 3: 's_and_b32 s36, s31, 1\ns_lshl1_add_u32 s36, s34, s36', 4: 's_lshr_b32 s36, s2, 5'}[st_] + '\ns_lshl3_add_u32 s37, s37, s36\ns_lshl3_add_u32 s37, s37, s35\ns_lshl_b32 s37, s37, 12'
        XK = 's_lshl_b32 s40, s30, 15\ns_xor_b32 s40, s37, s40'
    def kload():
        for a_ in range(4): A(f'global_load_lds_dwordx4 v{7+a_}, s[6:7] offset:{1024*a_}{NT}')
    def params():
        A('global_load_dwordx2 v[16:17], v6, s[16:17]\nglobal_load_dwordx2 v[18:19], v6, s[18:19]\ns_waitcnt lgkmcnt(0)\nglobal_load_dwordx2 v[20:21], v6, s[20:21]')
    A(f'''
    s_load_dwordx16 s[4:19], s[0:1], 0
    {PERM}
    v_lshrrev_b32 v1, 6, v0
    s_lshr_b32 s34, s2, 6
    v_readfirstlane_b32 s30, v1
    s_cmp_ge_u32 s34, 4
    s_cbranch_scc1 L_end
    s_cmp_eq_u32 s30, 8
    s_cbranch_scc0 L_main
    s_getpc_b64 s[56:57]
    L_pc:
    v_and_b32 v0, 63, v0
    v_lshlrev_b32 v4, 7, v0
    v_min_u32 v4, L_cend-L_pc, v4
    global_load_dword v59, v4, s[56:57]     ; code prefetch into L2
    s_branch L_stub
    L_main:
    ''')
    STAMP(0)
    A(f'''
    {'' if opt.get('ka') else 's_load_dwordx8 s[20:27], s[0:1], 64'}
    v_lshlrev_b32 v4, 4, v0        ; tid*16
    s_and_b32 s31, s2, 7           ; x
    s_bfe_u32 s35, s2, 0x30003
    {KQ}
    s_cmp_ge_u32 s30, 4
    s_cbranch_scc1 L_wq
    s_waitcnt lgkmcnt(0)
    global_load_dwordx4 v[12:15], v4, s[4:5]
    s_branch L_kk
    L_wq:
    v_lshrrev_b32 v6, 3, v0
    s_lshl3_add_u32 s36, s58, s35
    v_lshl_add_u32 v7, s34, 7, v6
    v_and_b32 v6, 2, v6
    v_lshl_or_b32 v6, v1, 2, v6
    v_xor_b32 v6, v6, v0
    v_and_b32 v6, 7, v6
    v_lshl_add_u32 v6, s36, 3, v6
    v_lshl_add_u32 v7, v7, 9, v6
    v_lshlrev_b32 v7, 4, v7
    s_lshl_b32 m0, s30, 10
    s_waitcnt lgkmcnt(0)
    global_load_lds_dwordx4 v7, s[10:11]{NT}
    s_addk_i32 m0, 4096
    v_add_u32 v7, 0x40000, v7
    global_load_lds_dwordx4 v7, s[10:11]{NT}
    s_addk_i32 m0, 4096
    v_add_u32 v7, 0x40000, v7
    global_load_lds_dwordx4 v7, s[10:11]{NT}
    s_addk_i32 m0, -12288
    v_add_u32 v7, 0xfff40000, v7
    global_load_lds_dwordx4 v7, s[10:11]{NT}
    L_kk:
    ''')
    STAMP(1)
    A(f'''
    {'s_load_dwordx8 s[20:27], s[0:1], 64' if opt.get('ka') else ''}
    s_lshl3_add_u32 s37, s34, s31
    s_lshl2_add_u32 s37, s37, 3
    {'' if st_ else 's_lshl3_add_u32 s37, s37, s35'}
    s_lshl_b32 s38, s30, 12        ; w*4096
    v_and_b32 v0, 63, v0
    v_lshrrev_b32 v2, 4, v0        ; g
    v_xor_b32 v7, v2, v0
    {ROT}
    {XK}
    v_lshl_add_u32 v7, v7, 4, s40
    s_add_u32 m0, s38, {KS}
    v_xor_b32 v8, 64, v7
    v_xor_b32 v9, 128, v7
    v_xor_b32 v10, 64, v9
    v_lshrrev_b32 v6, 1, v4        ; w*512 + l*8
    s_cmp_eq_u32 s30, 7
    s_barrier
    s_cbranch_scc1 {'L_go' if opt.get('kh', 7) == 8 else 'L_k7'}
    global_load_dwordx2 v[16:17], v6, s[16:17]
    global_load_dwordx2 v[18:19], v6, s[18:19]
    {'s_waitcnt lgkmcnt(0)' if opt.get('ka') else ''}
    global_load_dwordx2 v[20:21], v6, s[20:21]
    s_cmp_lt_u32 s30, {opt.get('kh', 7)}
    s_cbranch_scc1 L_go
    L_k7:
    ''')
    kload()
    A(f'''
    s_branch L_go
    L_stub:
    v_lshlrev_b32 v46, 2, v0
    v_bfe_i32 v48, v0, 3, 1
    v_add_u32 v46, {FL}, v46
    v_lshlrev_b32 v48, 23, v48
    ds_write_b32 v46, v48
    s_waitcnt lgkmcnt(0)
    s_barrier                    ; B0
    s_load_dwordx2 s[28:29], s[0:1], 96
    s_load_dwordx8 s[20:27], s[0:1], 64
    s_waitcnt lgkmcnt(0)
    s_load_dword s33, s[28:29], 0
    s_branch L_w8
    L_go:
    ''')
    STAMP(2)
    A(f'''
    s_load_dwordx2 s[28:29], s[0:1], 96
    v_and_b32 v3, 15, v0           ; n
    v_and_b32 v4, 0x3ff, v4        ; l*16
    v_and_b32 v50, 3, v0
    v_mov_b32 v51, {FL}
    v_mov_b32 v52, 1
    s_lshr_b32 s32, s2, 3
    s_lshl_b32 s59, s31, 5
    s_add_u32 s59, s59, s32
    s_cmp_ge_u32 s30, 4
    s_cbranch_scc1 L_noln
    s_waitcnt vmcnt(3)
    ''')
    STAMP(3)
    a = ['v%d' % (24 + j) for j in range(8)]
    def ln_stats():
        A('v_readfirstlane_b32 s44, v24')
        for j in range(0, 8, 2): A(f'v_pk_add_f32 v[{32+j}:{33+j}], v[{24+j}:{25+j}], s[44:45] op_sel_hi:[1,0] neg_lo:[0,1] neg_hi:[0,1]')
        A('v_pk_add_f32 v[40:41], v[32:33], v[34:35]\nv_pk_mul_f32 v[42:43], v[32:33], v[32:33]\nv_pk_add_f32 v[44:45], v[36:37], v[38:39]\nv_pk_fma_f32 v[42:43], v[34:35], v[34:35], v[42:43]')
        A('v_pk_add_f32 v[40:41], v[40:41], v[44:45]\nv_pk_fma_f32 v[42:43], v[36:37], v[36:37], v[42:43]\nv_add_f32 v40, v40, v41\nv_pk_fma_f32 v[42:43], v[38:39], v[38:39], v[42:43]\nv_add_f32 v41, v42, v43')
        for m in ('quad_perm:[1,0,3,2]', 'quad_perm:[2,3,0,1]', 'row_ror:4', 'row_ror:8'):
            A(f'v_add_f32 v40, v40, v40 {m}\nv_add_f32 v41, v41, v41 {m}')
        xrow([('v40', 'v42'), ('v41', 'v43')], 'v_add_f32')
        A(f'v_mul_f32 v40, {f2h(1/512)}, v40\nv_mul_f32 v41, {f2h(1/512)}, v41')
        A('v_fma_f32 v41, -v40, v40, v41\nv_add_f32 v40, s44, v40\nv_max_f32 v41, 0, v41')
        A('v_cvt_pk_bf16_f32 v42, v40, v41\nv_and_b32 v41, 0xffff0000, v42\nv_lshlrev_b32 v40, 16, v42')
        A(f'v_add_f32 v41, {f2h(1e-5)}, v41')
        rnd('v41', 'v41')
        A('v_sqrt_f32 v41, v41')
    unpack(a, ['v12', 'v13', 'v14', 'v15'])
    ln_stats()
    for j in range(0, 8, 2): A(f'v_pk_add_f32 v[{24+j}:{25+j}], v[{24+j}:{25+j}], v[40:41] op_sel_hi:[1,0] neg_lo:[0,1] neg_hi:[0,1]')
    rnd('v41', 'v41')
    A('v_rcp_f32 v41, v41')
    for j in range(4): A(f'v_cvt_pk_bf16_f32 v{12+j}, {a[2*j]}, {a[2*j+1]}')
    unpack(a, ['v12', 'v13', 'v14', 'v15'])
    for j in range(0, 8, 2): A(f'v_pk_mul_f32 v[{24+j}:{25+j}], v[{24+j}:{25+j}], v[40:41] op_sel:[0,1] op_sel_hi:[1,1]')
    A(f's_mul_i32 s42, s30, 1088\ns_add_u32 s42, s42, {XN}')
    A('v_add_u32 v45, s42, v4')
    for j in range(4): A(f'v_cvt_pk_bf16_f32 v{12+j}, {a[2*j]}, {a[2*j+1]}')
    A('ds_write_b128 v45, v[12:15]')
    kl = opt.get('kl', 2)
    signal(0)
    if kl > 0:
        if kl < 4: A(f's_cmp_ge_u32 s30, {kl}\ns_cbranch_scc1 L_k3')
        kload()
        A('L_k3:')
    A('s_lshl_b32 s43, s59, 2\ns_add_u32 s43, s43, s42\nv_mov_b32 v46, s43')
    A('ds_read_b32 v47, v46')
    unpack(a, ['v12', 'v13', 'v14', 'v15'])
    ln_stats()
    rnd('v41', 'v41')
    A('v_rcp_f32 v41, v41')
    A('s_waitcnt lgkmcnt(0)')
    unpack(['v48', 'v49'], ['v47'])
    A('v_sub_f32 v48, v48, v40\nv_sub_f32 v49, v49, v40\nv_cvt_pk_bf16_f32 v47, v48, v49')
    unpack(['v48', 'v49'], ['v47'])
    A('v_mul_f32 v48, v48, v41\nv_mul_f32 v49, v49, v41\nv_cvt_pk_bf16_f32 v47, v48, v49')
    unpack(['v48', 'v49'], ['v47'])
    A(f's_lshl_b32 s43, s30, 3\ns_add_u32 s43, s43, {HB}\nv_mov_b32 v46, s43')
    A('s_mov_b64 exec, 1\nds_write_b64 v46, v[48:49]\nds_add_u32 v51, v52 offset:4\ns_mov_b64 exec, -1')
    if kl < 4:
        if kl > 0: A(f's_cmp_lt_u32 s30, {kl}\ns_cbranch_scc1 L_gelu')
        spin('L_spk', *((0, 8) if opt.get('kg') else (12, 1)))
        kload()
    A('s_branch L_gelu')
    A('L_noln:')
    A('s_cmp_eq_u32 s30, 7\ns_cbranch_scc1 L_loader')
    kh = opt.get('kh', 7)
    if kh < 7:
        A(f's_cmp_lt_u32 s30, {kh}\ns_cbranch_scc1 L_kh\ns_waitcnt vmcnt(7)')
        signal(0)
        A('s_branch L_gelu\nL_kh:')
    A('s_waitcnt vmcnt(3)')
    signal(0)
    STAMP(2)
    if opt.get('kw', 1):
        A(f's_cmp_ge_u32 s30, {4 + opt.get("kw", 1)}\ns_cbranch_scc1 L_spw4_d')
        spin('L_spw4', 12, 1)
    kload()
    A('L_gelu:')
    A('s_waitcnt lgkmcnt(0)\ns_load_dword s33, s[28:29], 0')
    STAMP(4)
    spin('L_spg', 4, 4)
    A(f'v_mov_b32 v46, {HB}')
    A('ds_read_b128 v[24:27], v46\nds_read_b128 v[28:31], v46 offset:16')
    A('s_waitcnt vmcnt(4)')
    unpack(['v32', 'v33', 'v34', 'v35'], ['v16', 'v17'])
    unpack(['v36', 'v37', 'v38', 'v39'], ['v18', 'v19'])
    unpack(['v40', 'v41', 'v42', 'v43'], ['v20', 'v21'])
    c0 = math.sqrt(2 / math.pi)
    A(f'v_mov_b32 v44, {f2h(-2 * c0 * 0.044715 * LOG2E)}\nv_mov_b32 v45, {f2h(-2 * c0 * LOG2E)}')
    A('s_waitcnt lgkmcnt(0)')
    for o in range(8):
        hp = 24 + (o & ~1); sel = o & 1
        acc = 72 + 2 * o
        for j in (0, 2): A(f'v_pk_fma_f32 v[{56+j}:{57+j}], v[{32+j}:{33+j}], v[{hp}:{hp+1}], v[{36+j}:{37+j}] op_sel:[0,{sel},0] op_sel_hi:[1,{sel},1]')
        for j in (0, 2): A(f'v_pk_mul_f32 v[{52+j}:{53+j}], v[{56+j}:{57+j}], v[{56+j}:{57+j}]')
        for j in (0, 2): A(f'v_pk_fma_f32 v[{52+j}:{53+j}], v[{52+j}:{53+j}], v[44:45], v[44:45] op_sel:[0,0,1] op_sel_hi:[1,0,1]')
        for j in (0, 2): A(f'v_pk_mul_f32 v[{52+j}:{53+j}], v[{52+j}:{53+j}], v[{56+j}:{57+j}]')
        for j in range(4): A(f'v_exp_f32 v{52+j}, v{52+j}')
        for j in (0, 2): A(f'v_pk_mul_f32 v[{56+j}:{57+j}], v[{56+j}:{57+j}], v[{40+j}:{41+j}]')
        for j in (0, 2): A(f'v_pk_add_f32 v[{52+j}:{53+j}], v[{52+j}:{53+j}], 1.0 op_sel_hi:[1,0]')
        for j in range(4): A(f'v_rcp_f32 v{52+j}, v{52+j}')
        A(f'v_pk_mul_f32 v[{acc}:{acc+1}], v[56:57], v[52:53]')
        A(f'v_pk_fma_f32 v[{acc}:{acc+1}], v[58:59], v[54:55], v[{acc}:{acc+1}]')
    for o in range(8): A(f'v_add_f32 v{64+o}, v{72+2*o}, v{73+2*o}')
    for o in range(4): A(f'v_permlane32_swap_b32 v{64+o}, v{68+o}')
    for o in range(4): A(f'v_add_f32 v{64+o}, v{64+o}, v{68+o}')
    for o in range(2): A(f'v_permlane16_swap_b32 v{64+o}, v{66+o}')
    for o in range(2): A(f'v_add_f32 v{64+o}, v{64+o}, v{66+o}')
    for m in ('quad_perm:[1,0,3,2]', 'quad_perm:[2,3,0,1]', 'row_ror:4', 'row_ror:8'):
        for o in range(2): A(f'v_add_f32 v{64+o}, v{64+o}, v{64+o} {m}')
    A(f's_lshl_b32 s43, s30, 5\ns_add_u32 s43, s43, {GY}')
    A('v_lshl_add_u32 v46, v2, 3, s43')
    A('s_mov_b32 exec_lo, 0x00010001\ns_mov_b32 exec_hi, 0x00010001')
    A('ds_write_b64 v46, v[64:65]')
    A('s_mov_b64 exec, -1')
    STAMP(5)
    A('s_waitcnt vmcnt(0)')
    A('s_branch L_nogelu')
    A('L_loader:')
    if opt.get('tw', 1): A('s_load_dword s60, s[8:9], s37\ns_lshl_b32 s36, s58, 19\ns_load_dword s61, s[12:13], s36\ns_load_dword s62, s[24:25], 0')
    A('s_setprio 2\ns_waitcnt vmcnt(%d)' % (0 if kh == 8 else 4))
    signal(0)
    if kh == 8: kload()
    A('s_waitcnt lgkmcnt(0)\ns_load_dword s33, s[28:29], 0')
    A(f's_mov_b32 s36, {FB}\ns_load_dword s63, s[28:29], s36')
    if lo and not opt.get('nopre'):
        A(f's_lshl_b32 s43, s31, 16\ns_lshl_b32 s45, s32, 9\ns_add_u32 s43, s43, s45\ns_add_u32 s43, s43, {OR_}')
        A('v_lshlrev_b32 v11, 14, v50\nv_lshl_add_u32 v11, v2, 7, v11\nv_add_u32 v11, s43, v11\nglobal_load_dword v99, v11, s[28:29]')
        V0 += 1
    A(f'''
    v_lshlrev_b32 v8, 1, v2
    v_xor_b32 v8, v3, v8
    v_lshlrev_b32 v8, 4, v8
    v_lshl_add_u32 v8, v2, 8, v8
    v_add_u32 v8, s37, v8
    {'v_xor_b32 v8, 16384, v8' if small else ''}
    v_xor_b32 v9, 128, v8
    s_mov_b32 m0, {VS + (16384 if small else 0)}''')
    A(f's_waitcnt vmcnt({V0})')
    if opt.get('tq', 1): signal(20)
    STAMP(4)
    V1 = opt.get('V1', 0)
    vg = [0]
    vst = {'m': 0, 8: 0, 9: 0}
    def vgrp():
        if opt.get('vo'):
            for t in range(4 * vg[0], 4 * vg[0] + 4):
                if opt['vo'] == 1: j, a_ = t & 7, t >> 3
                else: j, a_ = (t >> 1) & 7, (t & 1) | ((t >> 4) << 1)
                r = 8 + (a_ & 1)
                if vst['m'] != j: A(f's_addk_i32 m0, {(j - vst["m"]) * 4096}')
                if vst[r] != j: A(f'v_xor_b32 v{r}, {(j ^ vst[r]) << 12}, v{r}')
                elif vst['m'] != j: A('s_nop 0')
                vst['m'] = j; vst[r] = j
                A(f'global_load_lds_dwordx4 v{r}, s[8:9] offset:{1024*a_}{NT}')
            vg[0] += 1
            return
        for a_ in range(4): A(f'global_load_lds_dwordx4 v{8+(a_&1)}, s[8:9] offset:{1024*a_}{NT}')
        j = vg[0]; vg[0] += 1
        if j < 7: A(f's_addk_i32 m0, {-28672 if (small and j == 3) else 4096}\nv_xor_b32 v8, {(j ^ (j + 1)) << VSH}, v8\nv_xor_b32 v9, {(j ^ (j + 1)) << VSH}, v9')
    for _ in range(V1): vgrp()
    A('L_nogelu:')
    A(f's_add_u32 s43, s38, {KS}')
    A('v_xor_b32 v46, v2, v3\nv_lshlrev_b32 v46, 4, v46\nv_lshl_add_u32 v46, v3, 8, v46\nv_add_u32 v46, s43, v46')
    A('v_xor_b32 v47, 64, v46\nv_xor_b32 v48, 128, v46\nv_xor_b32 v49, 192, v46')
    for i in range(4): A(f'ds_read_b128 v[{16+4*i}:{19+4*i}], v{46+i}')
    ROLE = 's_mov_b32 s61, s35\ns_lshl2_add_u32 s39, s31, s34' if lo else 's_xor_b32 s39, s31, 2\ns_xor_b32 s58, s31, 1\ns_xor_b32 s61, s31, 3\ns_cmp_eq_u32 s35, s31\ns_cselect_b32 s39, s39, s58\ns_cselect_b32 s61, s61, s35\ns_lshl2_add_u32 s39, s39, s34'
    A(ROLE)
    A(f'v_mul_u32_u24 v51, 320, v50\nv_lshl_add_u32 v51, v2, 4, v51\nv_add_u32 v66, {OL}, v51\nv_add_u32 v51, {QL}, v51')
    A(f's_lshl_b32 s43, s30, 8\ns_add_u32 s43, s43, {SC}')
    A('v_lshl_add_u32 v52, v2, 2, v50\nv_lshlrev_b32 v52, 4, v52       ; (g*4+h)*16')
    A('v_add_u32 v53, s43, v52')
    A(f'v_lshrrev_b32 v54, 2, v3\nv_lshl_add_u32 v54, v54, 9, v52\nv_add_u32 v54, {SC}, v54')
    A('v_lshrrev_b32 v60, 2, v0      ; 4g+r')
    A('v_and_b32 v61, 7, v60\nv_xor_b32 v61, s30, v61\nv_lshlrev_b32 v61, 5, v61')
    A('v_lshl_add_u32 v61, v60, 8, v61\nv_lshl_add_u32 v61, v50, 3, v61')
    A(f'v_add_u32 v61, {VS}, v61')
    A(f's_lshl_b32 s43, s31, 16\ns_lshl_b32 s45, s32, 9\ns_add_u32 s43, s43, s45\ns_lshl_b32 s45, s30, 6\ns_add_u32 s43, s43, s45\ns_add_u32 s43, s43, {OR_}')
    A('v_lshlrev_b32 v62, 14, v50\nv_lshl_add_u32 v62, v2, 4, v62\nv_add_u32 v62, s43, v62')
    A(f's_lshl_b32 s43, s39, 14\ns_add_u32 s43, s43, s38\ns_add_u32 s43, s43, {OR_}')
    A('v_add_u32 v63, s43, v4')
    A(f's_mul_i32 s43, s30, 320\ns_add_u32 s43, s43, {OL}\nv_and_b32 v64, 31, v0\nv_lshl_add_u32 v64, v64, 3, s43\nv_lshrrev_b32 v33, 5, v0\nv_lshl_add_u32 v64, v33, 2, v64')
    A(f's_lshl_b32 s43, s30, 5\ns_add_u32 s43, s43, {WO - 128}')
    A('v_lshl_add_u32 v65, v2, 2, v60\nv_lshlrev_b32 v65, 7, v65\nv_lshl_add_u32 v65, v50, 3, v65\nv_add_u32 v65, s43, v65')
    A(f's_lshl_b32 s43, s61, 16\ns_lshl_b32 s45, s30, 14\ns_add_u32 s43, s43, s45\ns_lshl_b32 s45, s39, 6\ns_add_u32 s43, s43, s45\ns_add_u32 s43, s43, {SR - 4*16384}')
    A('v_bfe_u32 v67, v0, 2, 1\nv_lshl_add_u32 v67, v2, 1, v67\nv_lshlrev_b32 v67, 11, v67\nv_lshl_add_u32 v67, v50, 4, v67\nv_add_u32 v67, s43, v67')
    A(f'''s_lshl_b32 s40, s39, 17
    s_lshl_b32 s41, s61, 7
    s_add_u32 s40, s40, s41
    s_and_b32 s41, s30, 3
    s_lshl_b32 s41, s41, 15
    s_add_u32 s40, s40, s41
    v_lshrrev_b32 v10, 3, v0
    v_lshlrev_b32 v10, 10, v10
    v_and_b32 v11, 7, v0
    v_lshl_add_u32 v10, v11, 4, v10
    v_add_u32 v10, s40, v10
    v_add_u32 v11, 7168, v10
    v_add_u32 v12, 14336, v10
    v_add_u32 v13, 21504, v10
    s_lshr_b32 s41, s41, 3
    v_lshlrev_b32 v14, 2, v50
    v_add_u32 v14, {MX}, v14''')
    def woload(lbl):
        A(f's_cmp_lt_u32 s30, 4\ns_cbranch_scc1 {lbl}')
        for a_ in range(4): A(f'global_load_lds_dwordx4 v{10+a_}, s[12:13] offset:{1024*a_}{NT}')
        A(f'{lbl}:')
    A('s_mov_b32 s46, 0x000f000f\ns_mov_b32 s47, 0x000f000f\ns_mov_b32 s48, 0x00ff00ff\ns_mov_b32 s49, 0x00ff00ff')
    A('s_waitcnt lgkmcnt(0)')
    A('s_mul_i32 s33, s33, 1664525\ns_add_u32 s33, s33, 1013904223')
    A(f's_mov_b32 s44, {f2h(128 ** -0.5)}\ns_mov_b32 s45, {f2h(LOG2E)}')
    A('v_mov_b32 v71, s33')
    A('s_cmp_lg_u32 s30, 7\ns_cbranch_scc1 L_b2')
    VA = opt.get('VA', 5)
    spin('L_spv', 8, 1)
    STAMP(3)
    for _ in range(VA): vgrp()
    if V1 + VA < 8:
        spin('L_spv2', 8, 2)
        for _ in range(8 - V1 - VA): vgrp()
    A('s_setprio 0')
    STAMP(5)
    A('L_b2:')
    A(f's_add_u32 m0, s41, {WO}')
    STAMP(6)
    A('s_barrier                    ; B2')
    STAMP(7)
    for i in range(4): A(f'ds_read_b128 v[{32+4*i}:{35+4*i}], v51 offset:{64*i}')
    if wop == 2: woload('L_wo2')
    for i in range(4):
        LG(3 - i)
        A(f'v_mfma_f32_16x16x32_bf16 v[56:59], v[{16+4*i}:{19+4*i}], v[{32+4*i}:{35+4*i}], ' + ('0' if i == 0 else 'v[56:59]'))
    A('s_mov_b64 exec, s[46:47]')
    A('v_cvt_pk_bf16_f32 v68, v56, v57\nv_cvt_pk_bf16_f32 v69, v58, v59')
    unpack(['v56', 'v57', 'v58', 'v59'], ['v68', 'v69'])
    for j in (0, 2): A(f'v_pk_mul_f32 v[{56+j}:{57+j}], v[{56+j}:{57+j}], s[44:45] op_sel_hi:[1,0]')
    A('v_cvt_pk_bf16_f32 v68, v56, v57\nv_cvt_pk_bf16_f32 v69, v58, v59')
    unpack(['v56', 'v57', 'v58', 'v59'], ['v68', 'v69'])
    A('ds_write_b128 v53, v[56:59]')
    A('v_max3_f32 v24, v56, v57, v58\nv_max_f32 v24, v24, v59')
    A('ds_max_f32 v14, v24')
    A('s_mov_b64 exec, -1')
    A('s_waitcnt lgkmcnt(0)')
    A('s_barrier                    ; B3')
    A('ds_read_b32 v24, v14\nds_read_b128 v[16:19], v54\nds_read_b128 v[20:23], v54 offset:256')
    if wop == 6: woload('L_wo6')
    LG(2)
    A('v_mul_f32 v24, s45, v24')
    LG(1)
    for j in range(0, 8, 2):
        if j == 4: A('s_waitcnt lgkmcnt(0)')
        A(f'v_pk_fma_f32 v[{16+j}:{17+j}], v[{16+j}:{17+j}], s[44:45], v[24:25] op_sel:[0,1,0] op_sel_hi:[1,1,0] neg_lo:[0,0,1] neg_hi:[0,0,1]')
    for j in range(8): A(f'v_exp_f32 v{16+j}, v{16+j}')
    for j in range(4): A(f'v_cvt_pk_bf16_f32 v{32+j}, v{16+2*j}, v{17+2*j}')
    sp = opt.get('sp', 1)
    def rot():
        for k in range(1, 4):
            for j in range(4): A(f'v_mov_b32 v{32+4*k+j}, v{32+j} row_ror:{16-4*k}')
    tree = ['v_pk_add_f32 v[26:27], v[16:17], v[18:19]\nv_pk_add_f32 v[28:29], v[20:21], v[22:23]',
            'v_pk_add_f32 v[26:27], v[26:27], v[28:29]\nv_add_f32 v26, v26, v27',
            'v_add_f32 v26, v26, v26 row_ror:4\nv_add_f32 v26, v26, v26 row_ror:8',
            'v_mov_b32 v25, v26\nv_permlane16_swap_b32 v26, v25\nv_add_f32 v26, v26, v25',
            'v_mov_b32 v25, v26\nv_permlane32_swap_b32 v26, v25\nv_add_f32 v26, v26, v25\nv_rcp_f32 v27, v26\nv_log_f32 v26, v26']
    if sp >= 1:
        for t_ in tree: A(t_)
    if sp >= 2: rot()
    if wop == 3: woload('L_wo3')
    STAMP(8)
    A('s_waitcnt vmcnt(%d)' % (4 if wop in (2, 3, 6) else 0))
    STAMP(9)
    A('s_barrier                    ; B4')
    for e in range(8): A(f'ds_read_b64_tr_b16 v[{72+2*e}:{73+2*e}], v61 offset:{4096*e}')
    if wop == 4: woload('L_wo4')
    if sp < 2: rot()
    for k in range(4):
        if sp == 0: A(tree[k])
        LG(6 - 2 * k)
        A(f'v_mfma_f32_16x16x32_bf16 v[56:59], v[{72+4*k}:{75+4*k}], v[{32+4*k}:{35+4*k}], ' + ('0' if k == 0 else 'v[56:59]'))
    if sp == 0: A(tree[4])
    A('s_mov_b64 exec, s[46:47]')
    for j in (0, 2): A(f'v_pk_mul_f32 v[{56+j}:{57+j}], v[{56+j}:{57+j}], v[26:27] op_sel:[0,1] op_sel_hi:[1,1]')
    A('v_add_f32 v70, v24, v26')
    A('v_cvt_pk_bf16_f32 v68, v56, v57\nv_cvt_pk_bf16_f32 v69, v58, v59')
    A('global_store_dwordx4 v62, v[68:71], s[28:29]' + ('' if lo else ' sc1'))
    A('s_mov_b64 exec, -1')
    def ofb(): A(f's_mov_b64 exec, s[46:47]\nglobal_store_dwordx4 v62, v[68:71], s[28:29] sc1\ns_mov_b64 exec, -1')
    if lo: A(f'v_add_u32 v62, {FB}, v62\nv_mov_b32 v51, {FL}\nv_mov_b32 v52, 1')
    STAMP(10)
    if opt.get('onw') == 2: A('s_barrier')
    A('s_cmp_ge_u32 s30, 4\ns_cbranch_scc1 L_oproj')
    def chk4():
        A('s_waitcnt vmcnt(0)')
        A('v_xor_b32 v19, s33, v19\nv_xor_b32 v23, s33, v23\nv_xor_b32 v27, s33, v27\nv_xor_b32 v31, s33, v31')
        A('v_or3_b32 v19, v19, v23, v27\nv_or_b32 v19, v19, v31\nv_cmp_ne_u32 vcc, 0, v19')
    poll('L_pollo', [(16 + 4 * e, 'v63', 1024 * e) for e in range(4)], chk4, fb=ofb if lo else None, nowait=opt.get('onw'))
    if lo: signal(24)
    if stamps: A('s_mov_b32 s90, s43')
    A(f's_movk_i32 s43, 200\nv_mov_b32 v54, {FL}')
    STAMP(11)
    A('v_max3_f32 v32, v18, v22, v26\nv_max_f32 v32, v32, v30\nv_mov_b32 v33, v32\nv_permlane32_swap_b32 v32, v33\nv_max_f32 v32, v32, v33')
    for e in range(4): A(f'v_sub_f32 v{18+4*e}, v{18+4*e}, v32')
    for e in range(4): A(f'v_exp_f32 v{18+4*e}, v{18+4*e}')
    for e in range(4): unpack([f'v{36+4*e+j}' for j in range(4)], [f'v{16+4*e}', f'v{17+4*e}'])
    A('v_add_f32 v32, v18, v22\nv_add_f32 v33, v26, v30')
    for j in (0, 2): A(f'v_pk_mul_f32 v[{36+j}:{37+j}], v[{36+j}:{37+j}], v[18:19] op_sel_hi:[1,0]')
    A('v_add_f32 v32, v32, v33')
    for e in range(1, 4):
        for j in (0, 2): A(f'v_pk_fma_f32 v[{36+j}:{37+j}], v[{36+4*e+j}:{37+4*e+j}], v[{18+4*e}:{19+4*e}], v[{36+j}:{37+j}] op_sel_hi:[1,0,1]')
    A('v_mov_b32 v33, v32\nv_permlane32_swap_b32 v32, v33\nv_add_f32 v32, v32, v33\nv_rcp_f32 v32, v32')
    A('v_permlane32_swap_b32 v36, v38\nv_permlane32_swap_b32 v37, v39')
    A('v_pk_add_f32 v[36:37], v[36:37], v[38:39]\nv_pk_mul_f32 v[36:37], v[36:37], v[32:33] op_sel_hi:[1,0]')
    A('v_cvt_pk_bf16_f32 v36, v36, v37')
    A('ds_write_b32 v64, v36')
    if lo:
        A('L_spc:\nds_read_b32 v53, v54 offset:24\ns_waitcnt lgkmcnt(0)\nv_cmp_gt_u32 vcc, 4, v53\ns_cbranch_vccz L_spc_d\ns_sub_u32 s43, s43, 1\ns_cbranch_scc0 L_spc')
        ofb()
        A('L_spc_d:')
    else: A('s_waitcnt lgkmcnt(0)')
    A('s_barrier                    ; B5')
    if lo and opt.get('bl', 1): spin('L_spb', 28, 4)
    if lo: ofb()
    A('s_branch L_fin')
    A('L_oproj:')
    if wop == 5:
        for a_ in range(4): A(f'global_load_lds_dwordx4 v{10+a_}, s[12:13] offset:{1024*a_}{NT}')
    if wop < 7:
        A(f'v_mov_b32 v51, {FL}\nv_mov_b32 v52, 1\ns_waitcnt vmcnt(0)')
        signal(16)
    spin('L_spw', 16, 4 if wop < 7 else 1)
    STAMP(3)
    for c in range(4):
        for e in range(2): A(f'ds_read_b64_tr_b16 v[{72+4*c+2*e}:{73+4*c+2*e}], v65 offset:{4096*c + 512*e}')
    A('v_mov_b32 v94, s33\nv_mov_b32 v95, s33')
    if lo:
        A('s_movk_i32 s43, 200\nL_spo:\nds_read_b32 v47, v46 offset:24\ns_waitcnt lgkmcnt(0)\nv_cmp_gt_u32 vcc, 4, v47\ns_cbranch_vccz L_spo_d\ns_sub_u32 s43, s43, 1\ns_cbranch_scc0 L_spo')
        ofb()
        A('L_spo_d:')
    A('s_cmp_eq_u32 s35, s31')
    A('s_waitcnt lgkmcnt(0)')
    A('s_barrier                    ; B5')
    STAMP(11)
    for c in range(4): A(f'ds_read_b128 v[{16+4*c}:{19+4*c}], v66 offset:{64*c}')
    for c in range(4):
        LG(3 - c)
        A(f'v_mfma_f32_16x16x32_bf16 v[56:59], v[{72+4*c}:{75+4*c}], v[{16+4*c}:{19+4*c}], ' + ('0' if c == 0 else 'v[56:59]'))
    A('s_mov_b64 exec, s[48:49]')
    A('v_cndmask_b32 v92, v58, v56, s[46:47]\nv_cndmask_b32 v93, v59, v57, s[46:47]')
    if lo:
        A('s_cbranch_scc1 L_sl\nglobal_store_dwordx4 v67, v[92:95], s[28:29] sc1\ns_branch L_sb\nL_sl:\nglobal_store_dwordx4 v67, v[92:95], s[28:29]\nL_sb:')
        A(f'v_add_u32 v67, {FB}, v67')
    if lo and opt.get('bl', 1): signal(28); A('s_mov_b64 exec, s[48:49]')
    A('global_store_dwordx4 v67, v[92:95], s[28:29] sc1')
    if lo: ofb()
    if opt.get('b6'):
        A('s_waitcnt vmcnt(0)')
        signal(20)
    A('L_fin:')
    STAMP(12)
    DUMP(); DIAG('L_dgm')
    A('L_end:')
    A('s_endpgm')
    cur['w8'] = True
    A(f'''
    L_w8:
    s_setprio 3
    s_and_b32 s31, s2, 7           ; x
    {KQ}
    v_lshrrev_b32 v2, 4, v0
    v_and_b32 v50, 3, v0
    s_lshr_b32 s32, s2, 3
    s_lshl_b32 s59, s31, 5
    s_add_u32 s59, s59, s32
    s_lshl_b32 s37, s59, 2
    v_lshl_add_u32 v7, v50, 10, s37
    ''')
    STAMP(0)
    STAMP(1)
    qc = opt.get('qc', 1)
    A('v_bfe_u32 v6, v0, 2, 2')
    A(f's_lshl_b32 s37, s34, 8\ns_add_u32 s37, s37, {XN}\nv_mul_u32_u24 v11, 1088, {"v6" if qc else "v50"}\nv_lshl_add_u32 v11, v2, 4, v11\nv_add_u32 v11, s37, v11')
    A('v_lshrrev_b32 v12, 2, v0\nv_lshl_add_u32 v12, v2, 2, v12\nv_lshlrev_b32 v12, 7, v12\nv_bfe_u32 v13, v0, 3, 2\nv_lshl_add_u32 v12, v13, 5, v12\nv_lshl_add_u32 v12, v50, 3, v12')
    A('v_xor_b32 v3, 32, v12\nv_xor_b32 v4, 64, v12\nv_xor_b32 v5, 96, v12')
    A(f's_lshl_b32 s36, s58, 15\ns_lshl_b32 s37, s32, 8\ns_add_u32 s37, s36, s37\ns_add_u32 s37, s37, {QR}')
    if qc: A('v_lshlrev_b32 v13, 13, v6\nv_lshl_add_u32 v14, v2, 2, v50\nv_lshl_add_u32 v13, v14, 4, v13\nv_add_u32 v13, s37, v13')
    else: A('v_lshlrev_b32 v13, 13, v50\nv_and_b32 v14, 12, v0\nv_add_u32 v14, v14, v2\nv_lshl_add_u32 v13, v14, 4, v13\nv_add_u32 v13, s37, v13')
    if opt.get('pre'): A('global_load_dword v58, v13, s[28:29]' + (' sc1' if opt['pre'] == 2 else ''))
    A(f's_lshl_b32 s36, s31, 15\ns_lshl_b32 s37, s34, 13\ns_add_u32 s37, s36, s37\ns_add_u32 s37, s37, {QR + 4096}')
    A('v_lshl_add_u32 v14, v0, 4, s37')
    if qc:
        A(f'v_lshrrev_b32 v15, 5, v0\nv_lshlrev_b32 v15, 6, v15\nv_lshl_add_u32 v15, v2, 7, v15\nv_lshl_add_u32 v15, v50, 5, v15\nv_lshl_add_u32 v15, v6, 3, v15\nv_add_u32 v15, {QL}, v15')
        A('s_mov_b32 s46, 0x11111111\ns_mov_b32 s47, 0x11111111\ns_lshl_b64 s[48:49], s[46:47], 1\ns_lshl_b64 s[50:51], s[46:47], 2\ns_lshl_b64 s[52:53], s[46:47], 3')
    else:
        A(f'v_lshrrev_b32 v15, 5, v0\nv_lshlrev_b32 v15, 6, v15\nv_lshl_add_u32 v15, v0, 3, v15\nv_add_u32 v15, {QL}, v15')
        A('s_mov_b32 s46, 0x000f000f\ns_mov_b32 s47, 0x000f000f\ns_lshl_b64 s[48:49], s[46:47], 4\ns_lshl_b64 s[50:51], s[46:47], 8\ns_lshl_b64 s[52:53], s[46:47], 12')
    A('s_waitcnt lgkmcnt(0)')
    A('s_mul_i32 s33, s33, 1664525\ns_add_u32 s33, s33, 1013904223')
    NB = opt.get('nb', 5)
    for j in range(4): A(f'v_bfe_u32 v{60+j}, s33, {NB*j}, {NB}')
    A(f's_movk_i32 s44, {(1<<NB)-1}')
    A(f'v_mov_b32 v54, {FL}\nv_mov_b32 v55, 1')
    STAMP(2)
    spin('L_sp8', 0, 8)
    STAMP(4)
    for c in range(4): A(f'ds_read_b128 v[{16+4*c}:{19+4*c}], v11 offset:{64*c}')
    ad = ['v12', 'v3', 'v4', 'v5']
    def sel(t):
        A(f's_mov_b64 exec, s[{46+2*t}:{47+2*t}]')
        for j in range(4): A(f'v_add_u32 v{(48,49,52,53)[j]}, {1<<(NB-1)}, v{32+4*t+j}')
        if t != 2: A('s_mov_b64 exec, -1')
    for t in range(4):
        for c in range(4):
            for e in range(2):
                r = 64 + 16 * t + 4 * c + 2 * e
                A(f'ds_read_b64_tr_b16 v[{r}:{r+1}], {ad[t]} offset:{WQ + 4096*c + 512*e}')
        if t >= 1:
            if t >= 2: sel(t - 2)
            LG(8)
            for c in range(4):
                r = 64 + 16 * (t - 1) + 4 * c
                A(f'v_mfma_f32_16x16x32_bf16 v[{32+4*(t-1)}:{35+4*(t-1)}], v[{r}:{r+3}], v[{16+4*c}:{19+4*c}], ' + ('0' if c == 0 else f'v[{32+4*(t-1)}:{35+4*(t-1)}]'))
    for c in range(4):
        LG(6 - 2 * c)
        r = 64 + 48 + 4 * c
        A(f'v_mfma_f32_16x16x32_bf16 v[44:47], v[{r}:{r+3}], v[{16+4*c}:{19+4*c}], ' + ('0' if c == 0 else 'v[44:47]'))
    sel(2); sel(3)
    for j in range(4): A(f'v_bfi_b32 v{68+j}, s44, v{60+j}, v{(48,49,52,53)[j]}')
    A('global_store_dwordx4 v13, v[68:71], s[28:29]' + ('' if lq else ' sc1'))
    def qfb(): A('global_store_dwordx4 v13, v[68:71], s[28:29] sc1')
    A('ds_write_b32 v54, v55 offset:12')
    A('global_load_dword v9, v7, s[4:5]\ns_load_dword s38, s[22:23], 0')
    if lq: A(f'v_add_u32 v13, {FB}, v13')
    if wop >= 7:
        A(f'''s_bfe_u32 s35, s2, 0x30003
        {ROLE}
        s_lshl_b32 s40, s39, 17
        s_lshl_b32 s41, s61, 7
        s_add_u32 s40, s40, s41
        {WR}
        s_lshl_b32 s41, s36, 15
        s_add_u32 s40, s40, s41
        v_lshrrev_b32 v64, 3, v0
        v_lshlrev_b32 v64, 10, v64
        v_and_b32 v65, 7, v0
        v_lshl_add_u32 v64, v65, 4, v64
        v_add_u32 v64, s40, v64
        v_add_u32 v65, 7168, v64
        v_add_u32 v66, 14336, v64
        v_add_u32 v67, 21504, v64
        s_lshl_b32 s41, s36, 12
        s_add_u32 m0, s41, {WO}''')
    def wo8():
        for w_ in range(4):
            for a_ in range(4): A(f'global_load_lds_dwordx4 v{64+a_}, s[12:13] offset:{1024*a_}{NT}')
            if w_ < 3:
                A(f's_xor_b32 m0, m0, {(w_ ^ (w_ + 1)) << 12}')
                for a_ in range(4): A(f'v_xor_b32 v{64+a_}, {(w_ ^ (w_ + 1)) << 15}, v{64+a_}')
    STAMP(7)
    def chkq():
        for e in range(8):
            r = 16 + 4 * e
            A(f's_waitcnt vmcnt({7-e})')
            if e == 0: STAMP(6)
            for j in range(4): A(f'v_xor_b32 v{r+j}, v{60+j}, v{r+j}')
            if e == 0: A(f'v_or_b32 v57, v{r}, v{r+1}')
            else: A(f'v_or3_b32 v57, v57, v{r}, v{r+1}')
            A(f'v_or3_b32 v57, v57, v{r+2}, v{r+3}')
            if e >= 2:
                for j in (0, 2): A(f'v_pk_add_f32 v[{16+4*(e&1)+j}:{17+4*(e&1)+j}], v[{16+4*(e&1)+j}:{17+4*(e&1)+j}], v[{r+j}:{r+j+1}]')
        A('v_and_b32 v57, s44, v57')
        A('v_cmp_ne_u32 vcc, 0, v57')
    if opt.get('tq', 1): spin('L_spt', 20, 1)
    poll('L_pollq', [(16 + 4 * e, 'v14', 1024 * e - 4096) for e in range(8)], chkq, st=5, nowait=opt.get('qnw') or opt.get('tq', 1), post=lambda: A('ds_write_b32 v54, v55 offset:8\nv_mov_b32 v55, 2'), fb=qfb if lq else None)
    A('ds_write_b32 v54, v55 offset:8')
    if stamps: A('s_mov_b32 s90, s43')
    A('v_cvt_pk_bf16_f32 v16, v16, v17\nv_cvt_pk_bf16_f32 v17, v18, v19\nv_cvt_pk_bf16_f32 v20, v20, v21\nv_cvt_pk_bf16_f32 v21, v22, v23')
    A('ds_write_b64 v15, v[16:17]\nds_write_b64 v15, v[20:21] offset:640')
    STAMP(8)
    A('s_waitcnt lgkmcnt(0)')
    A('s_barrier                    ; B2')
    if lq: qfb()
    A(f'v_lshlrev_b32 v11, 3, v50\nv_add_u32 v11, {GY}, v11')
    for w in range(7): A(f'ds_read_b64 v[{16+2*w}:{17+2*w}], v11 offset:{32*w}')
    if wop == 8: wo8()
    A('s_barrier                    ; B3')
    if wop == 7: wo8()
    A('s_setprio 0')
    A(f's_lshl_b32 s37, s59, 11\ns_add_u32 s37, s37, {SR}')
    A('v_lshl_add_u32 v14, v0, 4, s37')
    A('s_waitcnt lgkmcnt(0)')
    A('s_lshl_b32 s38, s38, 16')
    def ep1():
        for w in range(1, 7): A(f'v_pk_add_f32 v[16:17], v[16:17], v[{16+2*w}:{17+2*w}]')
        A('v_cvt_pk_bf16_f32 v18, v16, v17')
        unpack(['v16', 'v17'], ['v18'])
        A('v_add_f32 v16, s38, v16\nv_add_f32 v17, s38, v17\nv_cvt_pk_bf16_f32 v18, v16, v17')
        unpack(['v16', 'v17'], ['v18'])
        A(f'v_mul_f32 v18, {f2h(-LOG2E)}, v16\nv_mul_f32 v19, {f2h(-LOG2E)}, v17')
    def ep2():
        A('v_exp_f32 v18, v18\nv_exp_f32 v19, v19\nv_add_f32 v18, 1.0, v18\nv_add_f32 v19, 1.0, v19\nv_rcp_f32 v18, v18\nv_rcp_f32 v19, v19')
        A('v_mul_f32 v16, v16, v18\nv_mul_f32 v17, v17, v19\nv_cvt_pk_bf16_f32 v18, v16, v17')
        unpack(['v30', 'v31'], ['v18'])
        unpack(['v8', 'v10'], ['v9'])
    ps = opt.get('ps', 0)
    if not ps: ep1(); ep2()
    A('s_barrier                    ; B4')
    if opt.get('onw') == 2: A('s_barrier')
    if wop >= 7: A('s_waitcnt vmcnt(0)\nds_write_b32 v54, v55 offset:16')
    A('s_barrier                    ; B5')
    STAMP(10)
    if opt.get('b6'): spin('L_sp6', 20, opt['b6'])
    if not ps:
        def chk2():
            A('s_waitcnt vmcnt(0)\nv_cmp_ne_u32 vcc, s33, v19\nv_cmp_ne_u32 s[54:55], s33, v23\ns_or_b64 vcc, vcc, s[54:55]')
        poll('L_polls', [(16, 'v14', 0), (20, 'v14', 1024)], chk2, fb=(lambda: None) if lo else None)
        A('v_pk_add_f32 v[16:17], v[16:17], v[20:21]')
    else:
        def sld(r): A(f'global_load_dwordx4 v[{r}:{r+3}], v14, s[28:29] sc1\nglobal_load_dwordx4 v[{r+4}:{r+7}], v14, s[28:29] offset:1024 sc1')
        sld(32); ep1(); sld(40); ep2(); sld(48)
        A(f's_movk_i32 s43, {SPIN}\nL_polls:')
        for r in (32, 40, 48):
            A(f's_waitcnt vmcnt(4)\nv_cmp_ne_u32 vcc, s33, v{r+3}\nv_cmp_ne_u32 s[54:55], s33, v{r+7}\nv_pk_add_f32 v[16:17], v[{r}:{r+1}], v[{r+4}:{r+5}]\ns_or_b64 vcc, vcc, s[54:55]')
            A('s_cbranch_vccz L_polls_done')
            sld(r)
        A('s_sub_u32 s43, s43, 1\ns_cbranch_scc0 L_polls\nL_polls_done:')
    STAMP(11)
    for m in ('row_ror:4', 'row_ror:8'):
        A(f'v_add_f32 v16, v16, v16 {m}\nv_add_f32 v17, v17, v17 {m}')
    xrow([('v16', 'v18'), ('v17', 'v19')], 'v_add_f32')
    A('v_cvt_pk_bf16_f32 v18, v16, v17')
    unpack(['v16', 'v17'], ['v18'])
    A('v_pk_mul_f32 v[16:17], v[16:17], v[30:31]\nv_cvt_pk_bf16_f32 v18, v16, v17')
    unpack(['v16', 'v17'], ['v18'])
    A('v_add_f32 v16, v16, v8\nv_add_f32 v17, v17, v10\nv_cvt_pk_bf16_f32 v18, v16, v17')
    A('s_mov_b64 exec, 15')
    A('global_store_dword v7, v18, s[24:25]')
    A('s_cmp_lg_u32 s2, 0\ns_cbranch_scc1 L_fin8')
    A('s_mov_b64 exec, 1\nv_mov_b32 v20, 0\nv_mov_b32 v21, s33')
    A('global_store_dword v20, v21, s[28:29]')
    A('L_fin8:')
    STAMP(12)
    DUMP(); DIAG('L_dg8')
    A('L_cend:')
    A('s_endpgm')
    A.raw(f'''.section .rodata,"a"
.p2align 6
.amdhsa_kernel {NAME}_kernel
  .amdhsa_next_free_vgpr 128
  .amdhsa_next_free_sgpr 96
  .amdhsa_accum_offset 128
  .amdhsa_group_segment_fixed_size 0
  .amdhsa_kernarg_size 104
  .amdhsa_user_sgpr_count 2
  .amdhsa_user_sgpr_kernarg_segment_ptr 1
  .amdhsa_system_sgpr_workgroup_id_x 1
.end_amdhsa_kernel''')
    return A.text()
if __name__ == '__main__':
    out = sys.argv[1]; stamps = 'stamps' in sys.argv[2:]
    opt = {}
    for k in sys.argv[2:]:
        if k.startswith('diag='): opt['diag'] = tuple(int(x) for x in k[5:].split(','))
        elif '=' in k: opt[k.split('=')[0]] = int(k.split('=')[1])
        else: opt[k] = True
    open(out, 'w').write(gen(stamps, opt))
```

```python
import sys, struct, math
from asmlib import Asm
NAME = 'recurrent_scan__sliding_block_cached__mixer_token_mlp__decode'
def f2h(x): return '0x%08x' % struct.unpack('<I', struct.pack('<f', x))[0]
LOG2E = 1.4426950408889634
def gen(stamps=False, opt=None):
    opt = opt or {}
    NT = {0: ' nt', 1: ' sc1 nt', 2: ' sc0 sc1 nt', 3: ' sc0 nt', 4: ' sc0 sc1', 5: ''}[opt.get('ld', 0)]
    A = Asm()
    small = opt.get('small')
    WQ, KS, VS, WO = (0, 32768, 0, 32768) if small else (0, 16384, 49152, 81920)
    XN = 65536 if small else 98304; QL = XN + 4352; SC = QL + 1280; OL = SC + 2048; HB = OL + 1280; FL = HB + 32; MX = FL + 32; GY = MX + 32
    LDS = GY + 256
    QR, OR_, SR, TS = 0x180000, 0x20000, 0x100000, 0x200000
    SPIN = 20000
    FB = 0x400000; NF = opt.get('NF', 24); lq = opt.get('lq', 1); lo = opt.get('lo', 1)
    D = opt.get('D', 40); V0 = opt.get('V0', 0); wop = opt.get('wo', 7)
    diag = opt.get('diag'); cur = {'w8': False}
    def STAMP(n):
        if stamps and (not opt.get('lite') or n in (0, 12)): A('s_memrealtime s[%d:%d]' % (64 + 2 * n, 65 + 2 * n))
        if diag and diag[1] == n and ((diag[0] == 8) == cur['w8'] or n == 0): A('s_memrealtime s[92:93]')
    def DIAG(lbl):
        if diag and ((diag[0] == 8) == cur['w8']):
            A(f's_cmp_lg_u32 s30, {diag[0]}\ns_cbranch_scc1 {lbl}_x')
            if not opt.get('dall'): A(f's_cmp_lg_u32 s2, 0\ns_cbranch_scc1 {lbl}_x')
            A(f'{lbl}:\ns_memrealtime s[94:95]\ns_waitcnt lgkmcnt(0)\ns_sub_u32 s94, s94, s92\ns_cmp_lt_u32 s94, 4000\ns_cbranch_scc1 {lbl}\n{lbl}_x:')
    def LG(n): A(f's_waitcnt lgkmcnt({0 if ((stamps and not opt.get("lite")) or diag) else n})')
    def DUMP():
        if stamps:
            A('s_waitcnt lgkmcnt(0)\ns_getreg_b32 s62, hwreg(HW_REG_XCC_ID)\ns_mov_b64 exec, -1\nv_mov_b32 v100, 0')
            for n in range(14): A('v_writelane_b32 v100, s%d, %d' % (64 + 2 * n, n))
            A('v_writelane_b32 v100, s62, 14')
            A('s_lshl_b32 s60, s2, 4\ns_add_u32 s60, s60, s30\ns_lshl_b32 s60, s60, 6\ns_add_u32 s60, s60, %d' % TS)
            A('v_lshl_add_u32 v101, v0, 2, s60\ns_mov_b64 exec, 0xffff\nglobal_store_dword v101, v100, s[28:29]')
    def xrow(pairs, op):
        for sw in ('v_permlane16_swap_b32', 'v_permlane32_swap_b32'):
            for v, t in pairs: A(f'v_mov_b32 {t}, {v}')
            for v, t in pairs: A(f'{sw} {v}, {t}')
            for v, t in pairs: A(f'{op} {v}, {v}, {t}')
    def rnd(d, s): A(f'v_cvt_pk_bf16_f32 {d}, {s}, {s}\nv_lshlrev_b32 {d}, 16, {d}')
    def unpack(dst, src):
        for j, s_ in enumerate(src): A(f'v_lshlrev_b32 {dst[2*j]}, 16, {s_}\nv_and_b32 {dst[2*j+1]}, 0xffff0000, {s_}')
    def poll(lbl, loads, check, st=None, nowait=False, post=None, fb=None, fl='sc1'):
        A(f's_movk_i32 s43, {SPIN}')
        if not nowait: A('s_waitcnt vmcnt(0)')
        if st is not None: STAMP(st)
        A(f'{lbl}:')
        for r, addr, off in loads: A(f'global_load_dwordx4 v[{r}:{r+3}], {addr}, s[28:29] offset:{off} {fl}')
        if post: post()
        A(f's_sub_u32 s43, s43, 1\ns_cbranch_scc1 {lbl}_done')
        check()
        if fb is None: A(f's_cbranch_vccnz {lbl}')
        else:
            A(f's_cbranch_vccz {lbl}_done\ns_cmp_lg_u32 s43, {SPIN - NF}\ns_cbranch_scc1 {lbl}\nv_add_u32 {loads[0][1]}, {FB}, {loads[0][1]}')
            fb()
            A(f's_branch {lbl}')
        A(f'{lbl}_done:\ns_waitcnt vmcnt(0)')
    def spin(lbl, off, cnt, bound=SPIN):
        A(f'v_mov_b32 v46, {FL}\ns_movk_i32 s43, {bound}\n{lbl}:\nds_read_b32 v47, v46 offset:{off}\ns_sub_u32 s43, s43, 1\ns_cbranch_scc1 {lbl}_d\ns_waitcnt lgkmcnt(0)')
        A(f'v_cmp_gt_u32 vcc, {cnt}, v47\ns_cbranch_vccnz {lbl}\n{lbl}_d:')
    def signal(off): A(f's_mov_b64 exec, 1\nds_add_u32 v51, v52 offset:{off}\ns_mov_b64 exec, -1')
    A.raw(f'; @launch grid=(256,1,1) block=(576,1,1) lds={opt.get("lds", LDS)}')
    A.raw('.amdgcn_target "amdgcn-amd-amdhsa--gfx950"\n.text')
    A.raw(f'.globl {NAME}_kernel\n.p2align 8\n.type {NAME}_kernel,@function\n{NAME}_kernel:')
    KQ = {0: 's_mov_b32 s58, s31' if lq else 's_xor_b32 s58, s31, 1', 1: 's_lshl1_add_u32 s58, s34, 1\ns_xor_b32 s58, s58, s31', 2: 's_lshl1_add_u32 s58, s34, 1\ns_and_b32 s58, s58, 5\ns_xor_b32 s58, s58, s31'}[opt.get('kq', 0)]
    PERM = {0: '', 1: 's_lshr_b32 s3, s2, 3\ns_and_b32 s3, s3, 7\ns_xor_b32 s2, s2, s3', 2: 's_cmp_lt_u32 s2, 2\ns_cselect_b32 s3, 1, 0\ns_xor_b32 s2, s2, s3', 3: 's_bfe_u32 s3, s2, 0x10007\ns_xor_b32 s2, s2, s3', 4: 's_bfe_u32 s3, s2, 0x20004\ns_cmp_eq_u32 s3, 3\ns_cselect_b32 s3, 6, 0\ns_xor_b32 s2, s2, s3'}[opt.get('perm', 0)]
    WR = {0: 's_mov_b32 s36, 0', 1: 's_mov_b32 s36, s34', 2: 's_lshr_b32 s36, s35, 1', 3: 's_and_b32 s36, s31, 3'}[opt.get('wr', 1)]
    PF2 = '' if opt.get('nopf2') else 'v_or_b32 v4, 64, v0\nv_lshlrev_b32 v4, 7, v4\nv_min_u32 v4, L_cend-L_pc, v4\nglobal_load_dword v58, v4, s[56:57]'
    ROT = {0: 's_lshl_b32 s37, s37, 15', 1: 's_lshl3_add_u32 s37, s37, s35\ns_lshl_b32 s37, s37, 12', 2: 's_lshl3_add_u32 s37, s37, s31\ns_lshl_b32 s37, s37, 12', 3: 's_lshr_b32 s36, s2, 5\ns_lshl3_add_u32 s37, s37, s36\ns_lshl_b32 s37, s37, 12', 4: 's_bfe_u32 s36, s2, 0x30004\ns_lshl3_add_u32 s37, s37, s36\ns_lshl_b32 s37, s37, 12', 5: 's_xor_b32 s36, s35, s31\ns_lshl3_add_u32 s37, s37, s36\ns_lshl_b32 s37, s37, 12', 6: 's_lshl1_add_u32 s36, s34, s35\ns_and_b32 s36, s36, 7\ns_lshl3_add_u32 s37, s37, s36\ns_lshl_b32 s37, s37, 12', 7: 's_and_b32 s36, s31, 1\ns_lshl1_add_u32 s36, s34, s36\ns_lshl3_add_u32 s37, s37, s36\ns_lshl_b32 s37, s37, 12', 8: 's_and_b32 s36, s35, 4\ns_or_b32 s36, s34, s36\ns_lshl3_add_u32 s37, s37, s36\ns_lshl_b32 s37, s37, 12', 9: 's_and_b32 s36, s35, 1\ns_lshl1_add_u32 s36, s34, s36\ns_lshl3_add_u32 s37, s37, s36\ns_lshl_b32 s37, s37, 12', 10: 's_lshr_b32 s36, s2, 5\ns_xor_b32 s36, s36, s31\ns_lshl3_add_u32 s37, s37, s36\ns_lshl_b32 s37, s37, 12', 11: 's_lshl_b32 s36, s34, 1\ns_lshl3_add_u32 s37, s37, s36\ns_lshl_b32 s37, s37, 12'}[opt.get('rot', 3)]
    st_ = opt.get('str', 0); VSH = 15 if st_ else 12
    XK = 's_xor_b32 s40, s37, s38'
    if st_:
        ROT = {1: 's_lshl_b32 s36, s34, 1', 2: 's_mov_b32 s36, 0', 3: 's_and_b32 s36, s31, 1\ns_lshl1_add_u32 s36, s34, s36', 4: 's_lshr_b32 s36, s2, 5'}[st_] + '\ns_lshl3_add_u32 s37, s37, s36\ns_lshl3_add_u32 s37, s37, s35\ns_lshl_b32 s37, s37, 12'
        XK = 's_lshl_b32 s40, s30, 15\ns_xor_b32 s40, s37, s40'
    def kload():
        for a_ in range(4): A(f'global_load_lds_dwordx4 v{7+a_}, s[6:7] offset:{1024*a_}{NT}')
    def params():
        A('global_load_dwordx2 v[16:17], v6, s[16:17]\nglobal_load_dwordx2 v[18:19], v6, s[18:19]\ns_waitcnt lgkmcnt(0)\nglobal_load_dwordx2 v[20:21], v6, s[20:21]')
    A(f'''
    s_load_dwordx16 s[4:19], s[0:1], 0
    {PERM}
    v_lshrrev_b32 v1, 6, v0
    s_lshr_b32 s34, s2, 6
    v_readfirstlane_b32 s30, v1
    s_cmp_ge_u32 s34, 4
    s_cbranch_scc1 L_end
    s_cmp_eq_u32 s30, 8
    s_cbranch_scc0 L_main
    s_getpc_b64 s[56:57]
    L_pc:
    v_and_b32 v0, 63, v0
    v_lshlrev_b32 v4, 7, v0
    v_min_u32 v4, L_cend-L_pc, v4
    global_load_dword v59, v4, s[56:57]     ; code prefetch into L2
    s_branch L_stub
    L_main:
    ''')
    STAMP(0)
    A(f'''
    {'' if opt.get('ka') else 's_load_dwordx8 s[20:27], s[0:1], 64'}
    v_lshlrev_b32 v4, 4, v0        ; tid*16
    s_and_b32 s31, s2, 7           ; x
    s_bfe_u32 s35, s2, 0x30003
    {KQ}
    s_cmp_ge_u32 s30, 4
    s_cbranch_scc1 L_wq
    s_waitcnt lgkmcnt(0)
    global_load_dwordx4 v[12:15], v4, s[4:5]
    s_branch L_kk
    L_wq:
    v_lshrrev_b32 v6, 3, v0
    s_lshl3_add_u32 s36, s58, s35
    v_lshl_add_u32 v7, s34, 7, v6
    v_and_b32 v6, 2, v6
    v_lshl_or_b32 v6, v1, 2, v6
    v_xor_b32 v6, v6, v0
    v_and_b32 v6, 7, v6
    v_lshl_add_u32 v6, s36, 3, v6
    v_lshl_add_u32 v7, v7, 9, v6
    v_lshlrev_b32 v7, 4, v7
    s_lshl_b32 m0, s30, 10
    s_waitcnt lgkmcnt(0)
    global_load_lds_dwordx4 v7, s[10:11]{NT}
    s_addk_i32 m0, 4096
    v_add_u32 v7, 0x40000, v7
    global_load_lds_dwordx4 v7, s[10:11]{NT}
    s_addk_i32 m0, 4096
    v_add_u32 v7, 0x40000, v7
    global_load_lds_dwordx4 v7, s[10:11]{NT}
    s_addk_i32 m0, -12288
    v_add_u32 v7, 0xfff40000, v7
    global_load_lds_dwordx4 v7, s[10:11]{NT}
    L_kk:
    ''')
    STAMP(1)
    A(f'''
    {'s_load_dwordx8 s[20:27], s[0:1], 64' if opt.get('ka') else ''}
    s_lshl3_add_u32 s37, s34, s31
    s_lshl2_add_u32 s37, s37, 3
    {'' if st_ else 's_lshl3_add_u32 s37, s37, s35'}
    s_lshl_b32 s38, s30, 12        ; w*4096
    v_and_b32 v0, 63, v0
    v_lshrrev_b32 v2, 4, v0        ; g
    v_xor_b32 v7, v2, v0
    {ROT}
    {XK}
    v_lshl_add_u32 v7, v7, 4, s40
    s_add_u32 m0, s38, {KS}
    v_xor_b32 v8, 64, v7
    v_xor_b32 v9, 128, v7
    v_xor_b32 v10, 64, v9
    v_lshrrev_b32 v6, 1, v4        ; w*512 + l*8
    s_cmp_eq_u32 s30, 7
    s_barrier
    s_cbranch_scc1 {'L_go' if opt.get('kh', 7) == 8 else 'L_k7'}
    global_load_dwordx2 v[16:17], v6, s[16:17]
    global_load_dwordx2 v[18:19], v6, s[18:19]
    {'s_waitcnt lgkmcnt(0)' if opt.get('ka') else ''}
    global_load_dwordx2 v[20:21], v6, s[20:21]
    s_cmp_lt_u32 s30, {opt.get('kh', 7)}
    s_cbranch_scc1 L_go
    L_k7:
    ''')
    kload()
    A(f'''
    s_branch L_go
    L_stub:
    v_lshlrev_b32 v46, 2, v0
    v_bfe_i32 v48, v0, 3, 1
    v_add_u32 v46, {FL}, v46
    v_lshlrev_b32 v48, 23, v48
    ds_write_b32 v46, v48
    s_waitcnt lgkmcnt(0)
    s_barrier                    ; B0
    s_load_dwordx2 s[28:29], s[0:1], 96
    s_load_dwordx8 s[20:27], s[0:1], 64
    s_waitcnt lgkmcnt(0)
    s_load_dword s33, s[28:29], 0
    s_branch L_w8
    L_go:
    ''')
    STAMP(2)
    A(f'''
    s_load_dwordx2 s[28:29], s[0:1], 96
    v_and_b32 v3, 15, v0           ; n
    v_and_b32 v4, 0x3ff, v4        ; l*16
    v_and_b32 v50, 3, v0
    v_mov_b32 v51, {FL}
    v_mov_b32 v52, 1
    s_lshr_b32 s32, s2, 3
    s_lshl_b32 s59, s31, 5
    s_add_u32 s59, s59, s32
    s_cmp_ge_u32 s30, 4
    s_cbranch_scc1 L_noln
    s_waitcnt vmcnt(3)
    ''')
    STAMP(3)
    a = ['v%d' % (24 + j) for j in range(8)]
    def ln_stats():
        A('v_readfirstlane_b32 s44, v24')
        for j in range(0, 8, 2): A(f'v_pk_add_f32 v[{32+j}:{33+j}], v[{24+j}:{25+j}], s[44:45] op_sel_hi:[1,0] neg_lo:[0,1] neg_hi:[0,1]')
        A('v_pk_add_f32 v[40:41], v[32:33], v[34:35]\nv_pk_mul_f32 v[42:43], v[32:33], v[32:33]\nv_pk_add_f32 v[44:45], v[36:37], v[38:39]\nv_pk_fma_f32 v[42:43], v[34:35], v[34:35], v[42:43]')
        A('v_pk_add_f32 v[40:41], v[40:41], v[44:45]\nv_pk_fma_f32 v[42:43], v[36:37], v[36:37], v[42:43]\nv_add_f32 v40, v40, v41\nv_pk_fma_f32 v[42:43], v[38:39], v[38:39], v[42:43]\nv_add_f32 v41, v42, v43')
        for m in ('quad_perm:[1,0,3,2]', 'quad_perm:[2,3,0,1]', 'row_ror:4', 'row_ror:8'):
            A(f'v_add_f32 v40, v40, v40 {m}\nv_add_f32 v41, v41, v41 {m}')
        xrow([('v40', 'v42'), ('v41', 'v43')], 'v_add_f32')
        A(f'v_mul_f32 v40, {f2h(1/512)}, v40\nv_mul_f32 v41, {f2h(1/512)}, v41')
        A('v_fma_f32 v41, -v40, v40, v41\nv_add_f32 v40, s44, v40\nv_max_f32 v41, 0, v41')
        A('v_cvt_pk_bf16_f32 v42, v40, v41\nv_and_b32 v41, 0xffff0000, v42\nv_lshlrev_b32 v40, 16, v42')
        A(f'v_add_f32 v41, {f2h(1e-5)}, v41')
        rnd('v41', 'v41')
        A('v_sqrt_f32 v41, v41')
    unpack(a, ['v12', 'v13', 'v14', 'v15'])
    ln_stats()
    for j in range(0, 8, 2): A(f'v_pk_add_f32 v[{24+j}:{25+j}], v[{24+j}:{25+j}], v[40:41] op_sel_hi:[1,0] neg_lo:[0,1] neg_hi:[0,1]')
    rnd('v41', 'v41')
    A('v_rcp_f32 v41, v41')
    for j in range(4): A(f'v_cvt_pk_bf16_f32 v{12+j}, {a[2*j]}, {a[2*j+1]}')
    unpack(a, ['v12', 'v13', 'v14', 'v15'])
    for j in range(0, 8, 2): A(f'v_pk_mul_f32 v[{24+j}:{25+j}], v[{24+j}:{25+j}], v[40:41] op_sel:[0,1] op_sel_hi:[1,1]')
    A(f's_mul_i32 s42, s30, 1088\ns_add_u32 s42, s42, {XN}')
    A('v_add_u32 v45, s42, v4')
    for j in range(4): A(f'v_cvt_pk_bf16_f32 v{12+j}, {a[2*j]}, {a[2*j+1]}')
    A('ds_write_b128 v45, v[12:15]')
    kl = opt.get('kl', 2)
    signal(0)
    if kl > 0:
        if kl < 4: A(f's_cmp_ge_u32 s30, {kl}\ns_cbranch_scc1 L_k3')
        kload()
        A('L_k3:')
    A('s_lshl_b32 s43, s59, 2\ns_add_u32 s43, s43, s42\nv_mov_b32 v46, s43')
    A('ds_read_b32 v47, v46')
    unpack(a, ['v12', 'v13', 'v14', 'v15'])
    ln_stats()
    rnd('v41', 'v41')
    A('v_rcp_f32 v41, v41')
    A('s_waitcnt lgkmcnt(0)')
    unpack(['v48', 'v49'], ['v47'])
    A('v_sub_f32 v48, v48, v40\nv_sub_f32 v49, v49, v40\nv_cvt_pk_bf16_f32 v47, v48, v49')
    unpack(['v48', 'v49'], ['v47'])
    A('v_mul_f32 v48, v48, v41\nv_mul_f32 v49, v49, v41\nv_cvt_pk_bf16_f32 v47, v48, v49')
    unpack(['v48', 'v49'], ['v47'])
    A(f's_lshl_b32 s43, s30, 3\ns_add_u32 s43, s43, {HB}\nv_mov_b32 v46, s43')
    A('s_mov_b64 exec, 1\nds_write_b64 v46, v[48:49]\nds_add_u32 v51, v52 offset:4\ns_mov_b64 exec, -1')
    if kl < 4:
        if kl > 0: A(f's_cmp_lt_u32 s30, {kl}\ns_cbranch_scc1 L_gelu')
        spin('L_spk', *((0, 8) if opt.get('kg') else (12, 1)))
        kload()
    A('s_branch L_gelu')
    A('L_noln:')
    A('s_cmp_eq_u32 s30, 7\ns_cbranch_scc1 L_loader')
    kh = opt.get('kh', 7)
    if kh < 7:
        A(f's_cmp_lt_u32 s30, {kh}\ns_cbranch_scc1 L_kh\ns_waitcnt vmcnt(7)')
        signal(0)
        A('s_branch L_gelu\nL_kh:')
    A('s_waitcnt vmcnt(3)')
    signal(0)
    STAMP(2)
    if opt.get('kw', 2):
        A(f's_cmp_ge_u32 s30, {4 + opt.get("kw", 2)}\ns_cbranch_scc1 L_spw4_d')
        spin('L_spw4', 12, 1)
    kload()
    A('L_gelu:')
    A('s_waitcnt lgkmcnt(0)\ns_load_dword s33, s[28:29], 0')
    STAMP(4)
    spin('L_spg', 4, 4)
    A(f'v_mov_b32 v46, {HB}')
    A('ds_read_b128 v[24:27], v46\nds_read_b128 v[28:31], v46 offset:16')
    A('s_waitcnt vmcnt(4)')
    unpack(['v32', 'v33', 'v34', 'v35'], ['v16', 'v17'])
    unpack(['v36', 'v37', 'v38', 'v39'], ['v18', 'v19'])
    unpack(['v40', 'v41', 'v42', 'v43'], ['v20', 'v21'])
    c0 = math.sqrt(2 / math.pi)
    A(f'v_mov_b32 v44, {f2h(-2 * c0 * 0.044715 * LOG2E)}\nv_mov_b32 v45, {f2h(-2 * c0 * LOG2E)}')
    A('s_waitcnt lgkmcnt(0)')
    for o in range(8):
        hp = 24 + (o & ~1); sel = o & 1
        acc = 72 + 2 * o
        for j in (0, 2): A(f'v_pk_fma_f32 v[{56+j}:{57+j}], v[{32+j}:{33+j}], v[{hp}:{hp+1}], v[{36+j}:{37+j}] op_sel:[0,{sel},0] op_sel_hi:[1,{sel},1]')
        for j in (0, 2): A(f'v_pk_mul_f32 v[{52+j}:{53+j}], v[{56+j}:{57+j}], v[{56+j}:{57+j}]')
        for j in (0, 2): A(f'v_pk_fma_f32 v[{52+j}:{53+j}], v[{52+j}:{53+j}], v[44:45], v[44:45] op_sel:[0,0,1] op_sel_hi:[1,0,1]')
        for j in (0, 2): A(f'v_pk_mul_f32 v[{52+j}:{53+j}], v[{52+j}:{53+j}], v[{56+j}:{57+j}]')
        for j in range(4): A(f'v_exp_f32 v{52+j}, v{52+j}')
        for j in (0, 2): A(f'v_pk_mul_f32 v[{56+j}:{57+j}], v[{56+j}:{57+j}], v[{40+j}:{41+j}]')
        for j in (0, 2): A(f'v_pk_add_f32 v[{52+j}:{53+j}], v[{52+j}:{53+j}], 1.0 op_sel_hi:[1,0]')
        for j in range(4): A(f'v_rcp_f32 v{52+j}, v{52+j}')
        A(f'v_pk_mul_f32 v[{acc}:{acc+1}], v[56:57], v[52:53]')
        A(f'v_pk_fma_f32 v[{acc}:{acc+1}], v[58:59], v[54:55], v[{acc}:{acc+1}]')
    for o in range(8): A(f'v_add_f32 v{64+o}, v{72+2*o}, v{73+2*o}')
    for o in range(4): A(f'v_permlane32_swap_b32 v{64+o}, v{68+o}')
    for o in range(4): A(f'v_add_f32 v{64+o}, v{64+o}, v{68+o}')
    for o in range(2): A(f'v_permlane16_swap_b32 v{64+o}, v{66+o}')
    for o in range(2): A(f'v_add_f32 v{64+o}, v{64+o}, v{66+o}')
    for m in ('quad_perm:[1,0,3,2]', 'quad_perm:[2,3,0,1]', 'row_ror:4', 'row_ror:8'):
        for o in range(2): A(f'v_add_f32 v{64+o}, v{64+o}, v{64+o} {m}')
    A(f's_lshl_b32 s43, s30, 5\ns_add_u32 s43, s43, {GY}')
    A('v_lshl_add_u32 v46, v2, 3, s43')
    A('s_mov_b32 exec_lo, 0x00010001\ns_mov_b32 exec_hi, 0x00010001')
    A('ds_write_b64 v46, v[64:65]')
    A('s_mov_b64 exec, -1')
    STAMP(5)
    A('s_waitcnt vmcnt(0)')
    A('s_branch L_nogelu')
    A('L_loader:')
    if opt.get('tw', 1): A('s_load_dword s60, s[8:9], s37\ns_lshl_b32 s36, s58, 19\ns_load_dword s61, s[12:13], s36\ns_load_dword s62, s[24:25], 0')
    A('s_setprio 2\ns_waitcnt vmcnt(%d)' % (0 if kh == 8 else 4))
    signal(0)
    if kh == 8: kload()
    A('s_waitcnt lgkmcnt(0)\ns_load_dword s33, s[28:29], 0')
    A(f's_mov_b32 s36, {FB}\ns_load_dword s63, s[28:29], s36')
    if lo and not opt.get('nopre'):
        A(f's_lshl_b32 s43, s31, 16\ns_lshl_b32 s45, s32, 9\ns_add_u32 s43, s43, s45\ns_add_u32 s43, s43, {OR_}')
        A('v_lshlrev_b32 v11, 14, v50\nv_lshl_add_u32 v11, v2, 7, v11\nv_add_u32 v11, s43, v11')
        if opt.get('pres'):
            A(f's_lshl_b32 s43, s59, 11\ns_add_u32 s43, s43, {SR}\nv_lshl_add_u32 v12, v2, 2, v50\ns_mov_b32 exec_lo, 0xf0f0f0f0\ns_mov_b32 exec_hi, 0xf0f0f0f0\nv_lshl_add_u32 v11, v12, 7, s43\ns_mov_b64 exec, -1')
        A('global_load_dword v99, v11, s[28:29]')
        V0 += 1
    A(f'''
    v_lshlrev_b32 v8, 1, v2
    v_xor_b32 v8, v3, v8
    v_lshlrev_b32 v8, 4, v8
    v_lshl_add_u32 v8, v2, 8, v8
    v_add_u32 v8, s37, v8
    {'v_xor_b32 v8, 16384, v8' if small else ''}
    v_xor_b32 v9, 128, v8
    s_mov_b32 m0, {VS + (16384 if small else 0)}''')
    A(f's_waitcnt vmcnt({V0})')
    if opt.get('tq', 1): signal(20)
    STAMP(4)
    V1 = opt.get('V1', 0)
    vg = [0]
    vst = {'m': 0, 8: 0, 9: 0}
    def vgrp():
        if opt.get('vo'):
            for t in range(4 * vg[0], 4 * vg[0] + 4):
                if opt['vo'] == 1: j, a_ = t & 7, t >> 3
                else: j, a_ = (t >> 1) & 7, (t & 1) | ((t >> 4) << 1)
                r = 8 + (a_ & 1)
                if vst['m'] != j: A(f's_addk_i32 m0, {(j - vst["m"]) * 4096}')
                if vst[r] != j: A(f'v_xor_b32 v{r}, {(j ^ vst[r]) << 12}, v{r}')
                elif vst['m'] != j: A('s_nop 0')
                vst['m'] = j; vst[r] = j
                A(f'global_load_lds_dwordx4 v{r}, s[8:9] offset:{1024*a_}{NT}')
            vg[0] += 1
            return
        for a_ in range(4): A(f'global_load_lds_dwordx4 v{8+(a_&1)}, s[8:9] offset:{1024*a_}{NT}')
        j = vg[0]; vg[0] += 1
        if j < 7: A(f's_addk_i32 m0, {-28672 if (small and j == 3) else 4096}\nv_xor_b32 v8, {(j ^ (j + 1)) << VSH}, v8\nv_xor_b32 v9, {(j ^ (j + 1)) << VSH}, v9')
    for _ in range(V1): vgrp()
    A('L_nogelu:')
    A(f's_add_u32 s43, s38, {KS}')
    A('v_xor_b32 v46, v2, v3\nv_lshlrev_b32 v46, 4, v46\nv_lshl_add_u32 v46, v3, 8, v46\nv_add_u32 v46, s43, v46')
    A('v_xor_b32 v47, 64, v46\nv_xor_b32 v48, 128, v46\nv_xor_b32 v49, 192, v46')
    for i in range(4): A(f'ds_read_b128 v[{16+4*i}:{19+4*i}], v{46+i}')
    ROLE = 's_mov_b32 s61, s35\ns_lshl2_add_u32 s39, s31, s34' if lo else 's_xor_b32 s39, s31, 2\ns_xor_b32 s58, s31, 1\ns_xor_b32 s61, s31, 3\ns_cmp_eq_u32 s35, s31\ns_cselect_b32 s39, s39, s58\ns_cselect_b32 s61, s61, s35\ns_lshl2_add_u32 s39, s39, s34'
    A(ROLE)
    A(f'v_mul_u32_u24 v51, 320, v50\nv_lshl_add_u32 v51, v2, 4, v51\nv_add_u32 v66, {OL}, v51\nv_add_u32 v51, {QL}, v51')
    A(f's_lshl_b32 s43, s30, 8\ns_add_u32 s43, s43, {SC}')
    A('v_lshl_add_u32 v52, v2, 2, v50\nv_lshlrev_b32 v52, 4, v52       ; (g*4+h)*16')
    A('v_add_u32 v53, s43, v52')
    A(f'v_lshrrev_b32 v54, 2, v3\nv_lshl_add_u32 v54, v54, 9, v52\nv_add_u32 v54, {SC}, v54')
    A('v_lshrrev_b32 v60, 2, v0      ; 4g+r')
    A('v_and_b32 v61, 7, v60\nv_xor_b32 v61, s30, v61\nv_lshlrev_b32 v61, 5, v61')
    A('v_lshl_add_u32 v61, v60, 8, v61\nv_lshl_add_u32 v61, v50, 3, v61')
    A(f'v_add_u32 v61, {VS}, v61')
    A(f's_lshl_b32 s43, s31, 16\ns_lshl_b32 s45, s32, 9\ns_add_u32 s43, s43, s45\ns_lshl_b32 s45, s30, 6\ns_add_u32 s43, s43, s45\ns_add_u32 s43, s43, {OR_}')
    A('v_lshlrev_b32 v62, 14, v50\nv_lshl_add_u32 v62, v2, 4, v62\nv_add_u32 v62, s43, v62')
    A(f's_lshl_b32 s43, s39, 14\ns_add_u32 s43, s43, s38\ns_add_u32 s43, s43, {OR_}')
    A('v_add_u32 v63, s43, v4')
    A(f's_mul_i32 s43, s30, 320\ns_add_u32 s43, s43, {OL}\nv_and_b32 v64, 31, v0\nv_lshl_add_u32 v64, v64, 3, s43\nv_lshrrev_b32 v33, 5, v0\nv_lshl_add_u32 v64, v33, 2, v64')
    A(f's_lshl_b32 s43, s30, 5\ns_add_u32 s43, s43, {WO - 128}')
    A('v_lshl_add_u32 v65, v2, 2, v60\nv_lshlrev_b32 v65, 7, v65\nv_lshl_add_u32 v65, v50, 3, v65\nv_add_u32 v65, s43, v65')
    A(f's_lshl_b32 s43, s61, 16\ns_lshl_b32 s45, s30, 14\ns_add_u32 s43, s43, s45\ns_lshl_b32 s45, s39, 6\ns_add_u32 s43, s43, s45\ns_add_u32 s43, s43, {SR - 4*16384}')
    A('v_bfe_u32 v67, v0, 2, 1\nv_lshl_add_u32 v67, v2, 1, v67\nv_lshlrev_b32 v67, 11, v67\nv_lshl_add_u32 v67, v50, 4, v67\nv_add_u32 v67, s43, v67')
    if wop < 7:
        A(f'''s_lshl_b32 s40, s39, 17
    s_lshl_b32 s41, s61, 7
    s_add_u32 s40, s40, s41
    s_and_b32 s41, s30, 3
    s_lshl_b32 s41, s41, 15
    s_add_u32 s40, s40, s41
    v_lshrrev_b32 v10, 3, v0
    v_lshlrev_b32 v10, 10, v10
    v_and_b32 v11, 7, v0
    v_lshl_add_u32 v10, v11, 4, v10
    v_add_u32 v10, s40, v10
    v_add_u32 v11, 7168, v10
    v_add_u32 v12, 14336, v10
    v_add_u32 v13, 21504, v10
    s_lshr_b32 s41, s41, 3
    ''')
    A(f'''
    v_lshlrev_b32 v14, 2, v50
    v_add_u32 v14, {MX}, v14''')
    def woload(lbl):
        A(f's_cmp_lt_u32 s30, 4\ns_cbranch_scc1 {lbl}')
        for a_ in range(4): A(f'global_load_lds_dwordx4 v{10+a_}, s[12:13] offset:{1024*a_}{NT}')
        A(f'{lbl}:')
    A('s_mov_b32 s46, 0x000f000f\ns_mov_b32 s47, 0x000f000f\ns_mov_b32 s48, 0x00ff00ff\ns_mov_b32 s49, 0x00ff00ff')
    A('s_waitcnt lgkmcnt(0)')
    A('s_mul_i32 s33, s33, 1664525\ns_add_u32 s33, s33, 1013904223')
    A(f's_mov_b32 s44, {f2h(128 ** -0.5)}\ns_mov_b32 s45, {f2h(LOG2E)}')
    A('v_mov_b32 v71, s33')
    A('s_cmp_lg_u32 s30, 7\ns_cbranch_scc1 L_b2')
    VA = opt.get('VA', 5)
    spin('L_spv', 8, 1)
    STAMP(3)
    for _ in range(VA): vgrp()
    if V1 + VA < 8:
        spin('L_spv2', 8, 2)
        for _ in range(8 - V1 - VA): vgrp()
    A('s_setprio 0')
    STAMP(5)
    A('L_b2:')
    if wop < 7: A(f's_add_u32 m0, s41, {WO}')
    STAMP(6)
    A('s_barrier                    ; B2')
    STAMP(7)
    for i in range(4): A(f'ds_read_b128 v[{32+4*i}:{35+4*i}], v51 offset:{64*i}')
    if wop == 2: woload('L_wo2')
    for i in range(4):
        LG(3 - i)
        A(f'v_mfma_f32_16x16x32_bf16 v[56:59], v[{16+4*i}:{19+4*i}], v[{32+4*i}:{35+4*i}], ' + ('0' if i == 0 else 'v[56:59]'))
    A('s_mov_b64 exec, s[46:47]')
    A('v_cvt_pk_bf16_f32 v68, v56, v57\nv_cvt_pk_bf16_f32 v69, v58, v59')
    unpack(['v56', 'v57', 'v58', 'v59'], ['v68', 'v69'])
    for j in (0, 2): A(f'v_pk_mul_f32 v[{56+j}:{57+j}], v[{56+j}:{57+j}], s[44:45] op_sel_hi:[1,0]')
    A('v_cvt_pk_bf16_f32 v68, v56, v57\nv_cvt_pk_bf16_f32 v69, v58, v59')
    unpack(['v56', 'v57', 'v58', 'v59'], ['v68', 'v69'])
    A('ds_write_b128 v53, v[56:59]')
    A('v_max3_f32 v24, v56, v57, v58\nv_max_f32 v24, v24, v59')
    A('ds_max_f32 v14, v24')
    A('s_mov_b64 exec, -1')
    A('s_waitcnt lgkmcnt(0)')
    A('s_barrier                    ; B3')
    A('ds_read_b32 v24, v14\nds_read_b128 v[16:19], v54\nds_read_b128 v[20:23], v54 offset:256')
    if wop == 6: woload('L_wo6')
    LG(2)
    A('v_mul_f32 v24, s45, v24')
    LG(1)
    for j in range(0, 8, 2):
        if j == 4: A('s_waitcnt lgkmcnt(0)')
        A(f'v_pk_fma_f32 v[{16+j}:{17+j}], v[{16+j}:{17+j}], s[44:45], v[24:25] op_sel:[0,1,0] op_sel_hi:[1,1,0] neg_lo:[0,0,1] neg_hi:[0,0,1]')
    for j in range(8): A(f'v_exp_f32 v{16+j}, v{16+j}')
    for j in range(4): A(f'v_cvt_pk_bf16_f32 v{32+j}, v{16+2*j}, v{17+2*j}')
    sp = opt.get('sp', 2)
    def rot():
        for k in range(1, 4):
            for j in range(4): A(f'v_mov_b32 v{32+4*k+j}, v{32+j} row_ror:{16-4*k}')
    tree = ['v_pk_add_f32 v[26:27], v[16:17], v[18:19]\nv_pk_add_f32 v[28:29], v[20:21], v[22:23]',
            'v_pk_add_f32 v[26:27], v[26:27], v[28:29]\nv_add_f32 v26, v26, v27',
            'v_add_f32 v26, v26, v26 row_ror:4\nv_add_f32 v26, v26, v26 row_ror:8',
            'v_mov_b32 v25, v26\nv_permlane16_swap_b32 v26, v25\nv_add_f32 v26, v26, v25',
            'v_mov_b32 v25, v26\nv_permlane32_swap_b32 v26, v25\nv_add_f32 v26, v26, v25\nv_rcp_f32 v27, v26\nv_log_f32 v26, v26']
    if sp >= 1:
        for t_ in tree: A(t_)
    if sp >= 2: rot()
    if wop == 3: woload('L_wo3')
    STAMP(8)
    A('s_waitcnt vmcnt(%d)' % (4 if wop in (2, 3, 6) else 0))
    STAMP(9)
    A('s_barrier                    ; B4')
    for e in range(8): A(f'ds_read_b64_tr_b16 v[{72+2*e}:{73+2*e}], v61 offset:{4096*e}')
    if wop == 4: woload('L_wo4')
    if sp < 2: rot()
    for k in range(4):
        if sp == 0: A(tree[k])
        LG(6 - 2 * k)
        A(f'v_mfma_f32_16x16x32_bf16 v[56:59], v[{72+4*k}:{75+4*k}], v[{32+4*k}:{35+4*k}], ' + ('0' if k == 0 else 'v[56:59]'))
    if sp == 0: A(tree[4])
    A('s_mov_b64 exec, s[46:47]')
    for j in (0, 2): A(f'v_pk_mul_f32 v[{56+j}:{57+j}], v[{56+j}:{57+j}], v[26:27] op_sel:[0,1] op_sel_hi:[1,1]')
    A('v_add_f32 v70, v24, v26')
    A('v_cvt_pk_bf16_f32 v68, v56, v57\nv_cvt_pk_bf16_f32 v69, v58, v59')
    A('global_store_dwordx4 v62, v[68:71], s[28:29]' + ('' if lo else ' sc1'))
    A('s_mov_b64 exec, -1')
    def ofb(): A(f's_mov_b64 exec, s[46:47]\nglobal_store_dwordx4 v62, v[68:71], s[28:29] sc1\ns_mov_b64 exec, -1')
    if lo: A(f'v_add_u32 v62, {FB}, v62\nv_mov_b32 v51, {FL}\nv_mov_b32 v52, 1')
    STAMP(10)
    if opt.get('onw') == 2: A('s_barrier')
    A('s_cmp_ge_u32 s30, 4\ns_cbranch_scc1 L_oproj')
    def chk4():
        A('s_waitcnt vmcnt(0)')
        A('v_xor_b32 v19, s33, v19\nv_xor_b32 v23, s33, v23\nv_xor_b32 v27, s33, v27\nv_xor_b32 v31, s33, v31')
        A('v_or3_b32 v19, v19, v23, v27\nv_or_b32 v19, v19, v31\nv_cmp_ne_u32 vcc, 0, v19')
    poll('L_pollo', [(16 + 4 * e, 'v63', 1024 * e) for e in range(4)], chk4, fb=ofb if lo else None, nowait=opt.get('onw'))
    if lo: signal(24)
    if stamps: A('s_mov_b32 s90, s43')
    A(f's_movk_i32 s43, 200\nv_mov_b32 v54, {FL}')
    STAMP(11)
    A('v_max3_f32 v32, v18, v22, v26\nv_max_f32 v32, v32, v30\nv_mov_b32 v33, v32\nv_permlane32_swap_b32 v32, v33\nv_max_f32 v32, v32, v33')
    for e in range(4): A(f'v_sub_f32 v{18+4*e}, v{18+4*e}, v32')
    for e in range(4): A(f'v_exp_f32 v{18+4*e}, v{18+4*e}')
    for e in range(4): unpack([f'v{36+4*e+j}' for j in range(4)], [f'v{16+4*e}', f'v{17+4*e}'])
    A('v_add_f32 v32, v18, v22\nv_add_f32 v33, v26, v30')
    for j in (0, 2): A(f'v_pk_mul_f32 v[{36+j}:{37+j}], v[{36+j}:{37+j}], v[18:19] op_sel_hi:[1,0]')
    A('v_add_f32 v32, v32, v33')
    for e in range(1, 4):
        for j in (0, 2): A(f'v_pk_fma_f32 v[{36+j}:{37+j}], v[{36+4*e+j}:{37+4*e+j}], v[{18+4*e}:{19+4*e}], v[{36+j}:{37+j}] op_sel_hi:[1,0,1]')
    A('v_mov_b32 v33, v32\nv_permlane32_swap_b32 v32, v33\nv_add_f32 v32, v32, v33\nv_rcp_f32 v32, v32')
    A('v_permlane32_swap_b32 v36, v38\nv_permlane32_swap_b32 v37, v39')
    A('v_pk_add_f32 v[36:37], v[36:37], v[38:39]\nv_pk_mul_f32 v[36:37], v[36:37], v[32:33] op_sel_hi:[1,0]')
    A('v_cvt_pk_bf16_f32 v36, v36, v37')
    A('ds_write_b32 v64, v36')
    if lo:
        A('L_spc:\nds_read_b32 v53, v54 offset:24\ns_waitcnt lgkmcnt(0)\nv_cmp_gt_u32 vcc, 4, v53\ns_cbranch_vccz L_spc_d\ns_sub_u32 s43, s43, 1\ns_cbranch_scc0 L_spc')
        ofb()
        A('L_spc_d:')
    else: A('s_waitcnt lgkmcnt(0)')
    A('s_barrier                    ; B5')
    if lo and opt.get('bl', 1): spin('L_spb', 28, 4)
    if lo: ofb()
    A('s_branch L_fin')
    A('L_oproj:')
    if wop == 5:
        for a_ in range(4): A(f'global_load_lds_dwordx4 v{10+a_}, s[12:13] offset:{1024*a_}{NT}')
    if wop < 7:
        A(f'v_mov_b32 v51, {FL}\nv_mov_b32 v52, 1\ns_waitcnt vmcnt(0)')
        signal(16)
    spin('L_spw', 16, 4 if wop < 7 else 1)
    STAMP(3)
    for c in range(4):
        for e in range(2): A(f'ds_read_b64_tr_b16 v[{72+4*c+2*e}:{73+4*c+2*e}], v65 offset:{4096*c + 512*e}')
    A('v_mov_b32 v94, s33\nv_mov_b32 v95, s33')
    if lo:
        A('s_movk_i32 s43, 200\nL_spo:\nds_read_b32 v47, v46 offset:24\ns_waitcnt lgkmcnt(0)\nv_cmp_gt_u32 vcc, 4, v47\ns_cbranch_vccz L_spo_d\ns_sub_u32 s43, s43, 1\ns_cbranch_scc0 L_spo')
        ofb()
        A('L_spo_d:')
    A('s_cmp_eq_u32 s35, s31')
    if opt.get('pr', 1): A('s_setprio 2')
    A('s_waitcnt lgkmcnt(0)')
    A('s_barrier                    ; B5')
    STAMP(11)
    for c in range(4): A(f'ds_read_b128 v[{16+4*c}:{19+4*c}], v66 offset:{64*c}')
    for c in range(4):
        LG(3 - c)
        A(f'v_mfma_f32_16x16x32_bf16 v[56:59], v[{72+4*c}:{75+4*c}], v[{16+4*c}:{19+4*c}], ' + ('0' if c == 0 else 'v[56:59]'))
    A('s_mov_b64 exec, s[48:49]')
    A('v_cndmask_b32 v92, v58, v56, s[46:47]\nv_cndmask_b32 v93, v59, v57, s[46:47]')
    if lo:
        A('s_cbranch_scc1 L_sl\nglobal_store_dwordx4 v67, v[92:95], s[28:29] ' + {0: 'sc1', 1: 'sc1 nt', 2: 'sc0 sc1'}[opt.get('ss', 0)] + '\ns_branch L_sb\nL_sl:\nglobal_store_dwordx4 v67, v[92:95], s[28:29]\nL_sb:')
        A(f'v_add_u32 v67, {FB}, v67')
    if lo and opt.get('bl', 1): signal(28); A('s_mov_b64 exec, s[48:49]')
    A('global_store_dwordx4 v67, v[92:95], s[28:29] sc1')
    if lo: ofb()
    if opt.get('b6'):
        A('s_waitcnt vmcnt(0)')
        signal(20)
    A('L_fin:')
    STAMP(12)
    DUMP(); DIAG('L_dgm')
    A('L_end:')
    A('s_endpgm')
    cur['w8'] = True
    A(f'''
    L_w8:
    s_setprio 3
    s_and_b32 s31, s2, 7           ; x
    {KQ}
    v_lshrrev_b32 v2, 4, v0
    v_and_b32 v50, 3, v0
    s_lshr_b32 s32, s2, 3
    s_lshl_b32 s59, s31, 5
    s_add_u32 s59, s59, s32
    s_lshl_b32 s37, s59, 2
    v_lshl_add_u32 v7, v50, 10, s37
    ''')
    STAMP(0)
    STAMP(1)
    qc = opt.get('qc', 1)
    A('v_bfe_u32 v6, v0, 2, 2')
    A(f's_lshl_b32 s37, s34, 8\ns_add_u32 s37, s37, {XN}\nv_mul_u32_u24 v11, 1088, {"v6" if qc else "v50"}\nv_lshl_add_u32 v11, v2, 4, v11\nv_add_u32 v11, s37, v11')
    A('v_lshrrev_b32 v12, 2, v0\nv_lshl_add_u32 v12, v2, 2, v12\nv_lshlrev_b32 v12, 7, v12\nv_bfe_u32 v13, v0, 3, 2\nv_lshl_add_u32 v12, v13, 5, v12\nv_lshl_add_u32 v12, v50, 3, v12')
    A('v_xor_b32 v3, 32, v12\nv_xor_b32 v4, 64, v12\nv_xor_b32 v5, 96, v12')
    A(f's_lshl_b32 s36, s58, 15\ns_lshl_b32 s37, s32, 8\ns_add_u32 s37, s36, s37\ns_add_u32 s37, s37, {QR}')
    if qc: A('v_lshlrev_b32 v13, 13, v6\nv_lshl_add_u32 v14, v2, 2, v50\nv_lshl_add_u32 v13, v14, 4, v13\nv_add_u32 v13, s37, v13')
    else: A('v_lshlrev_b32 v13, 13, v50\nv_and_b32 v14, 12, v0\nv_add_u32 v14, v14, v2\nv_lshl_add_u32 v13, v14, 4, v13\nv_add_u32 v13, s37, v13')
    if opt.get('pre'): A('global_load_dword v58, v13, s[28:29]' + (' sc1' if opt['pre'] == 2 else ''))
    A(f's_lshl_b32 s36, s31, 15\ns_lshl_b32 s37, s34, 13\ns_add_u32 s37, s36, s37\ns_add_u32 s37, s37, {QR + 4096}')
    A('v_lshl_add_u32 v14, v0, 4, s37')
    if qc:
        A(f'v_lshrrev_b32 v15, 5, v0\nv_lshlrev_b32 v15, 6, v15\nv_lshl_add_u32 v15, v2, 7, v15\nv_lshl_add_u32 v15, v50, 5, v15\nv_lshl_add_u32 v15, v6, 3, v15\nv_add_u32 v15, {QL}, v15')
        A('s_mov_b32 s46, 0x11111111\ns_mov_b32 s47, 0x11111111\ns_lshl_b64 s[48:49], s[46:47], 1\ns_lshl_b64 s[50:51], s[46:47], 2\ns_lshl_b64 s[52:53], s[46:47], 3')
    else:
        A(f'v_lshrrev_b32 v15, 5, v0\nv_lshlrev_b32 v15, 6, v15\nv_lshl_add_u32 v15, v0, 3, v15\nv_add_u32 v15, {QL}, v15')
        A('s_mov_b32 s46, 0x000f000f\ns_mov_b32 s47, 0x000f000f\ns_lshl_b64 s[48:49], s[46:47], 4\ns_lshl_b64 s[50:51], s[46:47], 8\ns_lshl_b64 s[52:53], s[46:47], 12')
    A('s_waitcnt lgkmcnt(0)')
    A('s_mul_i32 s33, s33, 1664525\ns_add_u32 s33, s33, 1013904223')
    NB = opt.get('nb', 5)
    for j in range(4): A(f'v_bfe_u32 v{60+j}, s33, {NB*j}, {NB}')
    A(f's_movk_i32 s44, {(1<<NB)-1}')
    A(f'v_mov_b32 v54, {FL}\nv_mov_b32 v55, 1')
    STAMP(2)
    spin('L_sp8', 0, 8)
    STAMP(4)
    for c in range(4): A(f'ds_read_b128 v[{16+4*c}:{19+4*c}], v11 offset:{64*c}')
    ad = ['v12', 'v3', 'v4', 'v5']
    def sel(t):
        A(f's_mov_b64 exec, s[{46+2*t}:{47+2*t}]')
        for j in range(4): A(f'v_add_u32 v{(48,49,52,53)[j]}, {1<<(NB-1)}, v{32+4*t+j}')
        if t != 2: A('s_mov_b64 exec, -1')
    for t in range(4):
        for c in range(4):
            for e in range(2):
                r = 64 + 16 * t + 4 * c + 2 * e
                A(f'ds_read_b64_tr_b16 v[{r}:{r+1}], {ad[t]} offset:{WQ + 4096*c + 512*e}')
        if t >= 1:
            if t >= 2: sel(t - 2)
            LG(8)
            for c in range(4):
                r = 64 + 16 * (t - 1) + 4 * c
                A(f'v_mfma_f32_16x16x32_bf16 v[{32+4*(t-1)}:{35+4*(t-1)}], v[{r}:{r+3}], v[{16+4*c}:{19+4*c}], ' + ('0' if c == 0 else f'v[{32+4*(t-1)}:{35+4*(t-1)}]'))
    for c in range(4):
        LG(6 - 2 * c)
        r = 64 + 48 + 4 * c
        A(f'v_mfma_f32_16x16x32_bf16 v[44:47], v[{r}:{r+3}], v[{16+4*c}:{19+4*c}], ' + ('0' if c == 0 else 'v[44:47]'))
    sel(2); sel(3)
    for j in range(4): A(f'v_bfi_b32 v{68+j}, s44, v{60+j}, v{(48,49,52,53)[j]}')
    A('global_store_dwordx4 v13, v[68:71], s[28:29]' + ('' if lq else ' sc1'))
    def qfb(): A('global_store_dwordx4 v13, v[68:71], s[28:29] sc1')
    A('ds_write_b32 v54, v55 offset:12')
    A('global_load_dword v9, v7, s[4:5]\ns_load_dword s38, s[22:23], 0')
    if lq: A(f'v_add_u32 v13, {FB}, v13')
    if PF2: A(PF2)
    if wop >= 7:
        A(f'''s_bfe_u32 s35, s2, 0x30003
        {ROLE}
        s_lshl_b32 s40, s39, 17
        s_lshl_b32 s41, s61, 7
        s_add_u32 s40, s40, s41
        {WR}
        s_lshl_b32 s41, s36, 15
        s_add_u32 s40, s40, s41
        v_lshrrev_b32 v64, 3, v0
        v_lshlrev_b32 v64, 10, v64
        v_and_b32 v65, 7, v0
        v_lshl_add_u32 v64, v65, 4, v64
        v_add_u32 v64, s40, v64
        v_add_u32 v65, 7168, v64
        v_add_u32 v66, 14336, v64
        v_add_u32 v67, 21504, v64
        s_lshl_b32 s41, s36, 12
        s_add_u32 m0, s41, {WO}''')
    def wo8():
        for w_ in range(4):
            for a_ in range(4): A(f'global_load_lds_dwordx4 v{64+a_}, s[12:13] offset:{1024*a_}{NT}')
            if w_ < 3:
                A(f's_xor_b32 m0, m0, {(w_ ^ (w_ + 1)) << 12}')
                for a_ in range(4): A(f'v_xor_b32 v{64+a_}, {(w_ ^ (w_ + 1)) << 15}, v{64+a_}')
    STAMP(7)
    def chkq():
        for e in range(8):
            r = 16 + 4 * e
            A(f's_waitcnt vmcnt({7-e})')
            if e == 0: STAMP(6)
            for j in range(4): A(f'v_xor_b32 v{r+j}, v{60+j}, v{r+j}')
            if e == 0: A(f'v_or_b32 v57, v{r}, v{r+1}')
            else: A(f'v_or3_b32 v57, v57, v{r}, v{r+1}')
            A(f'v_or3_b32 v57, v57, v{r+2}, v{r+3}')
            if e >= 2:
                for j in (0, 2): A(f'v_pk_add_f32 v[{16+4*(e&1)+j}:{17+4*(e&1)+j}], v[{16+4*(e&1)+j}:{17+4*(e&1)+j}], v[{r+j}:{r+j+1}]')
        A('v_and_b32 v57, s44, v57')
        A('v_cmp_ne_u32 vcc, 0, v57')
    if opt.get('tq', 1): spin('L_spt', 20, 1)
    poll('L_pollq', [(16 + 4 * e, 'v14', 1024 * e - 4096) for e in range(8)], chkq, st=5, nowait=opt.get('qnw') or opt.get('tq', 1), post=lambda: A('ds_write_b32 v54, v55 offset:8\nv_mov_b32 v55, 2'), fb=qfb if lq else None)
    A('ds_write_b32 v54, v55 offset:8')
    if stamps: A('s_mov_b32 s90, s43')
    A('v_cvt_pk_bf16_f32 v16, v16, v17\nv_cvt_pk_bf16_f32 v17, v18, v19\nv_cvt_pk_bf16_f32 v20, v20, v21\nv_cvt_pk_bf16_f32 v21, v22, v23')
    A('ds_write_b64 v15, v[16:17]\nds_write_b64 v15, v[20:21] offset:640')
    STAMP(8)
    A('s_waitcnt lgkmcnt(0)')
    A('s_barrier                    ; B2')
    if lq: qfb()
    A(f'v_lshlrev_b32 v11, 3, v50\nv_add_u32 v11, {GY}, v11')
    for w in range(7): A(f'ds_read_b64 v[{16+2*w}:{17+2*w}], v11 offset:{32*w}')
    if wop == 8: wo8()
    A('s_barrier                    ; B3')
    if wop == 7: wo8()
    A('s_setprio 0')
    A(f's_lshl_b32 s37, s59, 11\ns_add_u32 s37, s37, {SR}')
    A('v_lshl_add_u32 v14, v0, 4, s37')
    A('s_waitcnt lgkmcnt(0)')
    A('s_lshl_b32 s38, s38, 16')
    def ep1():
        for w in range(1, 7): A(f'v_pk_add_f32 v[16:17], v[16:17], v[{16+2*w}:{17+2*w}]')
        A('v_cvt_pk_bf16_f32 v18, v16, v17')
        unpack(['v16', 'v17'], ['v18'])
        A('v_add_f32 v16, s38, v16\nv_add_f32 v17, s38, v17\nv_cvt_pk_bf16_f32 v18, v16, v17')
        unpack(['v16', 'v17'], ['v18'])
        A(f'v_mul_f32 v18, {f2h(-LOG2E)}, v16\nv_mul_f32 v19, {f2h(-LOG2E)}, v17')
    def ep2():
        A('v_exp_f32 v18, v18\nv_exp_f32 v19, v19\nv_add_f32 v18, 1.0, v18\nv_add_f32 v19, 1.0, v19\nv_rcp_f32 v18, v18\nv_rcp_f32 v19, v19')
        A('v_mul_f32 v16, v16, v18\nv_mul_f32 v17, v17, v19\nv_cvt_pk_bf16_f32 v18, v16, v17')
        unpack(['v30', 'v31'], ['v18'])
        unpack(['v8', 'v10'], ['v9'])
    ps = opt.get('ps', 0)
    if not ps: ep1(); ep2()
    A('s_barrier                    ; B4')
    if opt.get('onw') == 2: A('s_barrier')
    if wop >= 7: A('s_waitcnt vmcnt(0)\nds_write_b32 v54, v55 offset:16')
    A('s_barrier                    ; B5')
    if opt.get('pr', 1): A('s_setprio 1')
    STAMP(10)
    if opt.get('b6'): spin('L_sp6', 20, opt['b6'])
    if not ps:
        def chk2():
            A('s_waitcnt vmcnt(0)\nv_cmp_ne_u32 vcc, s33, v19\nv_cmp_ne_u32 s[54:55], s33, v23\ns_or_b64 vcc, vcc, s[54:55]')
        poll('L_polls', [(16, 'v14', 0), (20, 'v14', 1024)], chk2, fb=(lambda: None) if lo else None, fl={0: 'sc1', 1: 'sc1 nt', 2: 'sc0 sc1', 3: 'sc0 sc1 nt'}[opt.get('sf', 0)])
        A('v_pk_add_f32 v[16:17], v[16:17], v[20:21]')
    else:
        def sld(r): A(f'global_load_dwordx4 v[{r}:{r+3}], v14, s[28:29] sc1\nglobal_load_dwordx4 v[{r+4}:{r+7}], v14, s[28:29] offset:1024 sc1')
        sld(32); ep1(); sld(40); ep2(); sld(48)
        A(f's_movk_i32 s43, {SPIN}\nL_polls:')
        for r in (32, 40, 48):
            A(f's_waitcnt vmcnt(4)\nv_cmp_ne_u32 vcc, s33, v{r+3}\nv_cmp_ne_u32 s[54:55], s33, v{r+7}\nv_pk_add_f32 v[16:17], v[{r}:{r+1}], v[{r+4}:{r+5}]\ns_or_b64 vcc, vcc, s[54:55]')
            A('s_cbranch_vccz L_polls_done')
            sld(r)
        A('s_sub_u32 s43, s43, 1\ns_cbranch_scc0 L_polls\nL_polls_done:')
    STAMP(11)
    for m in ('row_ror:4', 'row_ror:8'):
        A(f'v_add_f32 v16, v16, v16 {m}\nv_add_f32 v17, v17, v17 {m}')
    xrow([('v16', 'v18'), ('v17', 'v19')], 'v_add_f32')
    A('v_cvt_pk_bf16_f32 v18, v16, v17')
    unpack(['v16', 'v17'], ['v18'])
    A('v_pk_mul_f32 v[16:17], v[16:17], v[30:31]\nv_cvt_pk_bf16_f32 v18, v16, v17')
    unpack(['v16', 'v17'], ['v18'])
    A('v_add_f32 v16, v16, v8\nv_add_f32 v17, v17, v10\nv_cvt_pk_bf16_f32 v18, v16, v17')
    A('s_mov_b64 exec, 15')
    A('global_store_dword v7, v18, s[24:25]')
    A('s_cmp_lg_u32 s2, 0\ns_cbranch_scc1 L_fin8')
    A('s_mov_b64 exec, 1\nv_mov_b32 v20, 0\nv_mov_b32 v21, s33')
    A('global_store_dword v20, v21, s[28:29]')
    A('L_fin8:')
    STAMP(12)
    DUMP(); DIAG('L_dg8')
    A('L_cend:')
    A('s_endpgm')
    A.raw(f'''.section .rodata,"a"
.p2align 6
.amdhsa_kernel {NAME}_kernel
  .amdhsa_next_free_vgpr 128
  .amdhsa_next_free_sgpr 96
  .amdhsa_accum_offset 128
  .amdhsa_group_segment_fixed_size 0
  .amdhsa_kernarg_size 104
  .amdhsa_user_sgpr_count 2
  .amdhsa_user_sgpr_kernarg_segment_ptr 1
  .amdhsa_system_sgpr_workgroup_id_x 1
.end_amdhsa_kernel''')
    return A.text()
if __name__ == '__main__':
    out = sys.argv[1]; stamps = 'stamps' in sys.argv[2:]
    opt = {}
    for k in sys.argv[2:]:
        if k.startswith('diag='): opt['diag'] = tuple(int(x) for x in k[5:].split(','))
        elif '=' in k: opt[k.split('=')[0]] = int(k.split('=')[1])
        else: opt[k] = True
    open(out, 'w').write(gen(stamps, opt))
```
